```python
import torch

def _softmax(x, axis=-1):
    return torch.softmax(x, dim=axis)
def _gelu(x):
    return torch.nn.functional.gelu(x, approximate="tanh")
def _silu(x):
    return torch.nn.functional.silu(x)
def _sigmoid(x):
    return torch.sigmoid(x)
def _layernorm(x, axis=-1, eps=1e-5):
    m = x.mean(dim=axis, keepdim=True)
    v = x.var(dim=axis, keepdim=True, unbiased=False)
    return (x - m) / torch.sqrt(v + eps)
def _scatter_add(tgt, idx, src, axis=0):
    return tgt.clone().index_add_(axis, idx, src)
def _segment_sum(src, seg, n):
    out = torch.zeros((n,) + src.shape[1:], dtype=src.dtype)
    return out.index_add_(0, seg, src)
def _pad(x, pw):
    flat = tuple(v for pair in reversed(pw) for v in pair)
    return torch.nn.functional.pad(x, flat)

kernel_name = 'recurrent_scan__sliding_block_cached__geglu_ffn__decode'

def setup_inputs():

    _w = (lambda a: (lambda t: t.to(torch.bfloat16) if t.is_floating_point() else t)(torch.as_tensor(a)))
    def _A_setup():
        B, Sq, D = 1, 1, 512
        Hq, Hkv, Sk, Dh = 32, 8, 65536, 128
        assert Hq % Hkv == 0, (Hq, Hkv)
        return {
            "x": _w((lambda *s: torch.randn(*s, dtype=torch.bfloat16) * 0.05)(B, Sq, D)),
            "k_cache": _w((lambda *s: torch.randn(*s, dtype=torch.bfloat16) * 1.6)(B, Hkv, Sk, Dh)),
            "v_cache": _w((lambda *s: torch.randn(*s, dtype=torch.bfloat16) * 0.2)(B, Hkv, Sk, Dh)),
            "wq": _w((lambda *s: torch.randn(*s, dtype=torch.bfloat16) * 1.6)(D, Hq * Dh) * (D ** -0.5)),
            "wo": _w((lambda *s: torch.randn(*s, dtype=torch.bfloat16) * 0.2)(Hq * Dh, D) * ((Hq * Dh) ** -0.5)),
        }
    _A_in = _A_setup()

    def _B_setup():
        B, S, D, F = 1, 1, 512, 1792
        return {
            "x": _w((lambda *s: torch.randn(*s, dtype=torch.bfloat16) * 0.05)(B, S, D)),
            "w_gate": _w((lambda *s: torch.randn(*s, dtype=torch.bfloat16) * 0.1)(D, F)),
            "w_up": _w((lambda *s: torch.randn(*s, dtype=torch.bfloat16) * 0.1)(D, F)),
            "w_down": _w((lambda *s: torch.randn(*s, dtype=torch.bfloat16) * 0.1)(F, D)),
        }
    _B_in = _B_setup()

    return {
        "A_x": _A_in["x"],
        "A_k_cache": _A_in["k_cache"],
        "A_v_cache": _A_in["v_cache"],
        "A_wq": _A_in["wq"],
        "A_wo": _A_in["wo"],
        "B_x": _B_in["x"],
        "B_w_gate": _B_in["w_gate"],
        "B_w_up": _B_in["w_up"],
        "B_w_down": _B_in["w_down"],
    }

def reference(A_x, A_k_cache, A_v_cache, A_wq, A_wo, B_x, B_w_gate, B_w_up, B_w_down):
    def _A_ref(x, k_cache, v_cache, wq, wo):
        B, Sq, D = x.shape
        Hq, Dh = 32, 128
        Hkv, Sk = k_cache.shape[1], k_cache.shape[2]
        W = min(4096, max(256, Sk // 4))
        rep = Hq // Hkv
        q = (lambda x, *d: x.permute(*d))((x @ wq).reshape(B, Sq, Hq, Dh), 0, 2, 1, 3)
        k = (lambda x, n, axis: torch.repeat_interleave(x, n, dim=axis))(k_cache[:, :, Sk - W:, :], rep, axis=1)
        v = (lambda x, n, axis: torch.repeat_interleave(x, n, dim=axis))(v_cache[:, :, Sk - W:, :], rep, axis=1)
        scores = torch.einsum("bhqd,bhkd->bhqk", q, k) * (Dh ** -0.5)
        p = _softmax(scores, axis=-1)
        o = torch.einsum("bhqk,bhkd->bhqd", p, v)
        return (lambda x, *d: x.permute(*d))(o, 0, 2, 1, 3).reshape(B, Sq, Hq * Dh) @ wo

    def _B_ref(x, w_gate, w_up, w_down):
        return (_gelu(x @ w_gate) * (x @ w_up)) @ w_down

    x = A_x
    xn = _layernorm(x, axis=-1)
    s = _A_ref(xn, A_k_cache, A_v_cache, A_wq, A_wo)
    g = _silu(_B_ref(xn, B_w_gate, B_w_up, B_w_down))
    return x + s * g
```

```python
import re

def _regs(tok):
    tok = tok.strip()
    neg = tok.lstrip('-')
    m = re.fullmatch(r'abs\((.*)\)', neg)
    if m: neg = m.group(1)
    neg = neg.strip('|')
    m = re.fullmatch(r'([vsa])(\d+)', neg)
    if m: return {(m.group(1), int(m.group(2)))}
    m = re.fullmatch(r'([vsa])\[(\d+):(\d+)\]', neg)
    if m: return {(m.group(1), i) for i in range(int(m.group(2)), int(m.group(3)) + 1)}
    if neg == 'vcc': return {('s', 'vcc')}
    if neg == 'exec': return {('s', 'exec')}
    if neg == 'm0': return {('s', 'm0')}
    return set()

TRANS = ('v_exp_f32', 'v_log_f32', 'v_rcp_f32', 'v_rsq_f32', 'v_sqrt_f32', 'v_sin_f32', 'v_cos_f32')

class Ins:
    def __init__(self, text):
        self.text = text
        t = text.split(';')[0].strip()
        self.label = t.endswith(':')
        self.directive = t.startswith('.')
        self.op = t.split()[0] if t else ''
        rest = t[len(self.op):].strip()
        ops = [o.strip() for o in re.split(r',(?![^\[]*\])', rest)] if rest else []
        mods = ''
        if ops:
            last = ops[-1].split()
            if len(last) > 1:
                ops[-1] = last[0]; mods = ' '.join(last[1:])
        self.ops = ops; self.mods = mods
        op = self.op
        self.states = 1
        if op == 's_nop': self.states = int(ops[0], 0) + 1
        if self.label or self.directive or not op: self.states = 0
        self.valu = op.startswith('v_') and not op.startswith('v_mfma')
        self.mfma = op.startswith('v_mfma')
        self.salu = op.startswith('s_')
        self.ds = op.startswith('ds_')
        self.vmem = op.startswith('buffer_') or op.startswith('global_')
        self.dpp = ('_dpp' in op) or any(k in mods for k in ('row_', 'quad_perm'))
        self.trans = any(op.startswith(x) for x in TRANS)
        self.permlane = op.startswith('v_permlane')
        self.readlane = op.startswith('v_readlane') or op.startswith('v_readfirstlane')
        self.w = set(); self.r = set()
        R = [_regs(o) for o in ops]
        if self.valu or self.mfma:
            if op.startswith('v_cmp'):
                self.w |= R[0]
                for x in R[1:]: self.r |= x
            elif self.permlane:
                self.w |= R[0] | R[1]; self.r |= R[0] | R[1]
            else:
                self.w |= R[0]
                for x in R[1:]: self.r |= x
                if op.startswith(('v_fmac', 'v_dot2c', 'v_writelane')) or (self.dpp and op.startswith('v_mov')): self.r |= R[0]
                if op.startswith('v_cndmask') and len(ops) == 3: self.r |= {('s', 'vcc')}
                if op.startswith(('v_add_co', 'v_sub_co', 'v_addc_co')): self.w |= R[1]
        elif self.ds:
            if op.startswith(('ds_read', 'ds_bpermute', 'ds_permute', 'ds_swizzle')):
                self.w |= R[0]
                for x in R[1:]: self.r |= x
            else:
                for x in R: self.r |= x
        elif self.vmem:
            lds = 'lds' in mods.split() or '_lds_' in op
            self.ldsdma = lds
            if '_load' in op and not lds:
                self.w |= R[0]
                for x in R[1:]: self.r |= x
            else:
                for x in R: self.r |= x
            if lds: self.r |= {('s', 'm0')}
            self.widestore = ('store' in op) and op.endswith(('x3', 'x4'))
            if self.widestore:
                self.data = R[0] if op.startswith('buffer_') else R[1]
        elif self.salu:
            if op.startswith(('s_cmp', 's_cbranch', 's_branch', 's_waitcnt', 's_barrier', 's_sleep', 's_setprio', 's_endpgm', 's_nop')):
                for x in R: self.r |= x
            else:
                if R: self.w |= R[0]
                for x in R[1:]: self.r |= x
                if 'saveexec' in op: self.w |= {('s', 'exec')}
        if self.mfma:
            self.srcab = R[1] | R[2]; self.srcc = R[3]; self.passes = 4 if '16x16' in op else 8

def V(x): return {r for r in x if r[0] in 'va'}
def S(x): return {r for r in x if r[0] == 's'}

def need(p, c):
    n = 0
    if p.valu:
        wv = V(p.w); ws = S(p.w)
        if c.valu and c.dpp and wv & c.r: n = max(n, 2)
        if c.permlane and wv & c.r: n = max(n, 2)
        if c.mfma and wv & c.r: n = max(n, 2)
        if c.readlane and wv & c.r: n = max(n, 1)
        if p.trans and c.valu and not c.trans and wv & c.r: n = max(n, 1)
        if p.trans and (c.valu) and wv & c.r: n = max(n, 1)
        if ws:
            if c.valu and ws & c.r: n = max(n, 4 if (c.readlane or c.op.startswith('v_writelane')) else 2)
            if c.vmem and ws & c.r: n = max(n, 5)
            if c.salu and ws & c.r: n = max(n, 1)
        if ('sdwa' in p.op or 'op_sel' in p.mods) and c.valu and wv & (c.r | c.w): n = max(n, 1)
    if p.mfma:
        D = p.w; big = {4: 8, 8: 12}[p.passes]
        if c.mfma:
            if D & c.srcab: n = max(n, big)
            if D & c.srcc and D != c.srcc: n = max(n, {4: 6, 8: 10}[p.passes])
            if D & c.w and not (D & c.srcc): n = max(n, big)
        elif (c.valu or c.ds or c.vmem) and D & (c.r | c.w): n = max(n, big)
        if c.valu and p.srcc & c.w: n = max(n, {4: 3, 8: 7}[p.passes])
    if p.salu and ('s', 'm0') in p.w and c.vmem and getattr(c, 'ldsdma', False): n = max(n, 1)
    if p.vmem and getattr(p, 'widestore', False) and (c.valu or c.ds or c.vmem or c.mfma) and p.data & c.w: n = max(n, 2)
    return n

class Asm:
    def __init__(self):
        self.ins = []
    def __call__(self, text):
        for line in text.split('\n'):
            line = line.strip()
            if not line: continue
            self.emit(line)
    def emit(self, line):
        c = Ins(line)
        if c.states and not line.startswith(';'):
            dist = 0; pad = 0
            for p in reversed(self.ins):
                if dist >= 13: break
                if p.states == 0: continue
                n = need(p, c)
                if n > dist: pad = max(pad, n - dist)
                dist += p.states
            while pad > 0:
                k = min(pad, 16)
                self.ins.append(Ins(f's_nop {k-1}')); pad -= k
        self.ins.append(c)
    def text(self):
        out = []
        for i in self.ins:
            out.append(i.text if (i.label or i.directive or i.text.startswith(';')) else '    ' + i.text)
        return '\n'.join(out) + '\n'
```

```python
import sys, argparse
sys.path.insert(0, 'tools')
from asmlib import Asm
NAME = "recurrent_scan__sliding_block_cached__geglu_ffn__decode"
ap = argparse.ArgumentParser()
ap.add_argument("--diag", type=int, default=0)
ap.add_argument("--order", default="wq,g,u,HQ,k,dn,v,HO,wo")
ap.add_argument("--win", type=int, default=32)
ap.add_argument("--nt", type=int, default=1)
ap.add_argument("--psleep", type=int, default=4)
ap.add_argument("--qdelay", type=int, default=0)
ap.add_argument("--thr", type=int, default=0)
ap.add_argument("--spin", type=int, default=20000)
a = ap.parse_args()
DIAG = a.diag
NT = " nt" if a.nt else ""
A = Asm()

L_WQ, L_G, L_U, L_WO, L_DN = 0, 16384, 24576, 32768, 49152
L_PROG = 57344
L_F1 = 57360
L_F2 = 57376
L_FO = 57392
L_FQ = 57408
L_FG = 57412
L_XN0 = 57856; L_XN1 = 58880
L_Q = 59904
L_OF = 61440
L_K = 65536; L_V = 98304
L_P = 131072; L_ST = 135168
LDS_BYTES = 137216
W_QF = 0x1000; W_GF = 0x2000; W_QP = 0x10000; W_GU = 0x20000; W_ML = 0x40000
W_SP = 0x50000; W_GP = 0x60000; W_OP = 0x80000; W_SIZE = 0x100000
TAGM = 0x3ff
LOG2E = 0x3fb8aa3b
SCALE = 0x3db504f3

NWAVES = 6
hdr = [f"; fused decode step: LN -> (q proj, sliding-window GQA attention, out proj) * silu(GEGLU FFN) + x",
       f"; 256 workgroups (one per CU), wave 0 streams every weight / K / V tile into LDS, waves 1-4 attention, wave 5 FFN",
       f"; @launch grid=(256,1,1) block=({NWAVES*64},1,1) lds={LDS_BYTES}"]
A('.amdgcn_target "amdgcn-amd-amdhsa--gfx950"')
A(".text"); A(f".globl {NAME}_kernel"); A(".p2align 8"); A(f".type {NAME}_kernel,@function"); A(f"{NAME}_kernel:")

stamp_n = {}
def stamp(role):
    if not DIAG: return
    k = stamp_n.get(role, 1); stamp_n[role] = k + 1
    assert k < 16
    A(f"s_memrealtime s[{64+2*k}:{65+2*k}]")
def cstamp(role, reg="s35"):
    if not DIAG: return
    k = stamp_n.get(role, 1); stamp_n[role] = k + 1
    A(f"s_waitcnt lgkmcnt(0)\ns_mul_i32 s{64+2*k}, {reg}, 100\ns_add_u32 s{64+2*k}, s{64+2*k}, s64")
def srd(d, p, n):
    A(f"s_mov_b32 s{d}, s{p}\ns_mov_b32 s{d+1}, s{p+1}\ns_mov_b32 s{d+2}, {n}\ns_mov_b32 s{d+3}, 0x20000")

if DIAG: A("s_memrealtime s[64:65]")
A("""s_load_dwordx16 s[4:19], s[0:1], 0
s_load_dwordx8 s[20:27], s[0:1], 64
s_cmp_ge_u32 s2, 256
s_cbranch_scc1 L_end
v_lshrrev_b32 v4, 6, v0
v_and_b32 v1, 63, v0
v_readfirstlane_b32 s28, v4
s_and_b32 s29, s2, 7
s_lshr_b32 s30, s2, 3
s_lshr_b32 s31, s30, 3
s_and_b32 s32, s30, 7
s_lshl_b32 s33, s29, 2
s_add_u32 s33, s33, s31""")
if DIAG:
    for i in range(66, 96): A(f"s_mov_b32 s{i}, 0")
A("""s_cmp_lg_u32 s28, 0
s_cbranch_scc1 L_compute""")

A("""v_lshrrev_b32 v2, 3, v1
v_and_b32 v3, 7, v1
v_lshrrev_b32 v4, 4, v1
v_and_b32 v5, 3, v4
v_lshlrev_b32 v5, 1, v5
v_xor_b32 v5, v5, v3
v_lshlrev_b32 v5, 4, v5
v_lshl_add_u32 v6, v2, 13, v5
v_mul_u32_u24 v7, 3584, v2
v_add_u32 v7, v7, v5
v_lshl_add_u32 v8, v2, 10, v5
v_and_b32 v3, 15, v1
v_lshlrev_b32 v9, 1, v4
v_xor_b32 v9, v9, v3
v_lshlrev_b32 v9, 4, v9
v_lshl_add_u32 v9, v4, 8, v9
v_xor_b32 v10, 0x80, v9""")
A(f"v_mov_b32 v11, {L_PROG}")
A(f"""s_lshl_b32 s40, s31, 20
s_lshl_b32 s34, s29, 10
s_add_u32 s40, s40, s34
s_lshl_b32 s35, s32, 7
s_add_u32 s40, s40, s35
s_mul_i32 s41, s32, {64*3584}
s_lshl_b32 s34, s33, 7
s_add_u32 s41, s41, s34
s_lshl_b32 s42, s29, 24
s_lshl_b32 s34, s30, 15
s_add_u32 s42, s42, s34
s_add_u32 s42, s42, {(65536-4096)*256}
s_lshl_b32 s43, s33, 17
s_add_u32 s43, s43, s35
s_lshl_b32 s44, s33, 16
s_add_u32 s44, s44, s35
s_cmp_ge_u32 s33, 28
s_cselect_b32 s45, 0, 1835008
s_waitcnt lgkmcnt(0)""")
stamp('L')
SEG = {
    'wq': (10, 4194304, 6, 16, 40, 8*8192, L_WQ),
    'g':  (16, 's45', 7, 8, 41, 8*3584, L_G),
    'u':  (18, 's45', 7, 8, 41, 8*3584, L_U),
    'k':  (6, 134217728, None, 32, 42, None, L_K),
    'v':  (8, 134217728, None, 32, 42, None, L_V),
    'wo': (12, 4194304, 8, 16, 43, 8*1024, L_WO),
    'dn': (20, 's45', 8, 8, 44, 8*1024, L_DN),
}
order = a.order.split(',')
PROG = {}
pn = 0
events = []
idx = 0
for o in order:
    if o in ('HQ', 'HO'): continue
    n = SEG[o][3]
    if o == 'v':
        for j in range(4):
            pn += 1; PROG[f'v{j}'] = pn; events.append((idx + 8*j + 7, pn))
    elif o == 'g' and 'u' in order and order.index('u') == order.index('g') + 1:
        pass
    else:
        pn += 1; PROG[o] = pn; events.append((idx + n - 1, pn))
    idx += n
PROG['gu'] = max(PROG.get('g', 0), PROG['u'])
TOTAL = idx
def signal(p):
    A(f"v_mov_b32 v12, {p}\ns_mov_b64 exec, 1\nds_write_b32 v11, v12\ns_mov_b64 exec, -1")
issued = 0
pend = list(events)
barrier_done = False
def flush(upto_win):
    global pend
    while pend and pend[0][0] < issued and (issued - 1 - pend[0][0]) >= upto_win:
        e, p = pend.pop(0)
        A(f"s_waitcnt vmcnt({issued - 1 - e})")
        signal(p); stamp('L')
def ensure_barrier():
    global barrier_done
    if not barrier_done:
        A("s_barrier"); barrier_done = True
srdslot = [48, 52]
for o in order:
    if o in ('HQ', 'HO'):
        ensure_barrier()
        if o == 'HQ':
            while pend and PROG['wq'] in [p for _, p in pend]:
                e, p = pend.pop(0); A(f"s_waitcnt vmcnt({issued - 1 - e})"); signal(p); stamp('L')
            A(f"""L_hq:
s_sleep 1
ds_read_b32 v13, v11 offset:{L_FQ - L_PROG}
s_waitcnt lgkmcnt(0)
v_readfirstlane_b32 s34, v13
s_cmp_eq_u32 s34, 0
s_cbranch_scc1 L_hq""")
        else:
            flush(0)
            A(f"""L_ho:
ds_read_b128 v[16:19], v11 offset:{L_FO - L_PROG}
s_waitcnt lgkmcnt(0)
v_and_b32 v16, v16, v17
v_and_b32 v18, v18, v19
v_and_b32 v16, v16, v18
v_readfirstlane_b32 s34, v16
s_cmp_eq_u32 s34, 0
s_cbranch_scc1 L_ho""")
        stamp('L')
        continue
    ptr, size, voff, n, so, step, lb = SEG[o]
    d = srdslot[0]; srdslot.reverse()
    srd(d, ptr, size)
    A(f"s_mov_b32 s46, s{so}")
    for i in range(n):
        if voff is None:
            if i % 4 == 0:
                A(f"s_mov_b32 m0, {lb + i*1024}")
                if i: A("s_add_u32 s46, s46, 4096")
            off = f" offset:{(i%4)*1024}" if i % 4 else ""
            A(f"buffer_load_dwordx4 v{9 + (i & 1)}, s[{d}:{d+3}], s46 offen{off}{NT} lds")
        else:
            A(f"s_mov_b32 m0, {lb + i*1024}")
            if i: A(f"s_add_u32 s46, s46, {step}")
            A(f"buffer_load_dwordx4 v{voff}, s[{d}:{d+3}], s46 offen{NT} lds")
        issued += 1
        if issued == 32: ensure_barrier()
        if a.thr and issued > a.thr and issued < TOTAL: A(f"s_waitcnt vmcnt({a.thr})")
        if barrier_done: flush(a.win)
ensure_barrier()
flush(0)
A("s_branch L_fin")

A("L_compute:")
A("s_setprio 3")
A("""v_and_b32 v2, 15, v1
v_lshrrev_b32 v3, 4, v1
s_sub_u32 s28, s28, 1
v_lshlrev_b32 v4, 4, v1""")
A("""v_lshrrev_b32 v5, 2, v2
v_lshl_add_u32 v5, v3, 2, v5
v_lshrrev_b32 v6, 1, v5
v_and_b32 v6, 3, v6
v_and_b32 v7, 3, v2
v_lshlrev_b32 v7, 3, v7
v_lshl_add_u32 v7, v5, 7, v7
v_lshl_add_u32 v10, v6, 5, v7""")
for t in range(1, 4): A(f"v_xor_b32 v{10+t}, {t*32}, v10")
A(f"v_mov_b32 v14, {L_PROG}")
A(f"""s_mov_b32 s47, {(~TAGM) & 0xffffffff}
s_mov_b32 s48, 0x22222222
s_mov_b32 s49, 0x22222222
s_mov_b32 s50, 0x44444444
s_mov_b32 s51, 0x44444444
s_mov_b32 s52, 0x88888888
s_mov_b32 s53, 0x88888888
s_mov_b32 s54, 0x000f000f
s_mov_b32 s55, 0x000f000f
s_waitcnt lgkmcnt(0)""")
stamp('C')
srd(36, 26, W_SIZE)
srd(40, 4, 1024)
A("buffer_load_dword v8, off, s[36:39], 0 sc1")
A("buffer_load_dwordx4 v[20:23], v4, s[40:43], 0 offen")
A(f"""s_cmp_lg_u32 s28, 1
s_cbranch_scc1 L_noinit
v_mov_b32 v15, 0
v_lshl_add_u32 v16, v1, 2, v14
ds_write_b32 v16, v15
s_waitcnt lgkmcnt(0)
L_noinit:
s_barrier
s_waitcnt vmcnt(1)
v_readfirstlane_b32 s44, v8
s_add_u32 s44, s44, 1
s_and_b32 s45, s44, {TAGM}
v_mov_b32 v9, s45""")
def waitprog(p, lbl, sleep=1):
    A(f"{lbl}:")
    if sleep: A(f"s_sleep {sleep}")
    A(f"""ds_read_b32 v15, v14
s_waitcnt lgkmcnt(0)
v_readfirstlane_b32 s34, v15
s_cmp_lt_u32 s34, {p}""")
    A(f"s_cbranch_scc1 {lbl}")
def wait1(off, lbl, sleep=1):
    A(f"{lbl}:")
    if sleep: A(f"s_sleep {sleep}")
    A(f"""ds_read_b32 v15, v14 offset:{off - L_PROG}
s_waitcnt lgkmcnt(0)
v_readfirstlane_b32 s34, v15
s_cmp_eq_u32 s34, 0
s_cbranch_scc1 {lbl}""")
def wait4(off, lbl, sleep=0):
    A(f"{lbl}:")
    if sleep: A(f"s_sleep {sleep}")
    A(f"""ds_read_b128 v[16:19], v14 offset:{off - L_PROG}
s_waitcnt lgkmcnt(0)
v_and_b32 v16, v16, v17
v_and_b32 v18, v18, v19
v_and_b32 v16, v16, v18
v_readfirstlane_b32 s34, v16
s_cmp_eq_u32 s34, 0
s_cbranch_scc1 {lbl}""")
def setflag(off, perwave=True):
    if perwave:
        A(f"s_lshl_b32 s34, s28, 2\ns_add_u32 s34, s34, {off}\nv_mov_b32 v15, s34")
    else:
        A(f"v_mov_b32 v15, {off}")
    A("v_mov_b32 v16, 1\ns_mov_b64 exec, 1\nds_write_b32 v15, v16\ns_mov_b64 exec, -1")
def tag(regs):
    for r in regs: A(f"v_add_u32 v{r}, {(TAGM+1)//2}, v{r}")
    for r in regs: A(f"v_and_or_b32 v{r}, v{r}, s47, v9")
def check(regs, acc, tmp):
    ps = [(regs[i], regs[i+1]) for i in range(0, len(regs), 2)]
    first = True
    i = 0
    while i < len(ps):
        if first:
            A(f"v_bitop3_b32 v{acc}, v{ps[i][0]}, v{ps[i][1]}, v9 bitop3:0x7e"); first = False; i += 1
        elif i + 1 < len(ps):
            A(f"v_bitop3_b32 v{tmp}, v{ps[i][0]}, v{ps[i][1]}, v9 bitop3:0x7e")
            A(f"v_bitop3_b32 v{tmp+1}, v{ps[i+1][0]}, v{ps[i+1][1]}, v9 bitop3:0x7e")
            A(f"v_or3_b32 v{acc}, v{acc}, v{tmp}, v{tmp+1}"); i += 2
        else:
            A(f"v_bitop3_b32 v{tmp}, v{ps[i][0]}, v{ps[i][1]}, v9 bitop3:0x7e")
            A(f"v_or_b32 v{acc}, v{acc}, v{tmp}"); i += 1
    A(f"v_and_b32 v{acc}, {TAGM}, v{acc}")
    A(f"v_cmp_ne_u32 vcc, 0, v{acc}")
def untag(regs):
    for r in regs: A(f"v_and_b32 v{r}, s47, v{r}")
def rowred(op, regs, steps=("row_ror:8", "row_ror:4", "row_ror:2", "row_ror:1")):
    for s in steps:
        for r in regs: A(f"{op}_dpp v{r}, v{r}, v{r} {s} row_mask:0xf bank_mask:0xf")
def xrow(op, r, t):
    A(f"v_mov_b32 v{t}, v{r}\nv_permlane16_swap_b32 v{t}, v{r}\n{op} v{r}, v{r}, v{t}")
    A(f"v_mov_b32 v{t}, v{r}\nv_permlane32_swap_b32 v{t}, v{r}\n{op} v{r}, v{r}, v{t}")
def bfr(r, t=None):
    A(f"v_cvt_pk_bf16_f32 v{r}, v{r}, v{r}\nv_lshlrev_b32 v{r}, 16, v{r}")
def bfr2(r0, r1):
    A(f"v_cvt_pk_bf16_f32 v{r1}, v{r0}, v{r1}\nv_lshlrev_b32 v{r0}, 16, v{r1}\nv_and_b32 v{r1}, 0xffff0000, v{r1}")
def select4(dst, srcs, masks=("s[48:49]", "s[50:51]", "s[52:53]")):
    for t in range(1, len(srcs)):
        for i in range(4):
            s0 = srcs[0] + i if t == 1 else dst + i
            A(f"v_cndmask_b32 v{dst+i}, v{s0}, v{srcs[t]+i}, {masks[t-1]}")
def layernorm(lxn):
    A("s_waitcnt vmcnt(0)")
    for i in range(4):
        A(f"v_lshlrev_b32 v{24+2*i}, 16, v{20+i}\nv_and_b32 v{25+2*i}, 0xffff0000, v{20+i}")
    A("""v_add_f32 v32, v24, v25
v_add_f32 v33, v26, v27
v_add_f32 v34, v28, v29
v_add_f32 v35, v30, v31
v_add_f32 v32, v32, v33
v_add_f32 v34, v34, v35
v_add_f32 v32, v32, v34""")
    rowred("v_add_f32", [32]); xrow("v_add_f32", 32, 33)
    A("v_mul_f32 v32, 0x3b000000, v32")
    for i in range(8): A(f"v_sub_f32 v{36+i}, v{24+i}, v32")
    A("v_mul_f32 v33, v36, v36")
    for i in range(1, 8): A(f"v_fmac_f32 v33, v{36+i}, v{36+i}")
    rowred("v_add_f32", [33]); xrow("v_add_f32", 33, 34)
    A("v_mul_f32 v33, 0x3b000000, v33")
    bfr2(32, 33)
    A("v_add_f32 v33, 0x3727c5ac, v33")
    bfr(33)
    A("v_sqrt_f32 v33, v33")
    bfr(33)
    A("v_rcp_f32 v34, v33")
    for i in range(8): A(f"v_sub_f32 v{24+i}, v{24+i}, v32")
    for i in range(4): bfr2(24+2*i, 25+2*i)
    for i in range(8): A(f"v_mul_f32 v{36+i}, v{24+i}, v34")
    for i in range(8): A(f"v_fma_f32 v{24+i}, -v{36+i}, v33, v{24+i}")
    for i in range(8): A(f"v_fmac_f32 v{36+i}, v{24+i}, v34")
    for i in range(4): A(f"v_cvt_pk_bf16_f32 v{24+i}, v{36+2*i}, v{37+2*i}")
    A(f"ds_write_b128 v4, v[24:27] offset:{lxn}")
def bound(lbl_retry, lbl_out, cnt="s35"):
    A(f"s_add_u32 {cnt}, {cnt}, 1\ns_cmp_ge_u32 {cnt}, {a.spin}\ns_cbranch_scc1 {lbl_out}")

A("s_cmp_eq_u32 s28, 4\ns_cbranch_scc1 L_ffn")
A("s_cmp_lg_u32 s28, 0\ns_cbranch_scc1 L_attn")
layernorm(L_XN0)
A(f"s_lshl_b32 s34, s31, 8\ns_add_u32 s34, s34, {L_XN0}\nv_lshl_add_u32 v15, v3, 3, s34")
for s in range(4): A(f"ds_read2_b64 v[{24+4*s}:{27+4*s}], v15 offset0:{8*s} offset1:{8*s+4}")
stamp('C')
waitprog(PROG['wq'], "L_wq")
stamp('C')
def gemv(base, nsteps, bfrag, acc, areg):
    k = 0
    for s in range(nsteps):
        for t in range(4):
            r = areg + 4*k
            A(f"ds_read_b64_tr_b16 v[{r}:{r+1}], v{10+t} offset:{base + s*4096}")
            A(f"ds_read_b64_tr_b16 v[{r+2}:{r+3}], v{10+t} offset:{base + s*4096 + 2048}")
            k += 1
    k = 0; n = nsteps*4
    for s in range(nsteps):
        for t in range(4):
            r = areg + 4*k
            A(f"s_waitcnt lgkmcnt({min(15, 2*(n-1-k))})")
            c = "0" if s == 0 else f"v[{acc+4*t}:{acc+4*t+3}]"
            A(f"v_mfma_f32_16x16x32_bf16 v[{acc+4*t}:{acc+4*t+3}], v[{r}:{r+3}], v[{bfrag+4*s}:{bfrag+4*s+3}], {c}")
            k += 1
gemv(L_WQ, 4, 24, 40, 56)
A(f"""v_lshlrev_b32 v15, 6, v2
v_lshl_add_u32 v15, v3, 4, v15
s_lshl_b32 s34, s33, 11
s_lshl_b32 s35, s32, 8
s_add_u32 s34, s34, s35
s_add_u32 s34, s34, {W_QP}
s_lshl_b32 s35, s29, 8
s_lshl_b32 s46, s30, 2
s_add_u32 s35, s35, s46
s_add_u32 s35, s35, {W_QF}
v_mov_b32 v16, s44
v_mov_b32 v17, 0""")
select4(40, [40, 44, 48, 52])
tag(range(40, 44))
A("""s_mov_b64 exec, s[54:55]
buffer_store_dwordx4 v[40:43], v15, s[36:39], s34 offen sc1
s_mov_b64 exec, -1""")
setflag(L_FQ, perwave=False)
stamp('C')

A("s_waitcnt vmcnt(0)")
if a.qdelay: A(f"s_sleep {a.qdelay}")
setflag(L_FG, perwave=False)
A("s_branch L_attn2")
A("L_attn:")
wait1(L_FG, "L_fg", 2)
A("L_attn2:")
stamp('C')
A(f"""v_and_b32 v15, 3, v1
v_lshlrev_b32 v15, 11, v15
v_lshrrev_b32 v16, 2, v1
v_lshl_add_u32 v15, v16, 4, v15
s_lshl_b32 s34, s29, 13
s_lshl_b32 s46, s28, 9
s_add_u32 s34, s34, s46
s_add_u32 s34, s34, {W_QP}
s_mul_i32 s46, s28, 320
s_add_u32 s46, s46, {L_Q}
v_lshl_add_u32 v17, v16, 3, s46
s_mov_b32 s35, 0
L_qg:
buffer_load_dwordx4 v[24:27], v15, s[36:39], s34 offen sc1
buffer_load_dwordx4 v[28:31], v15, s[36:39], s34 offen offset:256 sc1""")
bound("L_qg", "L_qg_done")
A("s_waitcnt vmcnt(0)")
check(list(range(24, 32)), 32, 33)
A("s_cbranch_vccnz L_qg\nL_qg_done:\ns_waitcnt vmcnt(0)")
stamp('C'); cstamp('C')
untag(range(24, 32))
rowred("v_add_f32", list(range(24, 32)), ("quad_perm:[1,0,3,2]", "quad_perm:[2,3,0,1]"))
for i in range(4): A(f"v_cvt_pk_bf16_f32 v{24+i}, v{24+2*i}, v{25+2*i}")
A("""s_mov_b32 exec_lo, 0x11111111
s_mov_b32 exec_hi, 0x11111111
ds_write_b64 v17, v[24:25]
ds_write_b64 v17, v[26:27] offset:128
s_mov_b64 exec, -1""")
setflag(L_F1)
A(f"""v_and_b32 v15, 7, v1
v_lshlrev_b32 v15, 1, v15
v_xor_b32 v15, v15, v3
v_lshlrev_b32 v15, 4, v15
v_lshl_add_u32 v15, v2, 8, v15
s_lshl_b32 s34, s28, 13
s_add_u32 s34, s34, {L_K}
v_add_u32 v24, s34, v15""")
for s in range(1, 4): A(f"v_xor_b32 v{24+s}, {s*64}, v24")
A(f"""v_and_b32 v28, 3, v2
v_mul_u32_u24 v28, 320, v28
v_lshl_add_u32 v28, v3, 4, v28""")
waitprog(PROG['k'], "L_k")
stamp('C')
for t in range(2):
    for s in range(4):
        r = 56 + 16*t + 4*s
        A(f"ds_read_b128 v[{r}:{r+3}], v{24+s} offset:{t*4096}")
wait4(L_F1, "L_s1")
for s in range(4): A(f"ds_read_b128 v[{40+4*s}:{43+4*s}], v28 offset:{L_Q + 64*s}")
for s in range(4):
    A(f"s_waitcnt lgkmcnt({3-s})")
    for t in range(2):
        r = 56 + 16*t + 4*s
        c = "0" if s == 0 else f"v[{32+4*t}:{35+4*t}]"
        A(f"v_mfma_f32_16x16x32_bf16 v[{32+4*t}:{35+4*t}], v[{r}:{r+3}], v[{40+4*s}:{43+4*s}], {c}")
A(f"s_mov_b32 s34, {SCALE}\ns_mov_b32 s46, {LOG2E}")
for i in range(4): bfr2(32+2*i, 33+2*i)
for i in range(8): A(f"v_mul_f32 v{32+i}, s34, v{32+i}")
for i in range(4): bfr2(32+2*i, 33+2*i)
A("""v_max3_f32 v40, v32, v33, v34
v_max3_f32 v41, v35, v36, v37
v_max3_f32 v40, v40, v38, v39
v_max_f32 v40, v40, v41""")
xrow("v_max_f32", 40, 41)
A("v_mul_f32 v42, s46, v40")
for i in range(8): A(f"v_fma_f32 v{32+i}, v{32+i}, s46, -v42")
for i in range(8): A(f"v_exp_f32 v{32+i}, v{32+i}")
A("""v_add_f32 v41, v32, v33
v_add_f32 v42, v34, v35
v_add_f32 v43, v36, v37
v_add_f32 v44, v38, v39
v_add_f32 v41, v41, v42
v_add_f32 v43, v43, v44
v_add_f32 v41, v41, v43""")
for i in range(4): A(f"v_cvt_pk_bf16_f32 v{32+i}, v{32+2*i}, v{33+2*i}")
xrow("v_add_f32", 41, 42)
A(f"""s_lshl_b32 s34, s28, 10
s_add_u32 s34, s34, {L_P}
v_add_u32 v15, s34, v4
ds_write_b128 v15, v[32:35]
s_lshl_b32 s34, s28, 9
s_add_u32 s34, s34, {L_ST}
v_lshlrev_b32 v17, 3, v1
v_add_u32 v15, s34, v17
ds_write_b64 v15, v[40:41]""")
setflag(L_F2)
A(f"""v_lshrrev_b32 v15, 2, v2
v_lshl_add_u32 v15, v3, 2, v15
v_and_b32 v16, 7, v15
s_lshl_b32 s34, s28, 1
v_xor_b32 v16, s34, v16
v_lshlrev_b32 v16, 5, v16
v_lshl_add_u32 v16, v15, 8, v16
v_and_b32 v15, 3, v2
v_lshl_add_u32 v16, v15, 3, v16
v_add_u32 v24, {L_V}, v16
v_xor_b32 v25, 32, v24
v_add_u32 v26, {L_P}, v4
v_add_u32 v27, {L_ST}, v17""")
wait4(L_F2, "L_s2")
stamp('C')
for w in range(4): A(f"ds_read_b64 v[{32+2*w}:{33+2*w}], v27 offset:{512*w}")
for w in range(4): A(f"ds_read_b128 v[{56+4*w}:{59+4*w}], v26 offset:{1024*w}")
A("s_waitcnt lgkmcnt(4)")
A("""v_max3_f32 v40, v32, v34, v36
v_max_f32 v40, v40, v38
v_mul_f32 v42, s46, v40""")
for w in range(4): A(f"v_fma_f32 v{32+2*w}, v{32+2*w}, s46, -v42")
for w in range(4): A(f"v_exp_f32 v{32+2*w}, v{32+2*w}")
A("v_mul_f32 v41, v32, v33")
for w in range(1, 4): A(f"v_fmac_f32 v41, v{32+2*w}, v{33+2*w}")
A(f"""v_mov_b32 v42, 0
v_mov_b32 v43, 0
s_lshl_b32 s34, s29, 11
s_lshl_b32 s35, s30, 4
s_add_u32 s34, s34, s35
s_add_u32 s34, s34, {W_ML}
v_lshlrev_b32 v15, 9, v2""")
tag(range(40, 44))
A("""s_cmp_lg_u32 s28, 0
s_cbranch_scc1 L_noml
s_mov_b64 exec, 15
buffer_store_dwordx4 v[40:43], v15, s[36:39], s34 offen sc1
s_mov_b64 exec, -1
L_noml:""")
A(f"""v_and_b32 v15, 3, v2
v_lshlrev_b32 v15, 14, v15
v_lshrrev_b32 v16, 2, v2
v_lshl_add_u32 v15, v16, 6, v15
v_lshl_add_u32 v28, v3, 4, v15
s_lshl_b32 s60, s29, 16
s_lshl_b32 s35, s30, 9
s_add_u32 s60, s60, s35
s_lshl_b32 s35, s28, 7
s_add_u32 s60, s60, s35
s_add_u32 s60, s60, {W_OP}
s_mov_b32 s62, 0x00f000f0
s_mov_b32 s63, 0x00f000f0
s_mov_b32 s58, 0x00ff00ff
s_mov_b32 s59, 0x00ff00ff""")
for w in range(4):
    waitprog(PROG[f'v{w}'], f"L_v{w}", 0 if w == 3 else 1)
    if w == 3: stamp('C')
    ar = 72
    for t in range(2):
        A(f"ds_read_b64_tr_b16 v[{ar+4*t}:{ar+4*t+1}], v{24+t} offset:{w*8192}")
        A(f"ds_read_b64_tr_b16 v[{ar+4*t+2}:{ar+4*t+3}], v{24+t} offset:{w*8192+4096}")
    for t in range(2):
        A(f"s_waitcnt lgkmcnt({2-2*t})")
        A(f"v_mfma_f32_16x16x32_bf16 v[{80+4*t}:{83+4*t}], v[{ar+4*t}:{ar+4*t+3}], v[{56+4*w}:{59+4*w}], 0")
    select4(80, [80, 84], ("s[62:63]",))
    for i in range(4):
        if w == 0: A(f"v_mul_f32 v{44+i}, v{80+i}, v32")
        else: A(f"v_fmac_f32 v{44+i}, v{80+i}, v{32+2*w}")
tag(range(44, 48))
A("""s_mov_b64 exec, s[58:59]
buffer_store_dwordx4 v[44:47], v28, s[36:39], s60 offen sc1
s_mov_b64 exec, -1""")
setflag(L_FO)
stamp('C')
A(f"""v_lshlrev_b32 v15, 9, v2
v_lshl_add_u32 v15, v3, 4, v15
v_lshlrev_b32 v16, 4, v2
s_lshl_b32 s34, s33, 14
s_lshl_b32 s35, s28, 7
s_add_u32 s34, s34, s35
s_add_u32 s34, s34, {W_OP}
s_add_u32 s60, s34, 8192
s_lshl_b32 s61, s33, 9
s_add_u32 s61, s61, {W_ML}
s_mov_b32 s35, 0
L_og:
buffer_load_dwordx4 v[48:51], v16, s[36:39], s61 offen sc1
buffer_load_dwordx4 v[52:55], v16, s[36:39], s61 offen offset:256 sc1
buffer_load_dwordx4 v[32:35], v15, s[36:39], s34 offen sc1
buffer_load_dwordx4 v[36:39], v15, s[36:39], s34 offen offset:64 sc1
buffer_load_dwordx4 v[40:43], v15, s[36:39], s60 offen sc1
buffer_load_dwordx4 v[44:47], v15, s[36:39], s60 offen offset:64 sc1""")
bound("L_og", "L_og_done")
A("s_waitcnt vmcnt(0)")
check(list(range(32, 56)), 56, 57)
A("s_cbranch_vccnz L_og\nL_og_done:\ns_waitcnt vmcnt(0)")
stamp('C')
untag([48, 52, 49, 53])
A("v_max_f32 v56, v48, v52")
rowred("v_max_f32", [56])
A("v_mul_f32 v56, s46, v56\nv_fma_f32 v48, v48, s46, -v56\nv_fma_f32 v52, v52, s46, -v56\nv_exp_f32 v48, v48\nv_exp_f32 v52, v52")
untag(range(32, 48))
A("v_mul_f32 v56, v48, v49\nv_fmac_f32 v56, v52, v53")
for i in range(8): A(f"v_mul_f32 v{32+i}, v{32+i}, v48")
for i in range(8): A(f"v_fmac_f32 v{32+i}, v{40+i}, v52")
rowred("v_add_f32", [56] + list(range(32, 40)))
A("v_rcp_f32 v56, v56")
for i in range(8): A(f"v_mul_f32 v{32+i}, v{32+i}, v56")
for i in range(4): A(f"v_cvt_pk_bf16_f32 v{32+i}, v{32+2*i}, v{33+2*i}")
A(f"""s_lshl_b32 s34, s28, 6
s_add_u32 s34, s34, {L_OF}
v_lshlrev_b32 v16, 4, v3
v_add_u32 v15, s34, v16
s_mov_b32 s58, 0x00010001
s_mov_b32 s59, 0x00010001
s_mov_b64 exec, s[58:59]
ds_write_b128 v15, v[32:35]
s_mov_b64 exec, -1""")
A("s_lshl_b32 s34, s28, 5\nv_xor_b32 v17, s34, v10")
waitprog(PROG['wo'], "L_wo", 0)
for s in range(4):
    A(f"ds_read_b64_tr_b16 v[{56+4*s}:{57+4*s}], v17 offset:{L_WO + s*4096}")
    A(f"ds_read_b64_tr_b16 v[{58+4*s}:{59+4*s}], v17 offset:{L_WO + s*4096 + 2048}")
A("s_waitcnt lgkmcnt(8)\ns_barrier")
for s in range(4): A(f"ds_read_b128 v[{40+4*s}:{43+4*s}], v16 offset:{L_OF + 64*s}")
A(f"""s_lshl_b32 s34, s32, 13
s_lshl_b32 s35, s33, 8
s_add_u32 s34, s34, s35
s_lshl_b32 s35, s28, 6
s_add_u32 s34, s34, s35
s_add_u32 s34, s34, {W_SP}""")
for s in range(4):
    A(f"s_waitcnt lgkmcnt({3-s})")
    c = "0" if s == 0 else "v[32:35]"
    A(f"v_mfma_f32_16x16x32_bf16 v[32:35], v[{56+4*s}:{59+4*s}], v[{40+4*s}:{43+4*s}], {c}")
tag(range(32, 36))
A("""s_mov_b64 exec, s[58:59]
buffer_store_dwordx4 v[32:35], v16, s[36:39], s34 offen sc1
s_mov_b64 exec, -1""")
stamp('C')
A("s_cmp_lg_u32 s33, 31\ns_cbranch_scc1 L_fin")
A(f"""v_lshlrev_b32 v15, 8, v2
v_lshl_add_u32 v15, v3, 4, v15
s_lshl_b32 s34, s32, 13
s_lshl_b32 s35, s28, 6
s_add_u32 s34, s34, s35
s_add_u32 s60, s34, {W_GP}
s_add_u32 s61, s60, 4096
s_add_u32 s34, s34, {W_SP}
s_add_u32 s56, s34, 4096
s_lshl_b32 s57, s32, 7
s_lshl_b32 s35, s28, 5
s_add_u32 s57, s57, s35
v_lshlrev_b32 v17, 3, v3
buffer_load_dwordx2 v[20:21], v17, s[40:43], s57 offen
s_mov_b32 s62, 0x0fff0fff
s_mov_b32 s63, 0x0fff0fff
v_mov_b32 v44, v9
v_mov_b32 v45, v9
v_mov_b32 v46, v9
v_mov_b32 v47, v9
s_mov_b32 s35, 0
L_gg:
buffer_load_dwordx4 v[40:43], v15, s[36:39], s60 offen sc1
s_mov_b64 exec, s[62:63]
buffer_load_dwordx4 v[44:47], v15, s[36:39], s61 offen sc1
s_mov_b64 exec, -1""")
bound("L_gg", "L_gg_done")
A("s_waitcnt vmcnt(0)")
check(list(range(40, 48)), 56, 57)
A("s_cbranch_vccnz L_gg\nL_gg_done:\ns_waitcnt vmcnt(0)")
A("""s_mov_b32 s35, 0
buffer_load_dwordx4 v[32:35], v15, s[36:39], s34 offen sc1
buffer_load_dwordx4 v[36:39], v15, s[36:39], s56 offen sc1""")
untag(range(40, 48))
for i in range(4): A(f"v_add_f32 v{40+i}, v{40+i}, v{44+i}")
rowred("v_add_f32", list(range(40, 44)))
bfr2(40, 41); bfr2(42, 43)
for i in range(4): A(f"v_mul_f32 v{44+i}, s46, v{40+i}")
for i in range(4): A(f"v_exp_f32 v{44+i}, -v{44+i}")
for i in range(4): A(f"v_add_f32 v{44+i}, 1.0, v{44+i}")
for i in range(4): A(f"v_rcp_f32 v{44+i}, v{44+i}")
for i in range(4): A(f"v_mul_f32 v{40+i}, v{40+i}, v{44+i}")
bfr2(40, 41); bfr2(42, 43)
A("""v_lshlrev_b32 v44, 16, v20
v_and_b32 v45, 0xffff0000, v20
v_lshlrev_b32 v46, 16, v21
v_and_b32 v47, 0xffff0000, v21
s_branch L_sg_in
L_sg:
buffer_load_dwordx4 v[32:35], v15, s[36:39], s34 offen sc1
buffer_load_dwordx4 v[36:39], v15, s[36:39], s56 offen sc1
L_sg_in:""")
bound("L_sg", "L_sg_done")
A("s_waitcnt vmcnt(0)")
check(list(range(32, 40)), 56, 57)
A("s_cbranch_vccnz L_sg\nL_sg_done:\ns_waitcnt vmcnt(0)")
stamp('C')
untag(range(32, 40))
for i in range(4): A(f"v_add_f32 v{32+i}, v{32+i}, v{36+i}")
rowred("v_add_f32", list(range(32, 36)))
bfr2(32, 33); bfr2(34, 35)
for i in range(4): A(f"v_mul_f32 v{32+i}, v{32+i}, v{40+i}")
bfr2(32, 33); bfr2(34, 35)
for i in range(4): A(f"v_add_f32 v{32+i}, v{32+i}, v{44+i}")
A("v_cvt_pk_bf16_f32 v32, v32, v33\nv_cvt_pk_bf16_f32 v33, v34, v35")
srd(40, 22, 1024)
A("""s_mov_b64 exec, s[58:59]
buffer_store_dwordx2 v[32:33], v17, s[40:43], s57 offen
s_mov_b64 exec, 1
v_mov_b32 v16, s44
v_mov_b32 v18, 0
buffer_store_dword v16, v18, s[36:39], 0 offen sc1
s_mov_b64 exec, -1""")
A("s_branch L_fin")

A("L_ffn:")
stamp_n['F'] = 2
A("s_cmp_ge_u32 s33, 28\ns_cbranch_scc1 L_fin")
layernorm(L_XN1)
A(f"s_lshl_b32 s34, s32, 7\ns_add_u32 s34, s34, {L_XN1}\nv_lshl_add_u32 v15, v3, 3, s34")
for s in range(2): A(f"ds_read2_b64 v[{24+4*s}:{27+4*s}], v15 offset0:{8*s} offset1:{8*s+4}")
waitprog(PROG['gu'], "L_gu")
stamp('F')
gemv(L_G, 2, 24, 32, 64)
gemv(L_U, 2, 24, 48, 96)
A(f"""v_lshlrev_b32 v15, 6, v2
v_lshl_add_u32 v15, v3, 4, v15
s_lshl_b32 s34, s33, 12
s_lshl_b32 s35, s32, 9
s_add_u32 s60, s34, s35
s_add_u32 s60, s60, {W_GU}
s_lshl_b32 s56, s33, 7
s_add_u32 s56, s56, {W_GF}
s_lshl_b32 s35, s32, 2
s_add_u32 s35, s35, s56
v_mov_b32 v16, s44
v_mov_b32 v17, 0""")
select4(32, [32, 36, 40, 44]); select4(48, [48, 52, 56, 60])
tag(list(range(32, 36)) + list(range(48, 52)))
A("""s_mov_b64 exec, s[54:55]
buffer_store_dwordx4 v[32:35], v15, s[36:39], s60 offen sc1
buffer_store_dwordx4 v[48:51], v15, s[36:39], s60 offen offset:256 sc1
s_mov_b64 exec, -1""")
stamp('F')
A("s_waitcnt vmcnt(0)")
if a.qdelay: A(f"s_sleep {a.qdelay}")
stamp('F')
A(f"""v_and_b32 v16, 7, v2
v_lshlrev_b32 v16, 9, v16
v_lshrrev_b32 v17, 3, v2
v_lshl_add_u32 v16, v17, 7, v16
v_lshl_add_u32 v16, v3, 4, v16
s_add_u32 s34, s34, {W_GU}
s_mov_b32 s35, 0
L_gug:
buffer_load_dwordx4 v[32:35], v16, s[36:39], s34 offen sc1
buffer_load_dwordx4 v[36:39], v16, s[36:39], s34 offen offset:64 sc1
buffer_load_dwordx4 v[40:43], v16, s[36:39], s34 offen offset:256 sc1
buffer_load_dwordx4 v[44:47], v16, s[36:39], s34 offen offset:320 sc1""")
bound("L_gug", "L_gug_done")
A("s_waitcnt vmcnt(0)")
check(list(range(32, 48)), 56, 57)
A("s_cbranch_vccnz L_gug\nL_gug_done:\ns_waitcnt vmcnt(0)")
stamp('F'); cstamp('F')
untag(range(32, 48))
rowred("v_add_f32", list(range(32, 48)), ("quad_perm:[1,0,3,2]", "quad_perm:[2,3,0,1]", "row_half_mirror"))
for i in range(8): bfr2(32+2*i, 33+2*i)
import struct, math
def f32(x): return struct.unpack('<I', struct.pack('<f', x))[0]
C1 = f32(-2*math.sqrt(2/math.pi)*math.log2(math.e)); C3 = f32(-2*math.sqrt(2/math.pi)*math.log2(math.e)*0.044715)
A(f"s_mov_b32 s60, {C3}\nv_mov_b32 v18, {C1}")
for i in range(8): A(f"v_mul_f32 v{48+i}, v{32+i}, v{32+i}")
for i in range(8): A(f"v_fma_f32 v{48+i}, v{48+i}, s60, v18")
for i in range(8): A(f"v_mul_f32 v{48+i}, v{48+i}, v{32+i}")
for i in range(8): A(f"v_exp_f32 v{48+i}, v{48+i}")
for i in range(8): A(f"v_add_f32 v{48+i}, 1.0, v{48+i}")
for i in range(8): A(f"v_rcp_f32 v{48+i}, v{48+i}")
for i in range(8): A(f"v_mul_f32 v{32+i}, v{32+i}, v{48+i}")
for i in range(4): bfr2(32+2*i, 33+2*i)
for i in range(8): A(f"v_mul_f32 v{32+i}, v{32+i}, v{40+i}")
for i in range(4): A(f"v_cvt_pk_bf16_f32 v{24+i}, v{32+2*i}, v{33+2*i}")
for i in range(4): A(f"v_mov_b32_dpp v{28+i}, v{24+i} row_ror:8 row_mask:0xf bank_mask:0xf")
waitprog(PROG['dn'], "L_dn")
stamp('F')
gemv(L_DN, 2, 24, 32, 64)
A(f"""v_lshlrev_b32 v15, 6, v2
v_lshl_add_u32 v15, v3, 4, v15
s_lshl_b32 s34, s32, 13
s_lshl_b32 s35, s33, 8
s_add_u32 s34, s34, s35
s_add_u32 s34, s34, {W_GP}""")
select4(32, [32, 36, 40, 44])
tag(range(32, 36))
A("""s_mov_b64 exec, s[54:55]
buffer_store_dwordx4 v[32:35], v15, s[36:39], s34 offen sc1
s_mov_b64 exec, -1""")
stamp('F')

A("L_fin:")
if DIAG:
    A("s_waitcnt vmcnt(0)\ns_memrealtime s[94:95]\ns_waitcnt lgkmcnt(0)\nv_mov_b32 v9, 0")
    for i in range(16): A(f"v_writelane_b32 v9, s{64+2*i}, {i}")
    A("v_lshrrev_b32 v4, 6, v0\nv_readfirstlane_b32 s28, v4")
    A("s_lshl_b32 s34, s28, 8\ns_add_u32 s34, s34, s2\ns_lshl_b32 s34, s34, 6\ns_add_u32 s34, s34, 0x10000000")
    srd(36, 26, 536870912)
    A("v_lshlrev_b32 v10, 2, v1\ns_mov_b64 exec, 0xffff\nbuffer_store_dword v9, v10, s[36:39], s34 offen")
A("L_end:\ns_endpgm")
NV = 128
A('.section .rodata,"a"'); A(".p2align 6"); A(f".amdhsa_kernel {NAME}_kernel")
A(f".amdhsa_next_free_vgpr {NV}\n.amdhsa_next_free_sgpr 102\n.amdhsa_accum_offset {NV}")
A(".amdhsa_group_segment_fixed_size 0\n.amdhsa_kernarg_size 96\n.amdhsa_user_sgpr_count 2")
A(".amdhsa_user_sgpr_kernarg_segment_ptr 1\n.amdhsa_system_sgpr_workgroup_id_x 1\n.end_amdhsa_kernel")
sys.stdout.write("\n".join(hdr) + "\n" + A.text())
```

```python
import sys, argparse
sys.path.insert(0, 'tools')
from asmlib import Asm
NAME = "recurrent_scan__sliding_block_cached__geglu_ffn__decode"
ap = argparse.ArgumentParser()
ap.add_argument("--diag", type=int, default=0)
ap.add_argument("--order", default="wq,g,u,HQ,k,dn,v,HO,wo")
ap.add_argument("--win", type=int, default=32)
ap.add_argument("--nt", type=int, default=1)
ap.add_argument("--psleep", type=int, default=4)
ap.add_argument("--qdelay", type=int, default=0)
ap.add_argument("--thr", type=int, default=0)
ap.add_argument("--spin", type=int, default=20000)
a = ap.parse_args()
DIAG = a.diag
NT = " nt" if a.nt else ""
A = Asm()

L_WQ, L_G, L_U, L_WO, L_DN = 0, 16384, 24576, 32768, 49152
L_PROG = 57344
L_F1 = 57360
L_F2 = 57376
L_FO = 57392
L_FQ = 57408
L_FG = 57412
L_XN0 = 57856; L_XN1 = 58880
L_Q = 59904
L_OF = 61440
L_K = 65536; L_V = 98304
L_P = 131072; L_ST = 135168
LDS_BYTES = 137216
W_QF = 0x1000; W_GF = 0x2000; W_QP = 0x10000; W_GU = 0x20000; W_ML = 0x40000
W_SP = 0x50000; W_GP = 0x60000; W_OP = 0x80000; W_SIZE = 0x100000
TAGM = 0x3ff
LOG2E = 0x3fb8aa3b
SCALE = 0x3db504f3

NWAVES = 6
hdr = [f"; fused decode step: LN -> (q proj, sliding-window GQA attention, out proj) * silu(GEGLU FFN) + x",
       f"; 256 workgroups (one per CU), wave 0 streams every weight / K / V tile into LDS, waves 1-4 attention, wave 5 FFN",
       f"; @launch grid=(256,1,1) block=({NWAVES*64},1,1) lds={LDS_BYTES}"]
A('.amdgcn_target "amdgcn-amd-amdhsa--gfx950"')
A(".text"); A(f".globl {NAME}_kernel"); A(".p2align 8"); A(f".type {NAME}_kernel,@function"); A(f"{NAME}_kernel:")

stamp_n = {}
def stamp(role):
    if not DIAG: return
    k = stamp_n.get(role, 1); stamp_n[role] = k + 1
    assert k < 16
    A(f"s_memrealtime s[{64+2*k}:{65+2*k}]")
def cstamp(role, reg="s35"):
    if not DIAG: return
    k = stamp_n.get(role, 1); stamp_n[role] = k + 1
    A(f"s_waitcnt lgkmcnt(0)\ns_mul_i32 s{64+2*k}, {reg}, 100\ns_add_u32 s{64+2*k}, s{64+2*k}, s64")
def srd(d, p, n):
    A(f"s_mov_b32 s{d}, s{p}\ns_mov_b32 s{d+1}, s{p+1}\ns_mov_b32 s{d+2}, {n}\ns_mov_b32 s{d+3}, 0x20000")

if DIAG: A("s_memrealtime s[64:65]")
A("""s_load_dwordx16 s[4:19], s[0:1], 0
s_load_dwordx8 s[20:27], s[0:1], 64
s_cmp_ge_u32 s2, 256
s_cbranch_scc1 L_end
v_lshrrev_b32 v4, 6, v0
v_and_b32 v1, 63, v0
v_readfirstlane_b32 s28, v4
s_and_b32 s29, s2, 7
s_lshr_b32 s30, s2, 3
s_lshr_b32 s31, s30, 3
s_and_b32 s32, s30, 7
s_lshl_b32 s33, s29, 2
s_add_u32 s33, s33, s31""")
if DIAG:
    for i in range(66, 96): A(f"s_mov_b32 s{i}, 0")
A("""s_cmp_lg_u32 s28, 0
s_cbranch_scc1 L_compute""")

A("""v_lshrrev_b32 v2, 3, v1
v_and_b32 v3, 7, v1
v_lshrrev_b32 v4, 4, v1
v_and_b32 v5, 3, v4
v_lshlrev_b32 v5, 1, v5
v_xor_b32 v5, v5, v3
v_lshlrev_b32 v5, 4, v5
v_lshl_add_u32 v6, v2, 13, v5
v_mul_u32_u24 v7, 3584, v2
v_add_u32 v7, v7, v5
v_lshl_add_u32 v8, v2, 10, v5
v_and_b32 v3, 15, v1
v_lshlrev_b32 v9, 1, v4
v_xor_b32 v9, v9, v3
v_lshlrev_b32 v9, 4, v9
v_lshl_add_u32 v9, v4, 8, v9
v_xor_b32 v10, 0x80, v9""")
A(f"v_mov_b32 v11, {L_PROG}")
A(f"""s_lshl_b32 s40, s31, 20
s_lshl_b32 s34, s29, 10
s_add_u32 s40, s40, s34
s_lshl_b32 s35, s32, 7
s_add_u32 s40, s40, s35
s_mul_i32 s41, s32, {64*3584}
s_lshl_b32 s34, s33, 7
s_add_u32 s41, s41, s34
s_lshl_b32 s42, s29, 24
s_lshl_b32 s34, s30, 15
s_add_u32 s42, s42, s34
s_add_u32 s42, s42, {(65536-4096)*256}
s_lshl_b32 s43, s33, 17
s_add_u32 s43, s43, s35
s_lshl_b32 s44, s33, 16
s_add_u32 s44, s44, s35
s_cmp_ge_u32 s33, 28
s_cselect_b32 s45, 0, 1835008
s_waitcnt lgkmcnt(0)""")
stamp('L')
SEG = {
    'wq': (10, 4194304, 6, 16, 40, 8*8192, L_WQ),
    'g':  (16, 's45', 7, 8, 41, 8*3584, L_G),
    'u':  (18, 's45', 7, 8, 41, 8*3584, L_U),
    'k':  (6, 134217728, None, 32, 42, None, L_K),
    'v':  (8, 134217728, None, 32, 42, None, L_V),
    'wo': (12, 4194304, 8, 16, 43, 8*1024, L_WO),
    'dn': (20, 's45', 8, 8, 44, 8*1024, L_DN),
}
order = a.order.split(',')
PROG = {}
pn = 0
events = []
idx = 0
for o in order:
    if o in ('HQ', 'HO'): continue
    n = SEG[o][3]
    if o == 'v':
        for j in range(4):
            pn += 1; PROG[f'v{j}'] = pn; events.append((idx + 8*j + 7, pn))
    elif o == 'g' and 'u' in order and order.index('u') == order.index('g') + 1:
        pass
    else:
        pn += 1; PROG[o] = pn; events.append((idx + n - 1, pn))
    idx += n
PROG['gu'] = max(PROG.get('g', 0), PROG['u'])
TOTAL = idx
def signal(p):
    A(f"v_mov_b32 v12, {p}\ns_mov_b64 exec, 1\nds_write_b32 v11, v12\ns_mov_b64 exec, -1")
issued = 0
pend = list(events)
barrier_done = False
def flush(upto_win):
    global pend
    while pend and pend[0][0] < issued and (issued - 1 - pend[0][0]) >= upto_win:
        e, p = pend.pop(0)
        A(f"s_waitcnt vmcnt({issued - 1 - e})")
        signal(p); stamp('L')
def ensure_barrier():
    global barrier_done
    if not barrier_done:
        A("s_barrier"); barrier_done = True
srdslot = [48, 52]
for o in order:
    if o in ('HQ', 'HO'):
        ensure_barrier()
        if o == 'HQ':
            while pend and PROG['wq'] in [p for _, p in pend]:
                e, p = pend.pop(0); A(f"s_waitcnt vmcnt({issued - 1 - e})"); signal(p); stamp('L')
            A(f"""L_hq:
s_sleep 1
ds_read_b32 v13, v11 offset:{L_FQ - L_PROG}
s_waitcnt lgkmcnt(0)
v_readfirstlane_b32 s34, v13
s_cmp_eq_u32 s34, 0
s_cbranch_scc1 L_hq""")
        else:
            flush(0)
            A(f"""L_ho:
ds_read_b128 v[16:19], v11 offset:{L_FO - L_PROG}
s_waitcnt lgkmcnt(0)
v_and_b32 v16, v16, v17
v_and_b32 v18, v18, v19
v_and_b32 v16, v16, v18
v_readfirstlane_b32 s34, v16
s_cmp_eq_u32 s34, 0
s_cbranch_scc1 L_ho""")
        stamp('L')
        continue
    ptr, size, voff, n, so, step, lb = SEG[o]
    d = srdslot[0]; srdslot.reverse()
    srd(d, ptr, size)
    A(f"s_mov_b32 s46, s{so}")
    for i in range(n):
        if voff is None:
            if i % 4 == 0:
                A(f"s_mov_b32 m0, {lb + i*1024}")
                if i: A("s_add_u32 s46, s46, 4096")
            off = f" offset:{(i%4)*1024}" if i % 4 else ""
            A(f"buffer_load_dwordx4 v{9 + (i & 1)}, s[{d}:{d+3}], s46 offen{off}{NT} lds")
        else:
            A(f"s_mov_b32 m0, {lb + i*1024}")
            if i: A(f"s_add_u32 s46, s46, {step}")
            A(f"buffer_load_dwordx4 v{voff}, s[{d}:{d+3}], s46 offen{NT} lds")
        issued += 1
        if issued == 32: ensure_barrier()
        if a.thr and issued > a.thr and issued < TOTAL: A(f"s_waitcnt vmcnt({a.thr})")
        if barrier_done: flush(a.win)
ensure_barrier()
flush(0)
A("s_branch L_fin")

A("L_compute:")
A("s_setprio 3")
A("""v_and_b32 v2, 15, v1
v_lshrrev_b32 v3, 4, v1
s_sub_u32 s28, s28, 1
v_lshlrev_b32 v4, 4, v1""")
A("""v_lshrrev_b32 v5, 2, v2
v_lshl_add_u32 v5, v3, 2, v5
v_lshrrev_b32 v6, 1, v5
v_and_b32 v6, 3, v6
v_and_b32 v7, 3, v2
v_lshlrev_b32 v7, 3, v7
v_lshl_add_u32 v7, v5, 7, v7
v_lshl_add_u32 v10, v6, 5, v7""")
for t in range(1, 4): A(f"v_xor_b32 v{10+t}, {t*32}, v10")
A(f"v_mov_b32 v14, {L_PROG}")
A(f"""s_mov_b32 s47, {(~TAGM) & 0xffffffff}
s_mov_b32 s48, 0x22222222
s_mov_b32 s49, 0x22222222
s_mov_b32 s50, 0x44444444
s_mov_b32 s51, 0x44444444
s_mov_b32 s52, 0x88888888
s_mov_b32 s53, 0x88888888
s_mov_b32 s54, 0x000f000f
s_mov_b32 s55, 0x000f000f
s_waitcnt lgkmcnt(0)""")
stamp('C')
srd(36, 26, W_SIZE)
srd(40, 4, 1024)
A("buffer_load_dword v8, off, s[36:39], 0 sc1")
A("buffer_load_dwordx4 v[20:23], v4, s[40:43], 0 offen")
A(f"""s_cmp_lg_u32 s28, 1
s_cbranch_scc1 L_noinit
v_mov_b32 v15, 0
v_lshl_add_u32 v16, v1, 2, v14
ds_write_b32 v16, v15
s_waitcnt lgkmcnt(0)
L_noinit:
s_barrier
s_waitcnt vmcnt(1)
v_readfirstlane_b32 s44, v8
s_add_u32 s44, s44, 1
s_and_b32 s45, s44, {TAGM}
v_mov_b32 v9, s45""")
def waitprog(p, lbl, sleep=1):
    A(f"{lbl}:")
    if sleep: A(f"s_sleep {sleep}")
    A(f"""ds_read_b32 v15, v14
s_waitcnt lgkmcnt(0)
v_readfirstlane_b32 s34, v15
s_cmp_lt_u32 s34, {p}""")
    A(f"s_cbranch_scc1 {lbl}")
def wait1(off, lbl, sleep=1):
    A(f"{lbl}:")
    if sleep: A(f"s_sleep {sleep}")
    A(f"""ds_read_b32 v15, v14 offset:{off - L_PROG}
s_waitcnt lgkmcnt(0)
v_readfirstlane_b32 s34, v15
s_cmp_eq_u32 s34, 0
s_cbranch_scc1 {lbl}""")
def wait4(off, lbl, sleep=0):
    A(f"{lbl}:")
    if sleep: A(f"s_sleep {sleep}")
    A(f"""ds_read_b128 v[16:19], v14 offset:{off - L_PROG}
s_waitcnt lgkmcnt(0)
v_and_b32 v16, v16, v17
v_and_b32 v18, v18, v19
v_and_b32 v16, v16, v18
v_readfirstlane_b32 s34, v16
s_cmp_eq_u32 s34, 0
s_cbranch_scc1 {lbl}""")
def setflag(off, perwave=True):
    if perwave:
        A(f"s_lshl_b32 s34, s28, 2\ns_add_u32 s34, s34, {off}\nv_mov_b32 v15, s34")
    else:
        A(f"v_mov_b32 v15, {off}")
    A("v_mov_b32 v16, 1\ns_mov_b64 exec, 1\nds_write_b32 v15, v16\ns_mov_b64 exec, -1")
def tag(regs):
    for r in regs: A(f"v_add_u32 v{r}, {(TAGM+1)//2}, v{r}")
    for r in regs: A(f"v_and_or_b32 v{r}, v{r}, s47, v9")
def check(regs, acc, tmp):
    ps = [(regs[i], regs[i+1]) for i in range(0, len(regs), 2)]
    first = True
    i = 0
    while i < len(ps):
        if first:
            A(f"v_bitop3_b32 v{acc}, v{ps[i][0]}, v{ps[i][1]}, v9 bitop3:0x7e"); first = False; i += 1
        elif i + 1 < len(ps):
            A(f"v_bitop3_b32 v{tmp}, v{ps[i][0]}, v{ps[i][1]}, v9 bitop3:0x7e")
            A(f"v_bitop3_b32 v{tmp+1}, v{ps[i+1][0]}, v{ps[i+1][1]}, v9 bitop3:0x7e")
            A(f"v_or3_b32 v{acc}, v{acc}, v{tmp}, v{tmp+1}"); i += 2
        else:
            A(f"v_bitop3_b32 v{tmp}, v{ps[i][0]}, v{ps[i][1]}, v9 bitop3:0x7e")
            A(f"v_or_b32 v{acc}, v{acc}, v{tmp}"); i += 1
    A(f"v_and_b32 v{acc}, {TAGM}, v{acc}")
    A(f"v_cmp_ne_u32 vcc, 0, v{acc}")
def untag(regs):
    for r in regs: A(f"v_and_b32 v{r}, s47, v{r}")
def rowred(op, regs, steps=("row_ror:8", "row_ror:4", "row_ror:2", "row_ror:1")):
    for s in steps:
        for r in regs: A(f"{op}_dpp v{r}, v{r}, v{r} {s} row_mask:0xf bank_mask:0xf")
def xrow(op, r, t):
    A(f"v_mov_b32 v{t}, v{r}\nv_permlane16_swap_b32 v{t}, v{r}\n{op} v{r}, v{r}, v{t}")
    A(f"v_mov_b32 v{t}, v{r}\nv_permlane32_swap_b32 v{t}, v{r}\n{op} v{r}, v{r}, v{t}")
def bfr(r, t=None):
    A(f"v_cvt_pk_bf16_f32 v{r}, v{r}, v{r}\nv_lshlrev_b32 v{r}, 16, v{r}")
def bfr2(r0, r1):
    A(f"v_cvt_pk_bf16_f32 v{r1}, v{r0}, v{r1}\nv_lshlrev_b32 v{r0}, 16, v{r1}\nv_and_b32 v{r1}, 0xffff0000, v{r1}")
def select4(dst, srcs, masks=("s[48:49]", "s[50:51]", "s[52:53]")):
    for t in range(1, len(srcs)):
        for i in range(4):
            s0 = srcs[0] + i if t == 1 else dst + i
            A(f"v_cndmask_b32 v{dst+i}, v{s0}, v{srcs[t]+i}, {masks[t-1]}")
def layernorm(lxn):
    A("s_waitcnt vmcnt(0)")
    for i in range(4):
        A(f"v_lshlrev_b32 v{24+2*i}, 16, v{20+i}\nv_and_b32 v{25+2*i}, 0xffff0000, v{20+i}")
    A("""v_add_f32 v32, v24, v25
v_add_f32 v33, v26, v27
v_add_f32 v34, v28, v29
v_add_f32 v35, v30, v31
v_add_f32 v32, v32, v33
v_add_f32 v34, v34, v35
v_add_f32 v32, v32, v34""")
    rowred("v_add_f32", [32]); xrow("v_add_f32", 32, 33)
    A("v_mul_f32 v32, 0x3b000000, v32")
    for i in range(8): A(f"v_sub_f32 v{36+i}, v{24+i}, v32")
    A("v_mul_f32 v33, v36, v36")
    for i in range(1, 8): A(f"v_fmac_f32 v33, v{36+i}, v{36+i}")
    rowred("v_add_f32", [33]); xrow("v_add_f32", 33, 34)
    A("v_mul_f32 v33, 0x3b000000, v33")
    bfr2(32, 33)
    A("v_add_f32 v33, 0x3727c5ac, v33")
    bfr(33)
    A("v_sqrt_f32 v33, v33")
    bfr(33)
    A("v_rcp_f32 v34, v33")
    for i in range(8): A(f"v_sub_f32 v{24+i}, v{24+i}, v32")
    for i in range(4): bfr2(24+2*i, 25+2*i)
    for i in range(8): A(f"v_mul_f32 v{36+i}, v{24+i}, v34")
    for i in range(8): A(f"v_fma_f32 v{24+i}, -v{36+i}, v33, v{24+i}")
    for i in range(8): A(f"v_fmac_f32 v{36+i}, v{24+i}, v34")
    for i in range(4): A(f"v_cvt_pk_bf16_f32 v{24+i}, v{36+2*i}, v{37+2*i}")
    A(f"ds_write_b128 v4, v[24:27] offset:{lxn}")
def bound(lbl_retry, lbl_out, cnt="s35"):
    A(f"s_add_u32 {cnt}, {cnt}, 1\ns_cmp_ge_u32 {cnt}, {a.spin}\ns_cbranch_scc1 {lbl_out}")

A("s_cmp_eq_u32 s28, 4\ns_cbranch_scc1 L_ffn")
A("s_cmp_lg_u32 s28, 0\ns_cbranch_scc1 L_attn")
layernorm(L_XN0)
A(f"s_lshl_b32 s34, s31, 8\ns_add_u32 s34, s34, {L_XN0}\nv_lshl_add_u32 v15, v3, 3, s34")
for s in range(4): A(f"ds_read2_b64 v[{24+4*s}:{27+4*s}], v15 offset0:{8*s} offset1:{8*s+4}")
stamp('C')
waitprog(PROG['wq'], "L_wq")
stamp('C')
def gemv(base, nsteps, bfrag, acc, areg):
    k = 0
    for s in range(nsteps):
        for t in range(4):
            r = areg + 4*k
            A(f"ds_read_b64_tr_b16 v[{r}:{r+1}], v{10+t} offset:{base + s*4096}")
            A(f"ds_read_b64_tr_b16 v[{r+2}:{r+3}], v{10+t} offset:{base + s*4096 + 2048}")
            k += 1
    k = 0; n = nsteps*4
    for s in range(nsteps):
        for t in range(4):
            r = areg + 4*k
            A(f"s_waitcnt lgkmcnt({min(15, 2*(n-1-k))})")
            c = "0" if s == 0 else f"v[{acc+4*t}:{acc+4*t+3}]"
            A(f"v_mfma_f32_16x16x32_bf16 v[{acc+4*t}:{acc+4*t+3}], v[{r}:{r+3}], v[{bfrag+4*s}:{bfrag+4*s+3}], {c}")
            k += 1
gemv(L_WQ, 4, 24, 40, 56)
A(f"""v_lshlrev_b32 v15, 6, v2
v_lshl_add_u32 v15, v3, 4, v15
s_lshl_b32 s34, s33, 11
s_lshl_b32 s35, s32, 8
s_add_u32 s34, s34, s35
s_add_u32 s34, s34, {W_QP}
s_lshl_b32 s35, s29, 8
s_lshl_b32 s46, s30, 2
s_add_u32 s35, s35, s46
s_add_u32 s35, s35, {W_QF}
v_mov_b32 v16, s44
v_mov_b32 v17, 0""")
select4(40, [40, 44, 48, 52])
tag(range(40, 44))
A("""s_mov_b64 exec, s[54:55]
buffer_store_dwordx4 v[40:43], v15, s[36:39], s34 offen sc1
s_mov_b64 exec, -1""")
setflag(L_FQ, perwave=False)
stamp('C')

A("s_waitcnt vmcnt(0)")
if a.qdelay: A(f"s_sleep {a.qdelay}")
setflag(L_FG, perwave=False)
A("s_branch L_attn2")
A("L_attn:")
wait1(L_FG, "L_fg", 2)
A("L_attn2:")
stamp('C')
A(f"""v_and_b32 v15, 3, v1
v_lshlrev_b32 v15, 11, v15
v_lshrrev_b32 v16, 2, v1
v_lshl_add_u32 v15, v16, 4, v15
s_lshl_b32 s34, s29, 13
s_lshl_b32 s46, s28, 9
s_add_u32 s34, s34, s46
s_add_u32 s34, s34, {W_QP}
s_mul_i32 s46, s28, 320
s_add_u32 s46, s46, {L_Q}
v_lshl_add_u32 v17, v16, 3, s46
s_mov_b32 s35, 0
L_qg:
buffer_load_dwordx4 v[24:27], v15, s[36:39], s34 offen sc1
buffer_load_dwordx4 v[28:31], v15, s[36:39], s34 offen offset:256 sc1""")
bound("L_qg", "L_qg_done")
A("s_waitcnt vmcnt(0)")
check(list(range(24, 32)), 32, 33)
A("s_cbranch_vccnz L_qg\nL_qg_done:\ns_waitcnt vmcnt(0)")
stamp('C'); cstamp('C')
untag(range(24, 32))
rowred("v_add_f32", list(range(24, 32)), ("quad_perm:[1,0,3,2]", "quad_perm:[2,3,0,1]"))
for i in range(4): A(f"v_cvt_pk_bf16_f32 v{24+i}, v{24+2*i}, v{25+2*i}")
A("""s_mov_b32 exec_lo, 0x11111111
s_mov_b32 exec_hi, 0x11111111
ds_write_b64 v17, v[24:25]
ds_write_b64 v17, v[26:27] offset:128
s_mov_b64 exec, -1""")
setflag(L_F1)
A(f"""v_and_b32 v15, 7, v1
v_lshlrev_b32 v15, 1, v15
v_xor_b32 v15, v15, v3
v_lshlrev_b32 v15, 4, v15
v_lshl_add_u32 v15, v2, 8, v15
s_lshl_b32 s34, s28, 13
s_add_u32 s34, s34, {L_K}
v_add_u32 v24, s34, v15""")
for s in range(1, 4): A(f"v_xor_b32 v{24+s}, {s*64}, v24")
A(f"""v_and_b32 v28, 3, v2
v_mul_u32_u24 v28, 320, v28
v_lshl_add_u32 v28, v3, 4, v28""")
waitprog(PROG['k'], "L_k")
stamp('C')
for t in range(2):
    for s in range(4):
        r = 56 + 16*t + 4*s
        A(f"ds_read_b128 v[{r}:{r+3}], v{24+s} offset:{t*4096}")
wait4(L_F1, "L_s1")
for s in range(4): A(f"ds_read_b128 v[{40+4*s}:{43+4*s}], v28 offset:{L_Q + 64*s}")
for s in range(4):
    A(f"s_waitcnt lgkmcnt({3-s})")
    for t in range(2):
        r = 56 + 16*t + 4*s
        c = "0" if s == 0 else f"v[{32+4*t}:{35+4*t}]"
        A(f"v_mfma_f32_16x16x32_bf16 v[{32+4*t}:{35+4*t}], v[{r}:{r+3}], v[{40+4*s}:{43+4*s}], {c}")
A(f"s_mov_b32 s34, {SCALE}\ns_mov_b32 s46, {LOG2E}")
for i in range(4): bfr2(32+2*i, 33+2*i)
for i in range(8): A(f"v_mul_f32 v{32+i}, s34, v{32+i}")
for i in range(4): bfr2(32+2*i, 33+2*i)
A("""v_max3_f32 v40, v32, v33, v34
v_max3_f32 v41, v35, v36, v37
v_max3_f32 v40, v40, v38, v39
v_max_f32 v40, v40, v41""")
xrow("v_max_f32", 40, 41)
A("v_mul_f32 v42, s46, v40")
for i in range(8): A(f"v_fma_f32 v{32+i}, v{32+i}, s46, -v42")
for i in range(8): A(f"v_exp_f32 v{32+i}, v{32+i}")
A("""v_add_f32 v41, v32, v33
v_add_f32 v42, v34, v35
v_add_f32 v43, v36, v37
v_add_f32 v44, v38, v39
v_add_f32 v41, v41, v42
v_add_f32 v43, v43, v44
v_add_f32 v41, v41, v43""")
for i in range(4): A(f"v_cvt_pk_bf16_f32 v{32+i}, v{32+2*i}, v{33+2*i}")
xrow("v_add_f32", 41, 42)
A(f"""s_lshl_b32 s34, s28, 10
s_add_u32 s34, s34, {L_P}
v_add_u32 v15, s34, v4
ds_write_b128 v15, v[32:35]
s_lshl_b32 s34, s28, 9
s_add_u32 s34, s34, {L_ST}
v_lshlrev_b32 v17, 3, v1
v_add_u32 v15, s34, v17
ds_write_b64 v15, v[40:41]""")
setflag(L_F2)
A(f"""v_lshrrev_b32 v15, 2, v2
v_lshl_add_u32 v15, v3, 2, v15
v_and_b32 v16, 7, v15
s_lshl_b32 s34, s28, 1
v_xor_b32 v16, s34, v16
v_lshlrev_b32 v16, 5, v16
v_lshl_add_u32 v16, v15, 8, v16
v_and_b32 v15, 3, v2
v_lshl_add_u32 v16, v15, 3, v16
v_add_u32 v24, {L_V}, v16
v_xor_b32 v25, 32, v24
v_add_u32 v26, {L_P}, v4
v_add_u32 v27, {L_ST}, v17""")
wait4(L_F2, "L_s2")
stamp('C')
for w in range(4): A(f"ds_read_b64 v[{32+2*w}:{33+2*w}], v27 offset:{512*w}")
for w in range(4): A(f"ds_read_b128 v[{56+4*w}:{59+4*w}], v26 offset:{1024*w}")
A("s_waitcnt lgkmcnt(4)")
A("""v_max3_f32 v40, v32, v34, v36
v_max_f32 v40, v40, v38
v_mul_f32 v42, s46, v40""")
for w in range(4): A(f"v_fma_f32 v{32+2*w}, v{32+2*w}, s46, -v42")
for w in range(4): A(f"v_exp_f32 v{32+2*w}, v{32+2*w}")
A("v_mul_f32 v41, v32, v33")
for w in range(1, 4): A(f"v_fmac_f32 v41, v{32+2*w}, v{33+2*w}")
A(f"""v_mov_b32 v42, 0
v_mov_b32 v43, 0
s_lshl_b32 s34, s29, 11
s_lshl_b32 s35, s30, 4
s_add_u32 s34, s34, s35
s_add_u32 s34, s34, {W_ML}
v_lshlrev_b32 v15, 9, v2""")
tag(range(40, 44))
A("""s_cmp_lg_u32 s28, 0
s_cbranch_scc1 L_noml
s_mov_b64 exec, 15
buffer_store_dwordx4 v[40:43], v15, s[36:39], s34 offen sc1
s_mov_b64 exec, -1
L_noml:""")
A(f"""v_and_b32 v15, 3, v2
v_lshlrev_b32 v15, 14, v15
v_lshrrev_b32 v16, 2, v2
v_lshl_add_u32 v15, v16, 6, v15
v_lshl_add_u32 v28, v3, 4, v15
s_lshl_b32 s60, s29, 16
s_lshl_b32 s35, s30, 9
s_add_u32 s60, s60, s35
s_lshl_b32 s35, s28, 7
s_add_u32 s60, s60, s35
s_add_u32 s60, s60, {W_OP}
s_mov_b32 s62, 0x00f000f0
s_mov_b32 s63, 0x00f000f0
s_mov_b32 s58, 0x00ff00ff
s_mov_b32 s59, 0x00ff00ff""")
for w in range(4):
    waitprog(PROG[f'v{w}'], f"L_v{w}", 0 if w == 3 else 1)
    if w == 3: stamp('C')
    ar = 72
    for t in range(2):
        A(f"ds_read_b64_tr_b16 v[{ar+4*t}:{ar+4*t+1}], v{24+t} offset:{w*8192}")
        A(f"ds_read_b64_tr_b16 v[{ar+4*t+2}:{ar+4*t+3}], v{24+t} offset:{w*8192+4096}")
    for t in range(2):
        A(f"s_waitcnt lgkmcnt({2-2*t})")
        A(f"v_mfma_f32_16x16x32_bf16 v[{80+4*t}:{83+4*t}], v[{ar+4*t}:{ar+4*t+3}], v[{56+4*w}:{59+4*w}], 0")
    select4(80, [80, 84], ("s[62:63]",))
    for i in range(4):
        if w == 0: A(f"v_mul_f32 v{44+i}, v{80+i}, v32")
        else: A(f"v_fmac_f32 v{44+i}, v{80+i}, v{32+2*w}")
tag(range(44, 48))
A("""s_mov_b64 exec, s[58:59]
buffer_store_dwordx4 v[44:47], v28, s[36:39], s60 offen sc1
s_mov_b64 exec, -1""")
setflag(L_FO)
stamp('C')
A(f"""v_lshlrev_b32 v15, 9, v2
v_lshl_add_u32 v15, v3, 4, v15
v_lshlrev_b32 v16, 4, v2
s_lshl_b32 s34, s33, 14
s_lshl_b32 s35, s28, 7
s_add_u32 s34, s34, s35
s_add_u32 s34, s34, {W_OP}
s_add_u32 s60, s34, 8192
s_lshl_b32 s61, s33, 9
s_add_u32 s61, s61, {W_ML}
s_mov_b32 s35, 0
L_og:
buffer_load_dwordx4 v[48:51], v16, s[36:39], s61 offen sc1
buffer_load_dwordx4 v[52:55], v16, s[36:39], s61 offen offset:256 sc1
buffer_load_dwordx4 v[32:35], v15, s[36:39], s34 offen sc1
buffer_load_dwordx4 v[36:39], v15, s[36:39], s34 offen offset:64 sc1
buffer_load_dwordx4 v[40:43], v15, s[36:39], s60 offen sc1
buffer_load_dwordx4 v[44:47], v15, s[36:39], s60 offen offset:64 sc1""")
bound("L_og", "L_og_done")
A("s_waitcnt vmcnt(0)")
check(list(range(32, 56)), 56, 57)
A("s_cbranch_vccnz L_og\nL_og_done:\ns_waitcnt vmcnt(0)")
stamp('C')
untag([48, 52, 49, 53])
A("v_max_f32 v56, v48, v52")
rowred("v_max_f32", [56])
A("v_mul_f32 v56, s46, v56\nv_fma_f32 v48, v48, s46, -v56\nv_fma_f32 v52, v52, s46, -v56\nv_exp_f32 v48, v48\nv_exp_f32 v52, v52")
untag(range(32, 48))
A("v_mul_f32 v56, v48, v49\nv_fmac_f32 v56, v52, v53")
for i in range(8): A(f"v_mul_f32 v{32+i}, v{32+i}, v48")
for i in range(8): A(f"v_fmac_f32 v{32+i}, v{40+i}, v52")
rowred("v_add_f32", [56] + list(range(32, 40)))
A("v_rcp_f32 v56, v56")
for i in range(8): A(f"v_mul_f32 v{32+i}, v{32+i}, v56")
for i in range(4): A(f"v_cvt_pk_bf16_f32 v{32+i}, v{32+2*i}, v{33+2*i}")
A(f"""s_lshl_b32 s34, s28, 6
s_add_u32 s34, s34, {L_OF}
v_lshlrev_b32 v16, 4, v3
v_add_u32 v15, s34, v16
s_mov_b32 s58, 0x00010001
s_mov_b32 s59, 0x00010001
s_mov_b64 exec, s[58:59]
ds_write_b128 v15, v[32:35]
s_mov_b64 exec, -1""")
A("s_lshl_b32 s34, s28, 5\nv_xor_b32 v17, s34, v10")
waitprog(PROG['wo'], "L_wo", 0)
for s in range(4):
    A(f"ds_read_b64_tr_b16 v[{56+4*s}:{57+4*s}], v17 offset:{L_WO + s*4096}")
    A(f"ds_read_b64_tr_b16 v[{58+4*s}:{59+4*s}], v17 offset:{L_WO + s*4096 + 2048}")
A("s_waitcnt lgkmcnt(8)\ns_barrier")
for s in range(4): A(f"ds_read_b128 v[{40+4*s}:{43+4*s}], v16 offset:{L_OF + 64*s}")
A(f"""s_lshl_b32 s34, s32, 13
s_lshl_b32 s35, s33, 8
s_add_u32 s34, s34, s35
s_lshl_b32 s35, s28, 6
s_add_u32 s34, s34, s35
s_add_u32 s34, s34, {W_SP}""")
for s in range(4):
    A(f"s_waitcnt lgkmcnt({3-s})")
    c = "0" if s == 0 else "v[32:35]"
    A(f"v_mfma_f32_16x16x32_bf16 v[32:35], v[{56+4*s}:{59+4*s}], v[{40+4*s}:{43+4*s}], {c}")
tag(range(32, 36))
A("""s_mov_b64 exec, s[58:59]
buffer_store_dwordx4 v[32:35], v16, s[36:39], s34 offen sc1
s_mov_b64 exec, -1""")
stamp('C')
A("s_cmp_lg_u32 s33, 31\ns_cbranch_scc1 L_fin")
A(f"""v_lshlrev_b32 v15, 8, v2
v_lshl_add_u32 v15, v3, 4, v15
s_lshl_b32 s34, s32, 13
s_lshl_b32 s35, s28, 6
s_add_u32 s34, s34, s35
s_add_u32 s60, s34, {W_GP}
s_add_u32 s61, s60, 4096
s_add_u32 s34, s34, {W_SP}
s_add_u32 s56, s34, 4096
s_lshl_b32 s57, s32, 7
s_lshl_b32 s35, s28, 5
s_add_u32 s57, s57, s35
v_lshlrev_b32 v17, 3, v3
buffer_load_dwordx2 v[20:21], v17, s[40:43], s57 offen
s_mov_b32 s62, 0x0fff0fff
s_mov_b32 s63, 0x0fff0fff
v_mov_b32 v44, v9
v_mov_b32 v45, v9
v_mov_b32 v46, v9
v_mov_b32 v47, v9
s_mov_b32 s35, 0
L_gg:
buffer_load_dwordx4 v[40:43], v15, s[36:39], s60 offen sc1
s_mov_b64 exec, s[62:63]
buffer_load_dwordx4 v[44:47], v15, s[36:39], s61 offen sc1
s_mov_b64 exec, -1""")
bound("L_gg", "L_gg_done")
A("s_waitcnt vmcnt(0)")
check(list(range(40, 48)), 56, 57)
A("s_cbranch_vccnz L_gg\nL_gg_done:\ns_waitcnt vmcnt(0)")
A("""s_mov_b32 s35, 0
buffer_load_dwordx4 v[32:35], v15, s[36:39], s34 offen sc1
buffer_load_dwordx4 v[36:39], v15, s[36:39], s56 offen sc1""")
untag(range(40, 48))
for i in range(4): A(f"v_add_f32 v{40+i}, v{40+i}, v{44+i}")
rowred("v_add_f32", list(range(40, 44)))
bfr2(40, 41); bfr2(42, 43)
for i in range(4): A(f"v_mul_f32 v{44+i}, s46, v{40+i}")
for i in range(4): A(f"v_exp_f32 v{44+i}, -v{44+i}")
for i in range(4): A(f"v_add_f32 v{44+i}, 1.0, v{44+i}")
for i in range(4): A(f"v_rcp_f32 v{44+i}, v{44+i}")
for i in range(4): A(f"v_mul_f32 v{40+i}, v{40+i}, v{44+i}")
bfr2(40, 41); bfr2(42, 43)
A("""v_lshlrev_b32 v44, 16, v20
v_and_b32 v45, 0xffff0000, v20
v_lshlrev_b32 v46, 16, v21
v_and_b32 v47, 0xffff0000, v21
s_branch L_sg_in
L_sg:
buffer_load_dwordx4 v[32:35], v15, s[36:39], s34 offen sc1
buffer_load_dwordx4 v[36:39], v15, s[36:39], s56 offen sc1
L_sg_in:""")
bound("L_sg", "L_sg_done")
A("s_waitcnt vmcnt(0)")
check(list(range(32, 40)), 56, 57)
A("s_cbranch_vccnz L_sg\nL_sg_done:\ns_waitcnt vmcnt(0)")
stamp('C')
untag(range(32, 40))
for i in range(4): A(f"v_add_f32 v{32+i}, v{32+i}, v{36+i}")
rowred("v_add_f32", list(range(32, 36)))
bfr2(32, 33); bfr2(34, 35)
for i in range(4): A(f"v_mul_f32 v{32+i}, v{32+i}, v{40+i}")
bfr2(32, 33); bfr2(34, 35)
for i in range(4): A(f"v_add_f32 v{32+i}, v{32+i}, v{44+i}")
A("v_cvt_pk_bf16_f32 v32, v32, v33\nv_cvt_pk_bf16_f32 v33, v34, v35")
srd(40, 22, 1024)
A("""s_mov_b64 exec, s[58:59]
buffer_store_dwordx2 v[32:33], v17, s[40:43], s57 offen
s_mov_b64 exec, 1
v_mov_b32 v16, s44
v_mov_b32 v18, 0
buffer_store_dword v16, v18, s[36:39], 0 offen sc1
s_mov_b64 exec, -1""")
A("s_branch L_fin")

A("L_ffn:")
stamp_n['F'] = 2
A("s_cmp_ge_u32 s33, 28\ns_cbranch_scc1 L_fin")
layernorm(L_XN1)
A(f"s_lshl_b32 s34, s32, 7\ns_add_u32 s34, s34, {L_XN1}\nv_lshl_add_u32 v15, v3, 3, s34")
for s in range(2): A(f"ds_read2_b64 v[{24+4*s}:{27+4*s}], v15 offset0:{8*s} offset1:{8*s+4}")
waitprog(PROG['gu'], "L_gu")
stamp('F')
gemv(L_G, 2, 24, 32, 64)
gemv(L_U, 2, 24, 48, 96)
A(f"""v_lshlrev_b32 v15, 6, v2
v_lshl_add_u32 v15, v3, 4, v15
s_lshl_b32 s34, s33, 12
s_lshl_b32 s35, s32, 9
s_add_u32 s60, s34, s35
s_add_u32 s60, s60, {W_GU}
s_lshl_b32 s56, s33, 7
s_add_u32 s56, s56, {W_GF}
s_lshl_b32 s35, s32, 2
s_add_u32 s35, s35, s56
v_mov_b32 v16, s44
v_mov_b32 v17, 0""")
select4(32, [32, 36, 40, 44]); select4(48, [48, 52, 56, 60])
tag(list(range(32, 36)) + list(range(48, 52)))
A("""s_mov_b64 exec, s[54:55]
buffer_store_dwordx4 v[32:35], v15, s[36:39], s60 offen sc1
buffer_store_dwordx4 v[48:51], v15, s[36:39], s60 offen offset:256 sc1
s_mov_b64 exec, -1""")
stamp('F')
A("s_waitcnt vmcnt(0)")
if a.qdelay: A(f"s_sleep {a.qdelay}")
stamp('F')
A(f"""v_and_b32 v16, 7, v2
v_lshlrev_b32 v16, 9, v16
v_lshrrev_b32 v17, 3, v2
v_lshl_add_u32 v16, v17, 7, v16
v_lshl_add_u32 v16, v3, 4, v16
s_add_u32 s34, s34, {W_GU}
s_mov_b32 s35, 0
L_gug:
buffer_load_dwordx4 v[32:35], v16, s[36:39], s34 offen sc1
buffer_load_dwordx4 v[36:39], v16, s[36:39], s34 offen offset:64 sc1
buffer_load_dwordx4 v[40:43], v16, s[36:39], s34 offen offset:256 sc1
buffer_load_dwordx4 v[44:47], v16, s[36:39], s34 offen offset:320 sc1""")
bound("L_gug", "L_gug_done")
A("s_waitcnt vmcnt(0)")
check(list(range(32, 48)), 56, 57)
A("s_cbranch_vccnz L_gug\nL_gug_done:\ns_waitcnt vmcnt(0)")
stamp('F'); cstamp('F')
untag(range(32, 48))
rowred("v_add_f32", list(range(32, 48)), ("quad_perm:[1,0,3,2]", "quad_perm:[2,3,0,1]", "row_half_mirror"))
for i in range(8): bfr2(32+2*i, 33+2*i)
import struct, math
def f32(x): return struct.unpack('<I', struct.pack('<f', x))[0]
C1 = f32(-2*math.sqrt(2/math.pi)*math.log2(math.e)); C3 = f32(-2*math.sqrt(2/math.pi)*math.log2(math.e)*0.044715)
A(f"s_mov_b32 s60, {C3}\nv_mov_b32 v18, {C1}")
for i in range(8): A(f"v_mul_f32 v{48+i}, v{32+i}, v{32+i}")
for i in range(8): A(f"v_fma_f32 v{48+i}, v{48+i}, s60, v18")
for i in range(8): A(f"v_mul_f32 v{48+i}, v{48+i}, v{32+i}")
for i in range(8): A(f"v_exp_f32 v{48+i}, v{48+i}")
for i in range(8): A(f"v_add_f32 v{48+i}, 1.0, v{48+i}")
for i in range(8): A(f"v_rcp_f32 v{48+i}, v{48+i}")
for i in range(8): A(f"v_mul_f32 v{32+i}, v{32+i}, v{48+i}")
for i in range(4): bfr2(32+2*i, 33+2*i)
for i in range(8): A(f"v_mul_f32 v{32+i}, v{32+i}, v{40+i}")
for i in range(4): A(f"v_cvt_pk_bf16_f32 v{24+i}, v{32+2*i}, v{33+2*i}")
for i in range(4): A(f"v_mov_b32_dpp v{28+i}, v{24+i} row_ror:8 row_mask:0xf bank_mask:0xf")
waitprog(PROG['dn'], "L_dn")
stamp('F')
gemv(L_DN, 2, 24, 32, 64)
A(f"""v_lshlrev_b32 v15, 6, v2
v_lshl_add_u32 v15, v3, 4, v15
s_lshl_b32 s34, s32, 13
s_lshl_b32 s35, s33, 8
s_add_u32 s34, s34, s35
s_add_u32 s34, s34, {W_GP}""")
select4(32, [32, 36, 40, 44])
tag(range(32, 36))
A("""s_mov_b64 exec, s[54:55]
buffer_store_dwordx4 v[32:35], v15, s[36:39], s34 offen sc1
s_mov_b64 exec, -1""")
stamp('F')

A("L_fin:")
if DIAG:
    A("s_waitcnt vmcnt(0)\ns_memrealtime s[94:95]\ns_waitcnt lgkmcnt(0)\nv_mov_b32 v9, 0")
    for i in range(16): A(f"v_writelane_b32 v9, s{64+2*i}, {i}")
    A("v_lshrrev_b32 v4, 6, v0\nv_readfirstlane_b32 s28, v4")
    if DIAG >= 2:
        A(f"s_cmp_lg_u32 s28, {DIAG-2}\ns_cbranch_scc1 L_end")
        A("s_not_b32 s34, s64\nv_writelane_b32 v9, s34, 0")
        srd(36, 24, 256)
        A("v_lshlrev_b32 v10, 2, v1\ns_mov_b64 exec, 0xffff\nbuffer_atomic_umax v9, v10, s[36:39], 0 offen\ns_endpgm")
    A("s_lshl_b32 s34, s28, 8\ns_add_u32 s34, s34, s2\ns_lshl_b32 s34, s34, 6\ns_add_u32 s34, s34, 0x10000000")
    srd(36, 26, 536870912)
    A("v_lshlrev_b32 v10, 2, v1\ns_mov_b64 exec, 0xffff\nbuffer_store_dword v9, v10, s[36:39], s34 offen")
A("L_end:\ns_endpgm")
NV = 128
A('.section .rodata,"a"'); A(".p2align 6"); A(f".amdhsa_kernel {NAME}_kernel")
A(f".amdhsa_next_free_vgpr {NV}\n.amdhsa_next_free_sgpr 102\n.amdhsa_accum_offset {NV}")
A(".amdhsa_group_segment_fixed_size 0\n.amdhsa_kernarg_size 96\n.amdhsa_user_sgpr_count 2")
A(".amdhsa_user_sgpr_kernarg_segment_ptr 1\n.amdhsa_system_sgpr_workgroup_id_x 1\n.end_amdhsa_kernel")
sys.stdout.write("\n".join(hdr) + "\n" + A.text())
```

```python
import sys, argparse, struct, math
sys.path.insert(0, 'tools')
from asmlib import Asm
NAME = "recurrent_scan__sliding_block_cached__geglu_ffn__decode"
ap = argparse.ArgumentParser()
ap.add_argument("--diag", type=int, default=0)
ap.add_argument("--order", default="wq,g,u,HQ,k,dn,wo,v")
ap.add_argument("--win", type=int, default=32)
ap.add_argument("--nt", type=int, default=1)
ap.add_argument("--thr", type=int, default=0)
ap.add_argument("--fast", type=int, default=1)
ap.add_argument("--qdelay", type=int, default=0)
ap.add_argument("--pfcode", type=int, default=1)
ap.add_argument("--warm", type=int, default=1)
ap.add_argument("--tlb", type=int, default=1)
ap.add_argument("--spin", type=int, default=20000)
a = ap.parse_args()
DIAG = a.diag
NT = " nt" if a.nt else ""
A = Asm()
def f32(x): return struct.unpack('<I', struct.pack('<f', x))[0]

L_WQ, L_G, L_U, L_WO, L_DN = 0, 16384, 24576, 32768, 49152
L_PROG = 57344
L_F1 = 57360
L_F2 = 57376
L_FO = 57392
L_FQ = 57408
L_FM = 57424
L_OF = 57600
L_Q = 57856
L_XN = 59392
L_K = 65536; L_V = 98304
L_P = 131072
L_MX = 135168
L_SU = 136192
LDS_BYTES = 137216
W_XC = 0x2000; W_QP = 0x10000; W_GU = 0x20000; W_ML = 0x40000
W_SP = 0x50000; W_GP = 0x60000; W_OP = 0x80000; W_SIZE = 0x100000
TAGM = 0x3ff
LOG2E = 0x3fb8aa3b
SCALE = 0x3db504f3
DPPM = "row_mask:0xf bank_mask:0xf"

NWAVES = 6
hdr = [f"; fused decode step: LN -> (q proj, sliding-window GQA attention, out proj) * silu(GEGLU FFN) + x",
       f"; 256 workgroups (one per CU): wave 0 streams every weight / K / V tile into LDS, waves 1-4 attention,",
       f"; wave 5 FFN or output finaliser; partial results travel through d_ws as self-tagged 16-byte granules",
       f"; @launch grid=(256,1,1) block=({NWAVES*64},1,1) lds={LDS_BYTES}"]
A('.amdgcn_target "amdgcn-amd-amdhsa--gfx950"')
A(".text"); A(f".globl {NAME}_kernel"); A(".p2align 8"); A(f".type {NAME}_kernel,@function"); A(f"{NAME}_kernel:")

stamp_n = {}
def stamp(role):
    if not DIAG: return
    k = stamp_n.get(role, 1); stamp_n[role] = k + 1
    assert k < 15
    A(f"s_memrealtime s[{64+2*k}:{65+2*k}]")
def cstamp(role, reg="s35"):
    if not DIAG: return
    k = stamp_n.get(role, 1); stamp_n[role] = k + 1
    assert k < 15
    A(f"s_waitcnt lgkmcnt(0)\ns_mul_i32 s{64+2*k}, {reg}, 100\ns_add_u32 s{64+2*k}, s{64+2*k}, s64")
def srd(d, p, n):
    A(f"s_mov_b32 s{d}, s{p}\ns_mov_b32 s{d+1}, s{p+1}\ns_mov_b32 s{d+2}, {n}\ns_mov_b32 s{d+3}, 0x20000")


if DIAG: A("s_memrealtime s[64:65]")
A("""s_load_dwordx16 s[4:19], s[0:1], 0
s_load_dwordx8 s[20:27], s[0:1], 64
v_lshrrev_b32 v4, 6, v0
v_and_b32 v1, 63, v0
v_readfirstlane_b32 s28, v4
s_cmp_ge_u32 s2, 256
s_cbranch_scc1 L_end
s_and_b32 s29, s2, 7
s_lshr_b32 s30, s2, 3
s_lshr_b32 s31, s30, 3
s_and_b32 s32, s30, 7
v_lshrrev_b32 v3, 4, v1
s_cmp_lg_u32 s28, 0
s_cbranch_scc1 L_compute""")
A(f"""v_lshrrev_b32 v2, 3, v1
v_and_b32 v5, 7, v1
v_lshlrev_b32 v6, 1, v3
v_xor_b32 v5, v6, v5
v_lshlrev_b32 v5, 4, v5
v_lshl_add_u32 v20, v2, 13, v5
v_mov_b32 v21, v20
s_lshl_b32 s46, s31, 20
s_lshl_b32 s34, s29, 10
s_add_u32 s46, s46, s34
s_lshl_b32 s35, s32, 7
s_add_u32 s46, s46, s35
s_mov_b32 s50, 4194304
s_mov_b32 s51, 0x20000
s_mov_b32 s52, {8*8192-1024}
s_mov_b32 s53, {8*8192+3072}
s_movk_i32 s55, 0x1000
s_mov_b32 m0, {L_WQ}
s_branch L_ld_start
L_quads:
buffer_load_dwordx4 v20, s[48:51], s46 offen{NT} lds
s_add_u32 s46, s46, s52
buffer_load_dwordx4 v21, s[48:51], s46 offen offset:1024{NT} lds
s_add_u32 s46, s46, s52
buffer_load_dwordx4 v20, s[48:51], s46 offen offset:2048{NT} lds
s_add_u32 s46, s46, s52
buffer_load_dwordx4 v21, s[48:51], s46 offen offset:3072{NT} lds
s_add_u32 s46, s46, s53
s_add_u32 m0, m0, s55""")
if a.thr: A(f"s_waitcnt vmcnt({a.thr})")
A("""s_sub_u32 s54, s54, 1
s_cbranch_scc0 L_quads
s_setpc_b64 s[62:63]
L_ld_start:""")
QUADS = {'wq': 4, 'g': 2, 'u': 2, 'k': 8, 'v': 8, 'wo': 4, 'dn': 2}
order = []
for o in a.order.split(','):
    if ':' in o: n, q = o.split(':'); order.append((n, int(q)))
    else: order.append((o, QUADS.get(o, 0)))
assert order[0][0] == 'wq'
names = [n for n, _ in order]
PROG = {}; events = []; done = {}; idx = 0; pn = 0
for n, q in order:
    if n in ('HQ', 'HO'): continue
    for j in range(q):
        done[n] = done.get(n, 0) + 1; idx += 1
        if n == 'v' and done[n] % 2 == 0:
            pn += 1; PROG[f'v{done[n]//2-1}'] = pn; events.append((idx, pn))
        elif n != 'v' and done[n] == QUADS[n]:
            if n == 'g': continue
            pn += 1; PROG[n] = pn; events.append((idx, pn))
assert done == QUADS, done
assert names.index('g') < names.index('u')
PROG['gu'] = PROG['u']
TOTALQ = idx
WINQ = a.win // 4
def signal(p):
    A(f"v_mov_b32 v12, {p}\ns_mov_b64 exec, 1\nds_write_b32 v14, v12\ns_mov_b64 exec, -1")
def wait4(off, lbl, sleep=0):
    A(f"{lbl}:")
    if sleep: A(f"s_sleep {sleep}")
    A(f"""ds_read_b128 v[16:19], v14 offset:{off - L_PROG}
s_waitcnt lgkmcnt(0)
v_and_b32 v16, v16, v17
v_and_b32 v18, v18, v19
v_and_b32 v16, v16, v18
v_readfirstlane_b32 s34, v16
s_cmp_eq_u32 s34, 0
s_cbranch_scc1 {lbl}""")
issued = 0
pend = list(events)
barrier_done = False
def emit_sig():
    e, p = pend.pop(0)
    A(f"s_waitcnt vmcnt({4*(issued - e)})"); signal(p); stamp('L')
def ensure_barrier():
    global barrier_done
    if not barrier_done:
        A("s_barrier"); barrier_done = True
def call(q):
    global issued
    A(f"s_mov_b32 s54, {q-1}\ns_call_b64 s[62:63], L_quads")
    issued += q
cur = 'wq'; donec = {}
setup_done = False
def late_setup():
    A(f"""v_mov_b32 v14, {L_PROG}
s_lshl_b32 s33, s29, 2
s_add_u32 s33, s33, s31
v_mul_u32_u24 v7, 3584, v2
v_add_u32 v7, v7, v5
v_lshl_add_u32 v8, v2, 10, v5
v_and_b32 v2, 15, v1
v_xor_b32 v9, v6, v2
v_lshlrev_b32 v9, 4, v9
v_lshl_add_u32 v9, v3, 8, v9
v_xor_b32 v10, 0x80, v9
s_mul_i32 s57, s32, {64*3584}
s_lshl_b32 s34, s33, 7
s_add_u32 s57, s57, s34
s_lshl_b32 s58, s29, 24
s_lshl_b32 s34, s30, 15
s_add_u32 s58, s58, s34
s_add_u32 s58, s58, {(65536-4096)*256}
s_lshl_b32 s59, s33, 17
s_add_u32 s59, s59, s35
s_lshl_b32 s60, s33, 16
s_add_u32 s60, s60, s35
s_cmp_ge_u32 s33, 28
s_cselect_b32 s45, 0, 1835008""")
    if DIAG:
        for i in range(68, 96): A(f"s_mov_b32 s{i}, 0")
SEG = {
    'wq': (10, 4194304, None, None, 8*8192, L_WQ),
    'g':  (16, 's45', (7, 7), 57, 8*3584, L_G),
    'u':  (18, 's45', (7, 7), 57, 8*3584, L_U),
    'k':  (6, 134217728, (9, 10), 58, 1024, L_K),
    'v':  (8, 134217728, (9, 10), 58, 1024, L_V),
    'wo': (12, 4194304, (8, 8), 59, 8*1024, L_WO),
    'dn': (20, 's45', (8, 8), 60, 8*1024, L_DN),
}
curv = None; curstep = 8*8192
first = True
for n, q in order:
    if n in ('HQ', 'HO'):
        ensure_barrier()
        if n == 'HQ':
            while PROG['wq'] in [p for _, p in pend]: emit_sig()
            wait4(L_FQ, "L_hq")
        else:
            while pend and pend[0][0] <= issued: emit_sig()
            A("s_setprio 3")
            wait4(L_FO, "L_ho")
        stamp('L')
        continue
    ptr, size, vo, base, step, lb = SEG[n]
    d0 = donec.get(n, 0)
    if first:
        assert q == 4
        A("s_waitcnt lgkmcnt(0)\ns_mov_b32 s48, s10\ns_mov_b32 s49, s11")
        stamp('L')
        first = False
    elif n != cur:
        A(f"s_mov_b32 s48, s{ptr}\ns_mov_b32 s49, s{ptr+1}\ns_mov_b32 s50, {size}")
        if d0: A(f"s_add_u32 s46, s{base}, {d0*4*step}")
        else: A(f"s_mov_b32 s46, s{base}")
        A(f"s_mov_b32 m0, {lb + d0*4096}")
        if vo != curv: A(f"v_mov_b32 v20, v{vo[0]}\nv_mov_b32 v21, v{vo[1]}"); curv = vo
        if step != curstep: A(f"s_mov_b32 s52, {step-1024}\ns_mov_b32 s53, {step+3072}"); curstep = step
    cur = n
    left = q
    while left:
        take = left
        if not barrier_done: take = min(take, max(1, 8 - issued))
        elif pend:
            due = pend[0][0] + WINQ - issued
            if 0 < due < take: take = due
        call(take); left -= take
        if not setup_done: late_setup(); setup_done = True
        if issued >= 8: ensure_barrier()
        while barrier_done and pend and pend[0][0] + WINQ <= issued: emit_sig()
    donec[n] = d0 + q
ensure_barrier()
while pend: emit_sig()
A("s_branch L_fin")
order = names

def waitprog(p, lbl, sleep=1):
    A(f"s_cmp_ge_u32 s63, {p}\ns_cbranch_scc1 {lbl}_ok")
    A(f"""{lbl}:
ds_read_b32 v15, v14
s_waitcnt lgkmcnt(0)
v_readfirstlane_b32 s63, v15
s_cmp_ge_u32 s63, {p}""")
    if sleep: A(f"s_cbranch_scc1 {lbl}_ok\ns_sleep {sleep}\ns_branch {lbl}")
    else: A(f"s_cbranch_scc0 {lbl}")
    A(f"{lbl}_ok:")
def setflag(off):
    A(f"s_mov_b64 exec, 1\nds_write_b32 v5, v6 offset:{off - L_PROG}\ns_mov_b64 exec, -1")
def tag(regs, rnd=False):
    if rnd:
        for r in regs: A(f"v_add_u32 v{r}, {(TAGM+1)//2}, v{r}")
    for r in regs: A(f"v_and_or_b32 v{r}, v{r}, s47, v9")
def check(regs, acc, tmp, dst="vcc"):
    ps = [(regs[i], regs[i+1]) for i in range(0, len(regs), 2)]
    A(f"v_bitop3_b32 v{acc}, v{ps[0][0]}, v{ps[0][1]}, v9 bitop3:0x7e")
    i = 1
    while i < len(ps):
        if i + 1 < len(ps):
            A(f"v_bitop3_b32 v{tmp}, v{ps[i][0]}, v{ps[i][1]}, v9 bitop3:0x7e")
            A(f"v_bitop3_b32 v{tmp+1}, v{ps[i+1][0]}, v{ps[i+1][1]}, v9 bitop3:0x7e")
            A(f"v_or3_b32 v{acc}, v{acc}, v{tmp}, v{tmp+1}"); i += 2
        else:
            A(f"v_bitop3_b32 v{tmp}, v{ps[i][0]}, v{ps[i][1]}, v9 bitop3:0x7e")
            A(f"v_or_b32 v{acc}, v{acc}, v{tmp}"); i += 1
    A(f"v_and_b32 v{acc}, {TAGM}, v{acc}")
    A(f"v_cmp_ne_u32 {dst}, 0, v{acc}")
def untag(regs):
    for r in regs: A(f"v_and_b32 v{r}, s47, v{r}")
def dpp(op, d, s, ctl, bank="0xf"):
    A(f"{op}_dpp v{d}, v{s}, v{s} {ctl} row_mask:0xf bank_mask:{bank}")
def rowred(op, regs, steps=("row_ror:8", "row_ror:4", "row_ror:2", "row_ror:1")):
    for s in steps:
        for r in regs: dpp(op, r, r, s)
def xrow(op, r, t):
    A(f"v_mov_b32 v{t}, v{r}\nv_permlane16_swap_b32 v{t}, v{r}\n{op} v{r}, v{r}, v{t}")
    A(f"v_mov_b32 v{t}, v{r}\nv_permlane32_swap_b32 v{t}, v{r}\n{op} v{r}, v{r}, v{t}")
def bfr(r):
    A(f"v_cvt_pk_bf16_f32 v{r}, v{r}, v{r}\nv_lshlrev_b32 v{r}, 16, v{r}")
def bfr2(r0, r1):
    A(f"v_cvt_pk_bf16_f32 v{r1}, v{r0}, v{r1}\nv_lshlrev_b32 v{r0}, 16, v{r1}\nv_and_b32 v{r1}, 0xffff0000, v{r1}")
def select4(dst, srcs, masks=("s[48:49]", "s[50:51]", "s[52:53]")):
    for t in range(1, len(srcs)):
        for i in range(4):
            s0 = srcs[0] + i if t == 1 else dst + i
            A(f"v_cndmask_b32 v{dst+i}, v{s0}, v{srcs[t]+i}, {masks[t-1]}")
def layernorm():
    for i in range(4):
        A(f"v_lshlrev_b32 v{24+2*i}, 16, v{20+i}\nv_and_b32 v{25+2*i}, 0xffff0000, v{20+i}")
    A("""v_pk_add_f32 v[32:33], v[24:25], v[26:27]
v_pk_add_f32 v[34:35], v[28:29], v[30:31]
v_pk_add_f32 v[32:33], v[32:33], v[34:35]
v_add_f32 v32, v32, v33""")
    rowred("v_add_f32", [32]); xrow("v_add_f32", 32, 33)
    A("v_mul_f32 v32, 0x3b000000, v32")
    for i in range(8): A(f"v_sub_f32 v{36+i}, v{24+i}, v32")
    A("v_pk_mul_f32 v[34:35], v[36:37], v[36:37]")
    for i in range(1, 4): A(f"v_pk_fma_f32 v[34:35], v[{36+2*i}:{37+2*i}], v[{36+2*i}:{37+2*i}], v[34:35]")
    A("v_add_f32 v33, v34, v35")
    rowred("v_add_f32", [33]); xrow("v_add_f32", 33, 34)
    A("v_mul_f32 v33, 0x3b000000, v33")
    bfr2(32, 33)
    A("v_add_f32 v33, 0x3727c5ac, v33")
    for i in range(4): A(f"v_sub_f32 v{24+i}, v{24+i}, v32")
    bfr(33)
    A("v_sqrt_f32 v33, v33")
    for i in range(4, 8): A(f"v_sub_f32 v{24+i}, v{24+i}, v32")
    bfr(33)
    A("v_rcp_f32 v34, v33")
    for i in range(4): bfr2(24+2*i, 25+2*i)
    for i in range(8): A(f"v_mul_f32 v{36+i}, v{24+i}, v34")
    for i in range(8): A(f"v_fma_f32 v{24+i}, -v{36+i}, v33, v{24+i}")
    for i in range(8): A(f"v_fmac_f32 v{36+i}, v{24+i}, v34")
    for i in range(4): A(f"v_cvt_pk_bf16_f32 v{24+i}, v{36+2*i}, v{37+2*i}")
    A("ds_write_b128 v7, v[24:27]")
def bound(lbl_out, cnt="s35"):
    A(f"s_add_u32 {cnt}, {cnt}, 1\ns_cmp_ge_u32 {cnt}, {a.spin}\ns_cbranch_scc1 {lbl_out}")
def gather(name, groups, acc, tmp, first_masks=None):
    for gi in range(len(groups)):
        m = first_masks[gi] if first_masks else "-1"
        A(f"s_mov_b64 s[{4+2*gi}:{5+2*gi}], {m}")
    A("s_mov_b32 s35, 0")
    A(f"{name}:")
    for gi, (loads, regs) in enumerate(groups):
        A(f"s_mov_b64 exec, s[{4+2*gi}:{5+2*gi}]")
        for l in loads: A(l)
    A("s_mov_b64 exec, -1")
    bound(f"{name}_done")
    A("s_waitcnt vmcnt(0)")
    for gi, (loads, regs) in enumerate(groups):
        check(regs, acc, tmp, f"s[{4+2*gi}:{5+2*gi}]")
    if len(groups) == 1: A("s_cmp_lg_u64 s[4:5], 0")
    else:
        A("s_or_b64 s[16:17], s[4:5], s[6:7]")
        for gi in range(2, len(groups)): A(f"s_or_b64 s[16:17], s[16:17], s[{4+2*gi}:{5+2*gi}]")
    A(f"s_cbranch_scc1 {name}\n{name}_done:\ns_waitcnt vmcnt(0)")
def pub(line):
    if not a.fast:
        A(line + " sc1"); return
    pub.n += 1
    A(f"s_cmp_lg_u32 s62, 0\ns_cbranch_scc1 L_pf{pub.n}\n{line} sc1\ns_branch L_pd{pub.n}\nL_pf{pub.n}:\n{line}\nL_pd{pub.n}:")
pub.n = 0

A("L_compute:")
A(f"""s_setprio 3
v_lshlrev_b32 v4, 4, v1
s_mov_b32 s38, {W_SIZE}
s_mov_b32 s39, 0x20000
s_mov_b32 s42, 1024
s_mov_b32 s43, 0x20000
v_and_b32 v2, 15, v1
v_mov_b32 v14, {L_PROG}
s_lshl_b32 s33, s29, 2
s_add_u32 s33, s33, s31
s_sub_u32 s28, s28, 1
s_waitcnt lgkmcnt(0)
s_mov_b32 s40, s4
s_mov_b32 s41, s5
s_mov_b32 s36, s26
s_mov_b32 s37, s27
buffer_load_dwordx4 v[20:23], v4, s[40:43], 0 offen
buffer_load_dword v19, off, s[36:39], 0 sc1""")
if DIAG:
    for i in range(66, 96): A(f"s_mov_b32 s{i}, 0")
stamp('C')
if a.tlb:
    A(f"""s_cmp_lg_u32 s28, 4
s_cbranch_scc1 L_notlb
s_lshl_b32 s34, s29, 24
s_lshl_b32 s35, s30, 15
s_add_u32 s34, s34, s35
s_add_u32 s34, s34, {(65536-4096)*256}
s_load_dword s96, s[6:7], s34
s_load_dword s96, s[8:9], s34
s_lshl_b32 s35, s33, 17
s_load_dword s96, s[12:13], s35
s_load_dword s96, s[22:23], 0
s_cmp_ge_u32 s33, 28
s_cbranch_scc1 L_notlb
s_mul_i32 s34, s32, {64*3584}
s_load_dword s96, s[16:17], s34
s_load_dword s96, s[18:19], s34
s_lshl_b32 s35, s33, 16
s_load_dword s96, s[20:21], s35
L_notlb:""")
if a.pfcode:
    A(f"""s_cmp_lg_u32 s28, 4
s_cbranch_scc1 L_nopf
s_getpc_b64 s[16:17]
L_pc:
s_min_u32 s34, s30, (L_end - L_pc) / 1024
s_lshl_b32 s34, s34, 10
s_min_u32 s34, s34, L_end - L_pc - 1020
s_add_u32 s16, s16, s34
s_addc_u32 s17, s17, 0
global_load_dwordx4 v[124:127], v4, s[16:17]
L_nopf:""")
if a.warm:
    A(f"""s_cmp_lg_u32 s28, 4
s_cbranch_scc1 L_nowarm
s_lshl_b32 s34, s33, 14
s_lshl_b32 s35, s32, 11
s_add_u32 s34, s34, s35
s_add_u32 s34, s34, {W_OP}
s_lshl_b32 s35, s33, 9
s_add_u32 s35, s35, {W_ML}
v_lshlrev_b32 v15, 7, v1
s_mov_b64 exec, 0xffff
buffer_load_dword v118, v15, s[36:39], s34 offen sc1
s_mov_b64 exec, 15
buffer_load_dword v119, v15, s[36:39], s35 offen sc1
s_mov_b64 exec, -1
L_nowarm:""")
A(f"""s_lshl_b32 s34, s28, 2
v_add_u32 v5, s34, v14
v_mov_b32 v6, 1
s_lshl_b32 s46, s28, 10
s_add_u32 s46, s46, {L_XN}
v_add_u32 v7, s46, v4
s_mov_b32 s63, 0""")
A("""v_lshrrev_b32 v8, 2, v2
v_lshl_add_u32 v8, v3, 2, v8
v_lshrrev_b32 v15, 1, v8
v_and_b32 v15, 3, v15
v_and_b32 v16, 3, v2
v_lshlrev_b32 v16, 3, v16
v_lshl_add_u32 v17, v8, 7, v16
v_lshl_add_u32 v10, v15, 5, v17""")
for t in range(1, 4): A(f"v_xor_b32 v{10+t}, {t*32}, v10")
A(f"""s_mov_b32 s47, {(~TAGM) & 0xffffffff}
s_mov_b32 s54, 0x00010001
s_mov_b32 s55, 0x00010001
s_cmp_lg_u32 s28, 1
s_cbranch_scc1 L_noinit
v_mov_b32 v15, 0
v_lshl_add_u32 v17, v1, 2, v14
ds_write_b32 v17, v15
s_waitcnt lgkmcnt(0)
L_noinit:
s_barrier
s_cmp_eq_u32 s28, 4
s_cbranch_scc1 L_ffn""")
def gettag():
    A(f"""v_readfirstlane_b32 s44, v19
s_add_u32 s44, s44, 1
s_and_b32 s45, s44, {TAGM}
v_mov_b32 v9, s45""")
A(f"""v_lshlrev_b32 v117, 4, v3
v_and_b32 v15, 3, v1
v_lshlrev_b32 v15, 11, v15
v_lshrrev_b32 v17, 2, v1
v_lshl_add_u32 v101, v17, 4, v15
s_mul_i32 s34, s28, 320
s_add_u32 s34, s34, {L_Q}
v_lshl_add_u32 v102, v17, 3, s34
v_and_b32 v15, 7, v1
v_lshlrev_b32 v15, 1, v15
v_xor_b32 v15, v15, v3
v_lshlrev_b32 v15, 4, v15
v_lshl_add_u32 v15, v2, 8, v15
s_lshl_b32 s34, s28, 13
s_add_u32 s34, s34, {L_K}
v_add_u32 v103, s34, v15
v_xor_b32 v104, 64, v103
v_xor_b32 v105, 128, v103
v_xor_b32 v106, 192, v103
v_and_b32 v18, 3, v2
v_mul_u32_u24 v107, 320, v18
v_add_u32 v107, v107, v117
s_lshl_b32 s34, s28, 10
s_add_u32 s34, s34, {L_P}
v_add_u32 v108, s34, v4
v_add_u32 v120, {L_P}, v4
v_lshlrev_b32 v15, 2, v1
v_add_u32 v110, {L_MX}, v15
s_lshl_b32 s34, s28, 8
v_add_u32 v109, s34, v110
v_and_b32 v15, 7, v8
s_lshl_b32 s34, s28, 1
v_xor_b32 v15, s34, v15
v_lshlrev_b32 v15, 5, v15
v_lshl_add_u32 v15, v8, 8, v15
v_add_u32 v111, v15, v16
v_add_u32 v111, {L_V}, v111
v_xor_b32 v112, 32, v111
v_lshlrev_b32 v15, 14, v18
v_lshrrev_b32 v17, 2, v2
v_lshl_add_u32 v15, v17, 6, v15
v_add_u32 v113, v15, v117
v_lshl_add_u32 v114, v2, 9, v117
v_lshlrev_b32 v115, 4, v2
s_lshl_b32 s34, s28, 6
s_add_u32 s34, s34, {L_OF}
v_lshl_add_u32 v116, v17, 2, v117
v_add_u32 v116, s34, v116
s_lshl_b32 s34, s28, 5
v_xor_b32 v118, s34, v10
v_and_b32 v119, 31, v1
v_lshlrev_b32 v119, 4, v119""")
A(f"""s_lshl_b32 s34, s31, 8
s_add_u32 s34, s34, s46
v_lshl_add_u32 v121, v3, 3, s34
s_lshl_b32 s48, s33, 11
s_lshl_b32 s34, s32, 8
s_add_u32 s48, s48, s34
s_lshl_b32 s34, s28, 6
s_add_u32 s48, s48, s34
s_add_u32 s48, s48, {W_QP}
s_lshl_b32 s49, s29, 13
s_lshl_b32 s34, s28, 9
s_add_u32 s49, s49, s34
s_add_u32 s49, s49, {W_QP}
s_lshl_b32 s50, s29, 9
s_add_u32 s50, s50, {W_XC}
s_lshl_b32 s34, s30, 4
s_add_u32 s51, s50, s34
s_lshl_b32 s52, s29, 11
s_add_u32 s52, s52, s34
s_add_u32 s52, s52, {W_ML}
s_lshl_b32 s53, s29, 16
s_lshl_b32 s34, s30, 9
s_add_u32 s53, s53, s34
s_lshl_b32 s35, s28, 7
s_add_u32 s53, s53, s35
s_add_u32 s53, s53, {W_OP}
s_lshl_b32 s56, s33, 14
s_add_u32 s56, s56, s35
s_add_u32 s56, s56, {W_OP}
s_add_u32 s57, s56, 8192
s_lshl_b32 s58, s33, 9
s_add_u32 s58, s58, {W_ML}
s_lshl_b32 s59, s32, 13
s_lshl_b32 s34, s33, 8
s_add_u32 s59, s59, s34
s_lshl_b32 s34, s28, 6
s_add_u32 s59, s59, s34
s_add_u32 s59, s59, {W_SP}
s_getreg_b32 s61, hwreg(HW_REG_XCC_ID, 0, 4)
s_lshl_b32 s61, s61, 16
s_mov_b32 s46, {LOG2E}
s_waitcnt vmcnt(0)""")
stamp('C')
gettag()
layernorm()
for s in range(4): A(f"ds_read2_b64 v[{24+4*s}:{27+4*s}], v121 offset0:{8*s} offset1:{8*s+4}")
A("v_or_b32 v44, s61, v9\nv_mov_b32 v45, v9\nv_mov_b32 v46, v9\nv_mov_b32 v47, v9")
stamp('C')
waitprog(PROG['wq'], "L_wq", 0)
stamp('C')
for s in range(4):
    A(f"ds_read_b64_tr_b16 v[{56+4*s}:{57+4*s}], v118 offset:{L_WQ + s*4096}")
    A(f"ds_read_b64_tr_b16 v[{58+4*s}:{59+4*s}], v118 offset:{L_WQ + s*4096 + 2048}")
for s in range(4):
    A(f"s_waitcnt lgkmcnt({6-2*s})")
    c = "0" if s == 0 else "v[40:43]"
    A(f"v_mfma_f32_16x16x32_bf16 v[40:43], v[{56+4*s}:{59+4*s}], v[{24+4*s}:{27+4*s}], {c}")
tag(range(40, 44), True)
A("""s_mov_b64 exec, s[54:55]
buffer_store_dwordx4 v[40:43], v117, s[36:39], s48 offen sc1
s_mov_b64 exec, 1
s_cmp_lg_u32 s28, 0
s_cbranch_scc1 L_noxc
buffer_store_dwordx4 v[44:47], off, s[36:39], s51 sc1
L_noxc:""")
A(f"ds_write_b32 v5, v6 offset:{L_FQ - L_PROG}\ns_mov_b64 exec, -1")
stamp('C')
A("s_waitcnt vmcnt(0)")
if a.qdelay: A(f"s_sleep {a.qdelay}")
stamp('C')
gather("L_qg", [(["buffer_load_dwordx4 v[24:27], v101, s[36:39], s49 offen sc1",
                 "buffer_load_dwordx4 v[28:31], v101, s[36:39], s49 offen offset:256 sc1",
                 "buffer_load_dwordx4 v[32:35], v119, s[36:39], s50 offen sc1"], list(range(24, 36)))], 36, 37)
stamp('C'); cstamp('C')
untag(range(24, 32))
A("v_lshrrev_b32 v32, 16, v32\ns_lshr_b32 s61, s61, 16")
rowred("v_add_f32", list(range(24, 32)), ("quad_perm:[1,0,3,2]", "quad_perm:[2,3,0,1]"))
A("v_cmp_ne_u32 vcc, s61, v32")
for i in range(4): A(f"v_cvt_pk_bf16_f32 v{24+i}, v{24+2*i}, v{25+2*i}")
A("""s_cmp_eq_u64 vcc, 0
s_cselect_b32 s62, 1, 0
s_mov_b32 exec_lo, 0x11111111
s_mov_b32 exec_hi, 0x11111111
ds_write_b64 v102, v[24:25]
ds_write_b64 v102, v[26:27] offset:128""")
setflag(L_F1)
waitprog(PROG['k'], "L_k")
for t in range(2):
    for s in range(4):
        r = 56 + 16*t + 4*s
        A(f"ds_read_b128 v[{r}:{r+3}], v{103+s} offset:{t*4096}")
wait4(L_F1, "L_s1")
for s in range(4): A(f"ds_read_b128 v[{40+4*s}:{43+4*s}], v107 offset:{L_Q + 64*s}")
A(f"s_mov_b32 s34, {SCALE}\ns_mov_b32 s35, {SCALE}")
for s in range(4):
    A(f"s_waitcnt lgkmcnt({3-s})")
    for t in range(2):
        r = 56 + 16*t + 4*s
        c = "0" if s == 0 else f"v[{32+4*t}:{35+4*t}]"
        A(f"v_mfma_f32_16x16x32_bf16 v[{32+4*t}:{35+4*t}], v[{r}:{r+3}], v[{40+4*s}:{43+4*s}], {c}")
for i in range(4): bfr2(32+2*i, 33+2*i)
for i in range(4): A(f"v_pk_mul_f32 v[{32+2*i}:{33+2*i}], v[{32+2*i}:{33+2*i}], s[34:35]")
for i in range(4): bfr2(32+2*i, 33+2*i)
A("""v_max3_f32 v40, v32, v33, v34
v_max3_f32 v41, v35, v36, v37
v_max3_f32 v40, v40, v38, v39
v_max_f32 v40, v40, v41""")
xrow("v_max_f32", 40, 41)
A("ds_write_b32 v109, v40")
setflag(L_FM)
for i in range(32): A(f"v_mov_b32 v{56+i}, 0")
wait4(L_FM, "L_sm")
A("ds_read2st64_b32 v[40:41], v110 offset0:0 offset1:1\nds_read2st64_b32 v[42:43], v110 offset0:2 offset1:3\ns_waitcnt lgkmcnt(0)")
A("v_max3_f32 v40, v40, v41, v42\nv_max_f32 v40, v40, v43\nv_mul_f32 v42, s46, v40")
for i in range(8): A(f"v_fma_f32 v{32+i}, v{32+i}, s46, -v42")
for i in range(8): A(f"v_exp_f32 v{32+i}, v{32+i}")
A("""v_pk_add_f32 v[42:43], v[32:33], v[34:35]
v_pk_add_f32 v[44:45], v[36:37], v[38:39]
v_pk_add_f32 v[42:43], v[42:43], v[44:45]
v_add_f32 v41, v42, v43""")
for i in range(4): A(f"v_cvt_pk_bf16_f32 v{32+i}, v{32+2*i}, v{33+2*i}")
A("ds_write_b128 v108, v[32:35]")
xrow("v_add_f32", 41, 42)
A(f"ds_write_b32 v109, v41 offset:{L_SU - L_MX}")
setflag(L_F2)
wait4(L_F2, "L_s2")
stamp('C')
A("s_mov_b32 s16, 0x000f000f\ns_mov_b32 s17, 0x000f000f\ns_mov_b32 s18, 0x00f000f0\ns_mov_b32 s19, 0x00f000f0\ns_mov_b32 s14, 0x00ff00ff\ns_mov_b32 s15, 0x00ff00ff")
A("s_mov_b64 exec, s[16:17]")
for w in range(4): A(f"ds_read_b128 v[{56+8*w}:{59+8*w}], v120 offset:{1024*w}")
A("s_mov_b64 exec, s[18:19]")
for w in range(4): A(f"ds_read_b128 v[{60+8*w}:{63+8*w}], v120 offset:{1024*w}")
A("s_mov_b64 exec, -1")
A("s_cmp_lg_u32 s28, 0\ns_cbranch_scc1 L_noml")
A(f"ds_read2st64_b32 v[42:43], v110 offset0:4 offset1:5\nds_read2st64_b32 v[44:45], v110 offset0:6 offset1:7\nv_lshlrev_b32 v15, 9, v2\ns_waitcnt lgkmcnt(0)")
A("v_add_f32 v42, v42, v43\nv_add_f32 v44, v44, v45\nv_add_f32 v41, v42, v44\nv_mov_b32 v42, v9\nv_mov_b32 v43, v9")
tag([40, 41])
A("s_mov_b64 exec, 15")
pub("buffer_store_dwordx4 v[40:43], v15, s[36:39], s52 offen")
A("s_mov_b64 exec, -1\nL_noml:")
wo_early = order.index('wo') < order.index('v')
def wo_frags():
    waitprog(PROG['wo'], "L_wo", 1 if wo_early else 0)
    for s in range(4):
        A(f"ds_read_b64_tr_b16 v[{88+4*s}:{89+4*s}], v118 offset:{L_WO + s*4096}") if s < 3 else A(f"ds_read_b64_tr_b16 v[124:125], v118 offset:{L_WO + s*4096}")
        A(f"ds_read_b64_tr_b16 v[{90+4*s}:{91+4*s}], v118 offset:{L_WO + s*4096 + 2048}") if s < 3 else A(f"ds_read_b64_tr_b16 v[126:127], v118 offset:{L_WO + s*4096 + 2048}")
WOF = ["v[88:91]", "v[92:95]", "v[96:99]", "v[124:127]"]
if wo_early: wo_frags()
for w in range(4):
    waitprog(PROG[f'v{w}'], f"L_v{w}", 0 if w == 3 else 1)
    if w == 3: stamp('C')
    ar = 24 + 8*(w & 1)
    for t in range(2):
        A(f"ds_read_b64_tr_b16 v[{ar+4*t}:{ar+4*t+1}], v{111+t} offset:{w*8192}")
        A(f"ds_read_b64_tr_b16 v[{ar+4*t+2}:{ar+4*t+3}], v{111+t} offset:{w*8192+4096}")
    for t in range(2):
        A(f"s_waitcnt lgkmcnt({2-2*t})")
        c = "0" if (w == 0 and t == 0) else "v[44:47]"
        A(f"v_mfma_f32_16x16x32_bf16 v[44:47], v[{ar+4*t}:{ar+4*t+3}], v[{56+8*w+4*t}:{59+8*w+4*t}], {c}")
A("s_mov_b64 exec, s[14:15]")
tag(range(44, 48))
pub("buffer_store_dwordx4 v[44:47], v113, s[36:39], s53 offen")
if 'HO' in order: setflag(L_FO)
stamp('C')
gather("L_og", [(["buffer_load_dwordx4 v[48:51], v115, s[36:39], s58 offen sc1",
                  "buffer_load_dwordx4 v[24:27], v114, s[36:39], s56 offen sc1",
                  "buffer_load_dwordx4 v[28:31], v114, s[36:39], s56 offen offset:64 sc1"], list(range(48, 52)) + list(range(24, 32))),
                (["buffer_load_dwordx4 v[52:55], v115, s[36:39], s58 offen offset:256 sc1",
                  "buffer_load_dwordx4 v[32:35], v114, s[36:39], s57 offen sc1",
                  "buffer_load_dwordx4 v[36:39], v114, s[36:39], s57 offen offset:64 sc1"], list(range(52, 56)) + list(range(32, 40)))], 56, 57)
stamp('C'); cstamp('C')
untag([48, 52])
A("v_max_f32 v56, v48, v52")
un = list(range(24, 40)) + [49, 53]
for k, st in enumerate(("row_ror:8", "row_ror:4", "row_ror:2", "row_ror:1")):
    untag(un[2*k:2*k+2])
    dpp("v_max_f32", 56, 56, st)
untag(un[8:10])
A("v_mul_f32 v56, s46, v56")
untag(un[10:12])
A("v_fma_f32 v48, v48, s46, -v56\nv_fma_f32 v52, v52, s46, -v56\nv_exp_f32 v48, v48\nv_exp_f32 v52, v52")
untag(un[12:])
A("v_mul_f32 v56, v48, v49\nv_fmac_f32 v56, v52, v53")
for i in range(4): A(f"v_pk_mul_f32 v[{24+2*i}:{25+2*i}], v[{24+2*i}:{25+2*i}], v[48:49] op_sel_hi:[1,0]")
for i in range(4): A(f"v_pk_fma_f32 v[{24+2*i}:{25+2*i}], v[{32+2*i}:{33+2*i}], v[52:53], v[{24+2*i}:{25+2*i}] op_sel_hi:[1,0,1]")
dpp("v_add_f32", 56, 56, "row_ror:8")
for i in range(4): dpp("v_add_f32", 24+i, 24+i, "row_ror:8", "0x3")
dpp("v_add_f32", 56, 56, "row_ror:4")
for i in range(4): dpp("v_add_f32", 24+i, 28+i, "row_ror:8", "0xc")
dpp("v_add_f32", 56, 56, "row_ror:2")
for i in range(2): dpp("v_add_f32", 24+i, 24+i, "row_half_mirror", "0x5")
dpp("v_add_f32", 56, 56, "row_ror:1")
for i in range(2): dpp("v_add_f32", 24+i, 26+i, "row_half_mirror", "0xa")
A("v_rcp_f32 v56, v56")
rowred("v_add_f32", [24, 25], ("quad_perm:[1,0,3,2]", "quad_perm:[2,3,0,1]"))
A("v_pk_mul_f32 v[24:25], v[24:25], v[56:57] op_sel_hi:[1,0]\nv_cvt_pk_bf16_f32 v24, v24, v25\nds_write_b32 v116, v24")
if not wo_early: wo_frags()
A("s_waitcnt lgkmcnt(0)\ns_barrier")
for s in range(4): A(f"ds_read_b128 v[{24+4*s}:{27+4*s}], v117 offset:{L_OF + 64*s}")
for s in range(4):
    A(f"s_waitcnt lgkmcnt({3-s})")
    c = "0" if s == 0 else "v[40:43]"
    A(f"v_mfma_f32_16x16x32_bf16 v[40:43], {WOF[s]}, v[{24+4*s}:{27+4*s}], {c}")
A("s_mov_b64 exec, s[54:55]")
tag(range(40, 44))
A("buffer_store_dwordx4 v[40:43], v117, s[36:39], s59 offen sc1")
stamp('C')
A("s_branch L_fin")

A("L_ffn:")
stamp_n['F'] = 2
A(f"""s_mov_b32 s48, 0x22222222
s_mov_b32 s49, 0x22222222
s_mov_b32 s50, 0x44444444
s_mov_b32 s51, 0x44444444
s_mov_b32 s52, 0x88888888
s_mov_b32 s53, 0x88888888
s_mov_b32 s54, 0x000f000f
s_mov_b32 s55, 0x000f000f
s_cmp_ge_u32 s33, 28
s_cbranch_scc1 L_final
s_lshl_b32 s34, s32, 7
s_add_u32 s34, s34, s46
v_lshl_add_u32 v121, v3, 3, s34
v_lshlrev_b32 v122, 6, v2
v_lshl_add_u32 v122, v3, 4, v122
s_lshl_b32 s56, s33, 12
s_add_u32 s56, s56, {W_GU}
s_lshl_b32 s35, s32, 9
s_add_u32 s57, s56, s35
v_and_b32 v123, 7, v2
v_lshlrev_b32 v123, 9, v123
v_lshrrev_b32 v17, 3, v2
v_lshl_add_u32 v123, v17, 7, v123
v_lshl_add_u32 v123, v3, 4, v123
s_lshl_b32 s58, s32, 13
s_lshl_b32 s35, s33, 8
s_add_u32 s58, s58, s35
s_add_u32 s58, s58, {W_GP}
s_waitcnt vmcnt(0)""")
gettag()
layernorm()
for s in range(2): A(f"ds_read2_b64 v[{24+4*s}:{27+4*s}], v121 offset0:{8*s} offset1:{8*s+4}")
waitprog(PROG['gu'], "L_gu")
stamp('F')
def gemv(base, nsteps, bfrag, acc, areg):
    k = 0
    for s in range(nsteps):
        for t in range(4):
            r = areg + 4*k
            A(f"ds_read_b64_tr_b16 v[{r}:{r+1}], v{10+t} offset:{base + s*4096}")
            A(f"ds_read_b64_tr_b16 v[{r+2}:{r+3}], v{10+t} offset:{base + s*4096 + 2048}")
            k += 1
    k = 0; n = nsteps*4
    for s in range(nsteps):
        for t in range(4):
            r = areg + 4*k
            A(f"s_waitcnt lgkmcnt({min(15, 2*(n-1-k))})")
            c = "0" if s == 0 else f"v[{acc+4*t}:{acc+4*t+3}]"
            A(f"v_mfma_f32_16x16x32_bf16 v[{acc+4*t}:{acc+4*t+3}], v[{r}:{r+3}], v[{bfrag+4*s}:{bfrag+4*s+3}], {c}")
            k += 1
gemv(L_G, 2, 24, 32, 64)
gemv(L_U, 2, 24, 48, 88)
select4(32, [32, 36, 40, 44]); select4(48, [48, 52, 56, 60])
tag(list(range(32, 36)) + list(range(48, 52)), True)
A("""s_mov_b64 exec, s[54:55]
buffer_store_dwordx4 v[32:35], v122, s[36:39], s57 offen sc1
buffer_store_dwordx4 v[48:51], v122, s[36:39], s57 offen offset:256 sc1
s_mov_b64 exec, -1""")
stamp('F')
A("s_waitcnt vmcnt(0)")
stamp('F')
gather("L_gug", [(["buffer_load_dwordx4 v[32:35], v123, s[36:39], s56 offen sc1",
                   "buffer_load_dwordx4 v[36:39], v123, s[36:39], s56 offen offset:64 sc1",
                   "buffer_load_dwordx4 v[40:43], v123, s[36:39], s56 offen offset:256 sc1",
                   "buffer_load_dwordx4 v[44:47], v123, s[36:39], s56 offen offset:320 sc1"], list(range(32, 48)))], 56, 57)
stamp('F'); cstamp('F')
untag(range(32, 48))
rowred("v_add_f32", list(range(32, 48)), ("quad_perm:[1,0,3,2]", "quad_perm:[2,3,0,1]", "row_half_mirror"))
for i in range(8): bfr2(32+2*i, 33+2*i)
C1 = f32(-2*math.sqrt(2/math.pi)*math.log2(math.e)); C3 = f32(-2*math.sqrt(2/math.pi)*math.log2(math.e)*0.044715)
A(f"s_mov_b32 s60, {C3}\nv_mov_b32 v18, {C1}")
for i in range(8): A(f"v_mul_f32 v{48+i}, v{32+i}, v{32+i}")
for i in range(8): A(f"v_fma_f32 v{48+i}, v{48+i}, s60, v18")
for i in range(8): A(f"v_mul_f32 v{48+i}, v{48+i}, v{32+i}")
for i in range(8): A(f"v_exp_f32 v{48+i}, v{48+i}")
for i in range(8): A(f"v_add_f32 v{48+i}, 1.0, v{48+i}")
for i in range(8): A(f"v_rcp_f32 v{48+i}, v{48+i}")
for i in range(8): A(f"v_mul_f32 v{32+i}, v{32+i}, v{48+i}")
for i in range(4): bfr2(32+2*i, 33+2*i)
for i in range(8): A(f"v_mul_f32 v{32+i}, v{32+i}, v{40+i}")
for i in range(4): A(f"v_cvt_pk_bf16_f32 v{24+i}, v{32+2*i}, v{33+2*i}")
for i in range(4): A(f"v_mov_b32_dpp v{28+i}, v{24+i} row_ror:8 {DPPM}")
waitprog(PROG['dn'], "L_dn")
stamp('F')
gemv(L_DN, 2, 24, 32, 64)
select4(32, [32, 36, 40, 44])
tag(range(32, 36))
A("""s_mov_b64 exec, s[54:55]
buffer_store_dwordx4 v[32:35], v122, s[36:39], s58 offen sc1
s_mov_b64 exec, -1""")
stamp('F')
A("s_barrier\ns_branch L_fin")

A("L_final:")
stamp_n['Z'] = 2
A(f"""s_sub_u32 s34, s33, 28
s_lshl_b32 s35, s34, 6
s_lshl_b32 s56, s32, 13
s_add_u32 s56, s56, s35
s_add_u32 s58, s56, {W_GP}
s_add_u32 s59, s58, 4096
s_add_u32 s56, s56, {W_SP}
s_add_u32 s57, s56, 4096
v_lshlrev_b32 v122, 8, v2
v_lshl_add_u32 v122, v3, 4, v122
s_lshl_b32 s60, s32, 7
s_lshl_b32 s35, s34, 5
s_add_u32 s60, s60, s35
v_lshrrev_b32 v123, 2, v2
v_lshlrev_b32 v123, 1, v123
v_lshl_add_u32 v123, v3, 3, v123
s_waitcnt vmcnt(0)
buffer_load_ushort v20, v123, s[40:43], s60 offen
buffer_load_dword v24, v122, s[36:39], s56 offen sc1
buffer_load_dword v25, v122, s[36:39], s57 offen sc1
buffer_load_dword v26, v122, s[36:39], s58 offen sc1
buffer_load_dword v27, v122, s[36:39], s59 offen sc1
s_mov_b32 s46, {LOG2E}""")
gettag()
for i in range(4): A(f"v_mov_b32 v{44+i}, v9")
A("s_mov_b32 s18, 0x0fff0fff\ns_mov_b32 s19, 0x0fff0fff\ns_waitcnt vmcnt(0)\nv_lshlrev_b32 v20, 16, v20")
srd(40, 22, 1024)
A("s_barrier")
stamp('Z')
def red4(r):
    untag(range(r, r+8))
    A(f"v_pk_add_f32 v[{r}:{r+1}], v[{r}:{r+1}], v[{r+4}:{r+5}]\nv_pk_add_f32 v[{r+2}:{r+3}], v[{r+2}:{r+3}], v[{r+6}:{r+7}]")
    for i in range(2): dpp("v_add_f32", r+i, r+i, "row_ror:8", "0x3")
    for i in range(2): dpp("v_add_f32", r+i, r+2+i, "row_ror:8", "0xc")
    dpp("v_add_f32", r, r, "row_half_mirror", "0x5")
    dpp("v_add_f32", r, r+1, "row_half_mirror", "0xa")
    rowred("v_add_f32", [r], ("quad_perm:[1,0,3,2]", "quad_perm:[2,3,0,1]"))
gather("L_gg", [(["buffer_load_dwordx4 v[40:43], v122, s[36:39], s58 offen sc1"], list(range(40, 44))),
                (["buffer_load_dwordx4 v[44:47], v122, s[36:39], s59 offen sc1"], list(range(44, 48)))], 56, 57, ["-1", "s[18:19]"])
stamp('Z'); cstamp('Z')
red4(40)
bfr(40)
A("v_mul_f32 v44, s46, v40\nv_exp_f32 v44, -v44\nv_add_f32 v44, 1.0, v44\nv_rcp_f32 v44, v44\nv_mul_f32 v40, v40, v44")
bfr(40)
gather("L_sg", [(["buffer_load_dwordx4 v[24:27], v122, s[36:39], s56 offen sc1"], list(range(24, 28))),
                (["buffer_load_dwordx4 v[28:31], v122, s[36:39], s57 offen sc1"], list(range(28, 32)))], 56, 57)
stamp('Z'); cstamp('Z')
red4(24)
bfr(24)
A("v_mul_f32 v24, v24, v40")
bfr(24)
A("""v_add_f32 v24, v24, v20
v_cvt_pk_bf16_f32 v24, v24, v24
s_mov_b32 exec_lo, 0x11111111
s_mov_b32 exec_hi, 0x11111111
buffer_store_short v24, v123, s[40:43], s60 offen""")
stamp('Z')
if DIAG: A("s_waitcnt vmcnt(0)")
stamp('Z')
A("""s_cmp_lg_u32 s2, 255
s_cbranch_scc1 L_fin
s_mov_b64 exec, 1
v_mov_b32 v16, s44
buffer_store_dword v16, off, s[36:39], 0""")

A("L_fin:")
if DIAG:
    A("s_mov_b64 exec, -1\ns_waitcnt vmcnt(0)\ns_memrealtime s[94:95]\ns_waitcnt lgkmcnt(0)\nv_mov_b32 v9, 0")
    for i in range(16): A(f"v_writelane_b32 v9, s{64+2*i}, {i}")
    A("v_lshrrev_b32 v4, 6, v0\nv_readfirstlane_b32 s28, v4")
    if DIAG >= 2:
        A(f"s_cmp_lg_u32 s28, {DIAG-2}\ns_cbranch_scc1 L_end")
        A("s_not_b32 s34, s64\nv_writelane_b32 v9, s34, 0")
        srd(36, 24, 256)
        A("v_lshlrev_b32 v10, 2, v1\ns_mov_b64 exec, 0xffff\nbuffer_atomic_umax v9, v10, s[36:39], 0 offen\ns_endpgm")
    A("s_lshl_b32 s34, s28, 8\ns_add_u32 s34, s34, s2\ns_lshl_b32 s34, s34, 6\ns_add_u32 s34, s34, 0x10000000")
    srd(36, 26, 536870912)
    A("v_lshlrev_b32 v10, 2, v1\ns_mov_b64 exec, 0xffff\nbuffer_store_dword v9, v10, s[36:39], s34 offen")
A("L_end:\ns_endpgm")
NV = 128
A('.section .rodata,"a"'); A(".p2align 6"); A(f".amdhsa_kernel {NAME}_kernel")
A(f".amdhsa_next_free_vgpr {NV}\n.amdhsa_next_free_sgpr 102\n.amdhsa_accum_offset {NV}")
A(".amdhsa_group_segment_fixed_size 0\n.amdhsa_kernarg_size 96\n.amdhsa_user_sgpr_count 2")
A(".amdhsa_user_sgpr_kernarg_segment_ptr 1\n.amdhsa_system_sgpr_workgroup_id_x 1\n.end_amdhsa_kernel")
sys.stdout.write("\n".join(hdr) + "\n" + A.text())
```

```python
import re

def _regs(tok):
    tok = tok.strip()
    neg = tok.lstrip('-')
    m = re.fullmatch(r'abs\((.*)\)', neg)
    if m: neg = m.group(1)
    neg = neg.strip('|')
    m = re.fullmatch(r'([vsa])(\d+)', neg)
    if m: return {(m.group(1), int(m.group(2)))}
    m = re.fullmatch(r'([vsa])\[(\d+):(\d+)\]', neg)
    if m: return {(m.group(1), i) for i in range(int(m.group(2)), int(m.group(3)) + 1)}
    if neg == 'vcc': return {('s', 'vcc')}
    if neg == 'exec': return {('s', 'exec')}
    if neg == 'm0': return {('s', 'm0')}
    return set()

TRANS = ('v_exp_f32', 'v_log_f32', 'v_rcp_f32', 'v_rsq_f32', 'v_sqrt_f32', 'v_sin_f32', 'v_cos_f32')

class Ins:
    def __init__(self, text):
        self.text = text
        t = text.split(';')[0].strip()
        self.label = t.endswith(':')
        self.directive = t.startswith('.')
        self.op = t.split()[0] if t else ''
        rest = t[len(self.op):].strip()
        ops = [o.strip() for o in re.split(r',(?![^\[]*\])', rest)] if rest else []
        mods = ''
        if ops:
            last = ops[-1].split()
            if len(last) > 1:
                ops[-1] = last[0]; mods = ' '.join(last[1:])
        self.ops = ops; self.mods = mods
        op = self.op
        self.states = 1
        if op == 's_nop': self.states = int(ops[0], 0) + 1
        if self.label or self.directive or not op: self.states = 0
        self.valu = op.startswith('v_') and not op.startswith('v_mfma')
        self.mfma = op.startswith('v_mfma')
        self.salu = op.startswith('s_')
        self.ds = op.startswith('ds_')
        self.vmem = op.startswith('buffer_') or op.startswith('global_')
        self.dpp = ('_dpp' in op) or any(k in mods for k in ('row_', 'quad_perm'))
        self.trans = any(op.startswith(x) for x in TRANS)
        self.permlane = op.startswith('v_permlane')
        self.readlane = op.startswith('v_readlane') or op.startswith('v_readfirstlane')
        self.w = set(); self.r = set()
        R = [_regs(o) for o in ops]
        if self.valu or self.mfma:
            if op.startswith('v_cmp'):
                self.w |= R[0]
                for x in R[1:]: self.r |= x
            elif self.permlane:
                self.w |= R[0] | R[1]; self.r |= R[0] | R[1]
            else:
                self.w |= R[0]
                for x in R[1:]: self.r |= x
                if op.startswith(('v_fmac', 'v_dot2c', 'v_writelane')) or (self.dpp and op.startswith('v_mov')): self.r |= R[0]
                if op.startswith('v_cndmask') and len(ops) == 3: self.r |= {('s', 'vcc')}
                if op.startswith(('v_add_co', 'v_sub_co', 'v_addc_co')): self.w |= R[1]
        elif self.ds:
            if op.startswith(('ds_read', 'ds_bpermute', 'ds_permute', 'ds_swizzle')):
                self.w |= R[0]
                for x in R[1:]: self.r |= x
            else:
                for x in R: self.r |= x
        elif self.vmem:
            lds = 'lds' in mods.split() or '_lds_' in op
            self.ldsdma = lds
            if '_load' in op and not lds:
                self.w |= R[0]
                for x in R[1:]: self.r |= x
            else:
                for x in R: self.r |= x
            if lds: self.r |= {('s', 'm0')}
            self.widestore = ('store' in op) and op.endswith(('x3', 'x4'))
            if self.widestore:
                self.data = R[0] if op.startswith('buffer_') else R[1]
        elif self.salu:
            if op.startswith(('s_cmp', 's_cbranch', 's_branch', 's_waitcnt', 's_barrier', 's_sleep', 's_setprio', 's_endpgm', 's_nop')):
                for x in R: self.r |= x
            else:
                if R: self.w |= R[0]
                for x in R[1:]: self.r |= x
                if 'saveexec' in op: self.w |= {('s', 'exec')}
        if self.mfma:
            self.srcab = R[1] | R[2]; self.srcc = R[3]; self.passes = 4 if '16x16' in op else 8

def V(x): return {r for r in x if r[0] in 'va'}
def S(x): return {r for r in x if r[0] == 's'}

def need(p, c):
    n = 0
    if p.valu:
        wv = V(p.w); ws = S(p.w)
        if c.valu and c.dpp and wv & c.r: n = max(n, 2)
        if c.permlane and wv & c.r: n = max(n, 2)
        if c.mfma and wv & c.r: n = max(n, 2)
        if c.readlane and wv & c.r: n = max(n, 1)
        if p.trans and c.valu and not c.trans and wv & c.r: n = max(n, 1)
        if p.trans and (c.valu) and wv & c.r: n = max(n, 1)
        if ws:
            if c.valu and ws & c.r: n = max(n, 4 if (c.readlane or c.op.startswith('v_writelane')) else 2)
            if c.vmem and ws & c.r: n = max(n, 5)
            if c.salu and ws & c.r: n = max(n, 1)
        if ('sdwa' in p.op or 'op_sel' in p.mods) and c.valu and wv & (c.r | c.w): n = max(n, 1)
    if p.mfma:
        D = p.w; big = {4: 8, 8: 12}[p.passes]
        if c.mfma:
            if D & c.srcab: n = max(n, big)
            if D & c.srcc and D != c.srcc: n = max(n, {4: 6, 8: 10}[p.passes])
            if D & c.w and not (D & c.srcc): n = max(n, big)
        elif (c.valu or c.ds or c.vmem) and D & (c.r | c.w): n = max(n, big)
        if c.valu and p.srcc & c.w: n = max(n, {4: 3, 8: 7}[p.passes])
    if p.salu and ('s', 'm0') in p.w and c.vmem and getattr(c, 'ldsdma', False): n = max(n, 1)
    if p.vmem and getattr(p, 'widestore', False) and (c.valu or c.ds or c.vmem or c.mfma) and p.data & c.w: n = max(n, 2)
    return n

class Asm:
    def __init__(self):
        self.ins = []
    def __call__(self, text):
        for line in text.split('\n'):
            line = line.strip()
            if not line: continue
            self.emit(line)
    def emit(self, line):
        c = Ins(line)
        if c.states and not line.startswith(';'):
            pad = self._scan(len(self.ins) - 1, 0, c, set())
            while pad > 0:
                k = min(pad, 16)
                self.ins.append(Ins(f's_nop {k-1}')); pad -= k
        self.ins.append(c)
    def _scan(self, i, dist, c, seen):
        pad = 0
        while i >= 0 and dist < 13:
            p = self.ins[i]
            if p.label:
                name = p.text.split(':')[0].strip()
                for j in range(i - 1, max(-1, i - 400), -1):
                    q = self.ins[j]
                    if q.op.startswith(('s_cbranch', 's_branch')) and q.ops and q.ops[0] == name and (j, dist) not in seen:
                        seen.add((j, dist))
                        pad = max(pad, self._scan(j - 1, dist + 1, c, seen))
            elif p.states:
                if p.op in ('s_branch', 's_endpgm', 's_setpc_b64'): break
                n = need(p, c)
                if n > dist: pad = max(pad, n - dist)
                dist += p.states
            i -= 1
        return pad
    def text(self):
        out = []
        for i in self.ins:
            out.append(i.text if (i.label or i.directive or i.text.startswith(';')) else '    ' + i.text)
        return '\n'.join(out) + '\n'
```

```python
import sys, argparse, struct, math
sys.path.insert(0, 'tools')
from asmlib import Asm
NAME = "recurrent_scan__sliding_block_cached__geglu_ffn__decode"
ap = argparse.ArgumentParser()
ap.add_argument("--diag", type=int, default=0)
ap.add_argument("--order", default="wq,g,u,k:3,HQ,k:2,S,T5,k:3,dn,HG,T0,wo,v")
ap.add_argument("--win", type=int, default=32)
ap.add_argument("--nt", type=int, default=1)
ap.add_argument("--thr", type=int, default=0)
ap.add_argument("--fast", type=int, default=1)
ap.add_argument("--qdelay", type=int, default=0)
ap.add_argument("--pfcode", type=int, default=1)
ap.add_argument("--warm", type=int, default=1)
ap.add_argument("--tlb", type=int, default=1)
ap.add_argument("--ackstamp", type=int, default=0)
ap.add_argument("--ogflag", default="sc1")
ap.add_argument("--cbrot", type=int, default=0)
ap.add_argument("--ex3", type=int, default=1)
ap.add_argument("--tail", type=int, default=0)
ap.add_argument("--order3", default="wq,k:5,HQ,k:1,S,T5,k:2,wo:3,HG,T0,wo:1,v")
ap.add_argument("--atom", type=int, default=1)
ap.add_argument("--wofirst", type=int, default=1)
ap.add_argument("--clean", type=int, default=0)
ap.add_argument("--outsc", default="")
ap.add_argument("--il", type=int, default=2)
ap.add_argument("--rot", type=int, default=1)
ap.add_argument("--wrot", type=int, default=0)
ap.add_argument("--pad", type=int, default=0)
ap.add_argument("--pvopt", type=int, default=1)
ap.add_argument("--al12", type=int, default=1)
ap.add_argument("--pf0", type=int, default=1)
ap.add_argument("--late", type=int, default=1)
ap.add_argument("--padh", type=int, default=-1)
ap.add_argument("--spin", type=int, default=2000000)
a = ap.parse_args()
DIAG = a.diag
NT = " nt" if a.nt else ""
A = Asm()
def f32(x): return struct.unpack('<I', struct.pack('<f', x))[0]

L_WQ, L_G, L_U, L_WO, L_DN = 0, 16384, 24576, 32768, 49152
L_PROG = 57344
L_F1 = 57360
L_F2 = 57376
L_FO = 57392
L_FQ = 57408
L_FM = 57424
L_FG = 57440
L_OF = 57600
L_Q = 57856
L_XN = 59392
L_K = 65536; L_V = 98304
L_P = 131072
L_MX = 135168
L_SU = 136192
LDS_BYTES = 137216
W_XC = 0x2000; W_QP = 0x10000; W_GU = 0x20000
W_SP = 0x50000; W_GP = 0x60000; W_OP = 0x80000; W_SIZE = 0x100000
TAGM = 0x3ff
LOG2E = 0x3fb8aa3b
SCALE = 0x3db504f3
DPPM = "row_mask:0xf bank_mask:0xf"

NWAVES = 6
hdr = [f"; fused decode step: LN -> (q proj, sliding-window GQA attention, out proj) * silu(GEGLU FFN) + x",
       f"; 256 workgroups (one per CU): wave 0 streams every weight / K / V tile into LDS, waves 1-4 attention,",
       f"; wave 5 FFN or output finaliser; partial results travel through d_ws as self-tagged 16-byte granules",
       f"; @launch grid=(256,1,1) block=({NWAVES*64},1,1) lds={LDS_BYTES}"]
A('.amdgcn_target "amdgcn-amd-amdhsa--gfx950"')
A(".text"); A(f".globl {NAME}_kernel")
if a.al12: A(".p2align 12")
A(".p2align 8"); A(f".type {NAME}_kernel,@function"); A(f"{NAME}_kernel:")

def ffn_ids(fb, j):
    if a.ex3:
        A(f"""s_mul_i32 s{fb}, s33, 7
s_add_u32 s{fb}, s{fb}, s32
s_cmp_gt_u32 s32, 3
s_subb_u32 s{fb}, s{fb}, 0
s_and_b32 s{j}, s{fb}, 7
s_lshr_b32 s{fb}, s{fb}, 3
s_cmp_eq_u32 s32, 3""")
    else:
        A(f"s_mov_b32 s{fb}, s33\ns_mov_b32 s{j}, s32\ns_cmp_ge_u32 s33, 28")
stamp_n = {}
EARLY = [True]
def tstamp():
    if DIAG and a.tail: stamp('C')
def stamp(role):
    if not DIAG: return
    if a.tail and role == 'C' and EARLY[0]: return
    k = stamp_n.get(role, 1); stamp_n[role] = k + 1
    assert k < 15
    A(f"s_memrealtime s[{64+2*k}:{65+2*k}]")
def cstamp(role, reg="s35"):
    if not DIAG: return
    if a.tail and role == 'C' and EARLY[0]: return
    k = stamp_n.get(role, 1); stamp_n[role] = k + 1
    assert k < 15
    A(f"s_waitcnt lgkmcnt(0)\ns_mul_i32 s{64+2*k}, {reg}, 100\ns_add_u32 s{64+2*k}, s{64+2*k}, s64")
def srd(d, p, n):
    A(f"s_mov_b32 s{d}, s{p}\ns_mov_b32 s{d+1}, s{p+1}\ns_mov_b32 s{d+2}, {n}\ns_mov_b32 s{d+3}, 0x20000")


if DIAG or a.pad: A("s_memrealtime s[64:65]")
A(f"""s_load_dwordx16 s[4:19], s[0:1], 0
s_load_dwordx8 s[20:27], s[0:1], 64
v_lshrrev_b32 v4, 6, v0
v_and_b32 v1, 63, v0
v_readfirstlane_b32 s28, v4
s_cmp_ge_u32 s2, 256
s_cbranch_scc1 L_end
s_and_b32 s29, s2, 7
s_lshr_b32 s30, s2, 3
s_lshr_b32 s31, s30, 3
s_add_u32 s32, s30, {a.cbrot}
s_and_b32 s32, s32, 7
v_lshrrev_b32 v3, 4, v1
s_cmp_lg_u32 s28, 0
s_cbranch_scc1 L_xload""")
A(f"""v_lshrrev_b32 v2, 3, v1
v_and_b32 v5, 7, v1
v_lshlrev_b32 v6, 1, v3
v_xor_b32 v5, v6, v5
v_lshlrev_b32 v5, 4, v5
v_lshl_add_u32 v20, v2, 13, v5
v_mov_b32 v21, v20
s_lshl_b32 s46, s31, 20
s_lshl_b32 s34, s29, 10
s_add_u32 s46, s46, s34
s_lshl_b32 s35, s32, 7
s_add_u32 s46, s46, s35
s_mov_b32 s50, 4194304
s_mov_b32 s51, 0x20000
s_mov_b32 s52, {8*8192-1024}
s_mov_b32 s53, {8*8192+3072}
s_movk_i32 s55, 0x1000
s_mov_b32 s43, -1
s_mov_b32 m0, {L_WQ}
s_mov_b32 s54, 3
s_getpc_b64 s[62:63]
L_pc0:
s_add_u32 s62, s62, L_ld_start - L_pc0
s_addc_u32 s63, s63, 0
s_waitcnt lgkmcnt(0)
s_mov_b32 s48, s10
s_mov_b32 s49, s11""")
stamp('L')
A(f"""L_quads:
buffer_load_dwordx4 v20, s[48:51], s46 offen{NT} lds
s_add_u32 s46, s46, s52
buffer_load_dwordx4 v21, s[48:51], s46 offen offset:1024{NT} lds
s_add_u32 s46, s46, s52
buffer_load_dwordx4 v20, s[48:51], s46 offen offset:2048{NT} lds
s_add_u32 s46, s46, s52
buffer_load_dwordx4 v21, s[48:51], s46 offen offset:3072{NT} lds
s_add_u32 s46, s46, s53
s_add_u32 m0, m0, s55""")
if a.rot or a.wrot:
    A("s_cmp_ge_u32 s46, s43\ns_cselect_b32 s34, s44, 0\ns_cselect_b32 s47, s45, 0\ns_sub_u32 s46, s46, s34\ns_sub_u32 m0, m0, s47")
A("""s_sub_u32 s54, s54, 1
s_cbranch_scc0 L_quads
s_setpc_b64 s[62:63]
L_xload:
v_lshlrev_b32 v4, 4, v1""")
if a.pf0:
    A("""s_getpc_b64 s[34:35]
v_lshlrev_b32 v15, 4, v0
global_load_dwordx4 v[160:163], v15, s[34:35] offset:-1024""" if a.pf0 == 1 else """s_getpc_b64 s[34:35]
v_lshlrev_b32 v15, 4, v0
global_load_dwordx4 v[160:163], v15, s[34:35]""")
A("""s_setprio 3
s_mov_b32 s42, 1024
s_mov_b32 s43, 0x20000
s_waitcnt lgkmcnt(0)
s_mov_b32 s40, s4
s_mov_b32 s41, s5
buffer_load_dwordx4 v[20:23], v4, s[40:43], 0 offen
s_load_dword s44, s[26:27], 0
s_branch L_compute
L_ld3b:
s_barrier
s_branch L_ld3
L_ld_start:""")
QUADS = {'wq': 4, 'g': 2, 'u': 2, 'k': 8, 'v': 8, 'wo': 4, 'dn': 2}
HOLDS = ('HQ', 'HO', 'HG')
def parse(spec):
    out = []
    for o in spec.split(','):
        if ':' in o: n, q = o.split(':'); out.append((n, int(q)))
        else: out.append((o, QUADS.get(o, 0)))
    return out
order = parse(a.order)
assert order[0] == ('wq', 4)
names = [n for n, _ in order]
def completion(order):
    ev = []; done = {}; idx = 0
    for n, q in order:
        if n == 'S': ev.append((idx, 'S'))
        if n not in QUADS: continue
        for j in range(q):
            done[n] = done.get(n, 0) + 1; idx += 1
            if n == 'v' and done[n] % 2 == 0: ev.append((idx, f'v{done[n]//2-1}'))
            elif n != 'v' and done[n] == QUADS[n] and n != 'g': ev.append((idx, n))
    return ev, done
ev, done = completion(order)
assert done == QUADS, done
assert names.index('g') < names.index('u')
PROG = {n: i + 1 for i, (_, n) in enumerate(ev)}
PROG['gu'] = PROG['u']
def signal(p):
    A(f"v_mov_b32 v12, {p}\ns_mov_b64 exec, 1\nds_write_b32 v14, v12\ns_mov_b64 exec, -1")
def wait4(off, lbl, sleep=0):
    A(f"{lbl}:")
    if sleep: A(f"s_sleep {sleep}")
    A(f"""ds_read_b128 v[16:19], v14 offset:{off - L_PROG}
s_waitcnt lgkmcnt(0)
v_and_b32 v16, v16, v17
v_and_b32 v18, v18, v19
v_and_b32 v16, v16, v18
v_readfirstlane_b32 s34, v16
s_cmp_eq_u32 s34, 0
s_cbranch_scc1 {lbl}""")
SEG = {
    'g':  (16, 1835008, (7, 7), 57, 8*3584, L_G),
    'u':  (18, 1835008, (7, 7), 57, 8*3584, L_U),
    'k':  (6, 134217728, (9, 10), 58, 32768 if a.il == 2 else 1024, L_K),
    'v':  (8, 134217728, (9, 10), 58, 32768 if a.il == 2 else 1024, L_V),
    'wo': (12, 4194304, (8, 8), 59, 8*1024, L_WO),
    'dn': (20, 1835008, (8, 8), 60, 8*1024, L_DN),
}
def program(order, pre, bar=False):
    ev, _ = completion(order)
    pend = [(e, PROG[n]) for e, n in ev]
    assert [p for _, p in pend] == sorted(p for _, p in pend)
    st = dict(issued=4, bar=bar, win=a.win // 4, thr=False)
    def emit_sig():
        e, p = pend.pop(0)
        A(f"s_waitcnt vmcnt({4*(st['issued'] - e)})"); signal(p); stamp('L')
    def ensure_barrier():
        if not st['bar']: A("s_barrier"); st['bar'] = True
    cur = 'wq'; donec = {}; curv = None; curstep = 8*8192
    for n, q in order[1:]:
        if n == 'S': continue
        if n[0] == 'T':
            w = int(n[1:]); st['thr'] = w > 0; st['win'] = w if w else a.win // 4
            continue
        if n in HOLDS:
            ensure_barrier()
            if n == 'HG': wait4(L_FG, pre + "hg")
            elif n == 'HQ':
                while PROG['wq'] in [p for _, p in pend]: emit_sig()
                wait4(L_FQ, pre + "hq")
            else:
                while pend and pend[0][0] <= st['issued']: emit_sig()
                A("s_setprio 3")
                wait4(L_FO, pre + "ho")
            stamp('L')
            continue
        ptr, size, vo, base, step, lb = SEG[n]
        d0 = donec.get(n, 0)
        if n != cur:
            A(f"s_mov_b32 s48, s{ptr}\ns_mov_b32 s49, s{ptr+1}\ns_mov_b32 s50, {size}")
            qstep = 131072 if (a.il and n in 'kv') else 4*step
            rot = {'k': (29, a.rot), 'v': (29, a.rot), 'wo': (33, a.wrot), 'dn': (40, a.wrot)}.get(n, (0, 0))
            if rot[1]:
                nq = QUADS[n]
                A(f"s_mul_i32 s34, s{rot[0]}, {rot[1]}\ns_add_u32 s34, s34, {d0}\ns_and_b32 s34, s34, {nq-1}\ns_mul_i32 s46, s34, {qstep}\ns_add_u32 s46, s46, s{base}")
                A(f"s_add_u32 s43, s{base}, {nq*qstep}\ns_mov_b32 s44, {nq*qstep}")
                if n in 'kv': A(f"s_mov_b32 s45, 0\ns_mov_b32 m0, {lb + d0*4096}")
                else: A(f"s_mov_b32 s45, {nq*4096}\ns_lshl_b32 s34, s34, 12\ns_add_u32 m0, s34, {lb}")
            else:
                if d0: A(f"s_add_u32 s46, s{base}, {d0*qstep}")
                else: A(f"s_mov_b32 s46, s{base}")
                if a.rot or a.wrot: A("s_mov_b32 s43, -1")
                A(f"s_mov_b32 m0, {lb + d0*4096}")
            if vo != curv: A(f"v_mov_b32 v20, v{vo[0]}\nv_mov_b32 v21, v{vo[1]}"); curv = vo
            if step != curstep: A(f"s_mov_b32 s52, {step-1024}\ns_mov_b32 s53, {qstep - 3*(step-1024)}"); curstep = step
        cur = n
        left = q
        while left:
            take = left
            if st['thr']: take = 1
            elif not st['bar']: take = min(take, max(1, 8 - st['issued']))
            elif pend:
                due = pend[0][0] + st['win'] - st['issued']
                if 0 < due < take: take = due
            A(f"s_mov_b32 s54, {take-1}\ns_call_b64 s[62:63], L_quads")
            st['issued'] += take; left -= take
            if st['issued'] >= min(8, st['win']): ensure_barrier()
            sig = False
            while st['bar'] and pend and pend[0][0] + st['win'] <= st['issued']: emit_sig(); sig = True
            if st['thr'] and not sig and st['issued'] > st['win']: A(f"s_waitcnt vmcnt({4*st['win']})")
        donec[n] = d0 + q
    ensure_barrier()
    while pend: emit_sig()
    A("s_branch L_fin" if DIAG else "s_endpgm")
A(f"""v_mov_b32 v14, {L_PROG}
s_lshl_b32 s33, s29, 2
s_add_u32 s33, s33, s31
v_mul_u32_u24 v7, 3584, v2
v_add_u32 v7, v7, v5
v_lshl_add_u32 v8, v2, 10, v5
v_and_b32 v2, 15, v1
v_xor_b32 v9, v6, v2
v_lshlrev_b32 v9, 4, v9
v_lshl_add_u32 v9, v3, 8, v9
v_xor_b32 v10, 0x80, v9
s_lshl_b32 s58, s29, 24
s_lshl_b32 s34, s30, {[15, 12, 10][a.il]}
s_add_u32 s58, s58, s34
s_add_u32 s58, s58, {(65536-4096)*256}
s_lshl_b32 s59, s33, 17
s_add_u32 s59, s59, s35""")
if DIAG:
    for i in range(68, 96): A(f"s_mov_b32 s{i}, 0")
ffn_ids(40, 41)
A(f"""s_cbranch_scc1 L_ld3b
s_mul_i32 s57, s41, {64*3584}
s_lshl_b32 s34, s40, 7
s_add_u32 s57, s57, s34
s_lshl_b32 s60, s40, 16
s_lshl_b32 s34, s41, 7
s_add_u32 s60, s60, s34""")
save = dict(stamp_n)
program(order, "L_a")
def second_program():
    A("L_ld3:")
    stamp_n.update(save)
    program(parse(a.order3), "L_b", bar=True)
order = names

OOL = []
def waitprog(p, lbl, sleep=1):
    A(f"s_cmp_ge_u32 s63, {p}\ns_cbranch_scc1 {lbl}_ok")
    A(f"""{lbl}:
ds_read_b32 v15, v14
s_waitcnt lgkmcnt(0)
v_readfirstlane_b32 s63, v15
s_cmp_ge_u32 s63, {p}""")
    if sleep: A(f"s_cbranch_scc1 {lbl}_ok\ns_sleep {sleep}\ns_branch {lbl}")
    else: A(f"s_cbranch_scc0 {lbl}")
    A(f"{lbl}_ok:")
def setflag(off):
    A(f"s_mov_b64 exec, 1\nds_write_b32 v5, v6 offset:{off - L_PROG}\ns_mov_b64 exec, -1")
def sync(off, lbl, reads, prog=False):
    A(f"{lbl}:")
    if prog: A("ds_read_b32 v15, v14")
    A(f"ds_read_b128 v[16:19], v14 offset:{off - L_PROG}")
    A(reads)
    n = sum(1 for l in reads.split("\n") if l.strip().startswith("ds_"))
    A(f"""s_waitcnt lgkmcnt({n})
v_and_b32 v16, v16, v17
v_and_b32 v18, v18, v19
v_and_b32 v16, v16, v18""")
    if prog: A("v_readfirstlane_b32 s63, v15")
    A(f"""v_readfirstlane_b32 s34, v16
s_cmp_eq_u32 s34, 0
s_cbranch_scc1 {lbl}""")
def tag(regs, rnd=False):
    if rnd:
        for r in regs: A(f"v_add_u32 v{r}, {(TAGM+1)//2}, v{r}")
    for r in regs: A(f"v_and_or_b32 v{r}, v{r}, s47, v9")
def check(regs, acc, tmp, dst="vcc"):
    ps = [(regs[i], regs[i+1]) for i in range(0, len(regs), 2)]
    A(f"v_bitop3_b32 v{acc}, v{ps[0][0]}, v{ps[0][1]}, v9 bitop3:0x7e")
    i = 1
    while i < len(ps):
        if i + 1 < len(ps):
            A(f"v_bitop3_b32 v{tmp}, v{ps[i][0]}, v{ps[i][1]}, v9 bitop3:0x7e")
            A(f"v_bitop3_b32 v{tmp+1}, v{ps[i+1][0]}, v{ps[i+1][1]}, v9 bitop3:0x7e")
            A(f"v_or3_b32 v{acc}, v{acc}, v{tmp}, v{tmp+1}"); i += 2
        else:
            A(f"v_bitop3_b32 v{tmp}, v{ps[i][0]}, v{ps[i][1]}, v9 bitop3:0x7e")
            A(f"v_or_b32 v{acc}, v{acc}, v{tmp}"); i += 1
    A(f"v_and_b32 v{acc}, {TAGM}, v{acc}")
    A(f"v_cmp_ne_u32 {dst}, 0, v{acc}")
def untag(regs):
    for r in regs: A(f"v_and_b32 v{r}, s47, v{r}")
def dpp(op, d, s, ctl, bank="0xf"):
    A(f"{op}_dpp v{d}, v{s}, v{s} {ctl} row_mask:0xf bank_mask:{bank}")
def rowred(op, regs, steps=("row_ror:8", "row_ror:4", "row_ror:2", "row_ror:1")):
    for s in steps:
        for r in regs: dpp(op, r, r, s)
def xrow(op, r, t):
    A(f"v_mov_b32 v{t}, v{r}\nv_permlane16_swap_b32 v{t}, v{r}\n{op} v{r}, v{r}, v{t}")
    A(f"v_mov_b32 v{t}, v{r}\nv_permlane32_swap_b32 v{t}, v{r}\n{op} v{r}, v{r}, v{t}")
def bfr(r):
    A(f"v_cvt_pk_bf16_f32 v{r}, v{r}, v{r}\nv_lshlrev_b32 v{r}, 16, v{r}")
def bfr2(r0, r1):
    A(f"v_cvt_pk_bf16_f32 v{r1}, v{r0}, v{r1}\nv_lshlrev_b32 v{r0}, 16, v{r1}\nv_and_b32 v{r1}, 0xffff0000, v{r1}")
def select4(dst, srcs, masks=("s[48:49]", "s[50:51]", "s[52:53]")):
    for t in range(1, len(srcs)):
        for i in range(4):
            s0 = srcs[0] + i if t == 1 else dst + i
            A(f"v_cndmask_b32 v{dst+i}, v{s0}, v{srcs[t]+i}, {masks[t-1]}")
def layernorm():
    for i in range(4):
        A(f"v_lshlrev_b32 v{24+2*i}, 16, v{20+i}\nv_and_b32 v{25+2*i}, 0xffff0000, v{20+i}")
    A("""v_pk_add_f32 v[32:33], v[24:25], v[26:27]
v_pk_add_f32 v[34:35], v[28:29], v[30:31]
v_pk_add_f32 v[32:33], v[32:33], v[34:35]
v_add_f32 v32, v32, v33""")
    rowred("v_add_f32", [32]); xrow("v_add_f32", 32, 33)
    A("v_mul_f32 v32, 0x3b000000, v32")
    for i in range(4): A(f"v_pk_add_f32 v[{36+2*i}:{37+2*i}], v[{24+2*i}:{25+2*i}], v[32:33] op_sel_hi:[1,0] neg_lo:[0,1] neg_hi:[0,1]")
    A("v_pk_mul_f32 v[34:35], v[36:37], v[36:37]")
    for i in range(1, 4): A(f"v_pk_fma_f32 v[34:35], v[{36+2*i}:{37+2*i}], v[{36+2*i}:{37+2*i}], v[34:35]")
    A("v_add_f32 v33, v34, v35")
    rowred("v_add_f32", [33]); xrow("v_add_f32", 33, 34)
    A("v_mul_f32 v33, 0x3b000000, v33")
    bfr2(32, 33)
    A("v_add_f32 v34, 0x3727c5ac, v33")
    for i in range(2): A(f"v_pk_add_f32 v[{24+2*i}:{25+2*i}], v[{24+2*i}:{25+2*i}], v[32:33] op_sel_hi:[1,0] neg_lo:[0,1] neg_hi:[0,1]")
    bfr(34)
    A("v_sqrt_f32 v34, v34")
    for i in range(2, 4): A(f"v_pk_add_f32 v[{24+2*i}:{25+2*i}], v[{24+2*i}:{25+2*i}], v[32:33] op_sel_hi:[1,0] neg_lo:[0,1] neg_hi:[0,1]")
    bfr(34)
    A("v_rcp_f32 v44, v34")
    for i in range(4): bfr2(24+2*i, 25+2*i)
    for i in range(4): A(f"v_pk_mul_f32 v[{36+2*i}:{37+2*i}], v[{24+2*i}:{25+2*i}], v[44:45] op_sel_hi:[1,0]")
    for i in range(4): A(f"v_pk_fma_f32 v[{24+2*i}:{25+2*i}], v[{36+2*i}:{37+2*i}], v[34:35], v[{24+2*i}:{25+2*i}] op_sel_hi:[1,0,1] neg_lo:[1,0,0] neg_hi:[1,0,0]")
    for i in range(4): A(f"v_pk_fma_f32 v[{36+2*i}:{37+2*i}], v[{24+2*i}:{25+2*i}], v[44:45], v[{36+2*i}:{37+2*i}] op_sel_hi:[1,0,1]")
    for i in range(4): A(f"v_cvt_pk_bf16_f32 v{24+i}, v{36+2*i}, v{37+2*i}")
    A("ds_write_b128 v7, v[24:27]")
class Txt:
    def __init__(self): self.l = []
    def __call__(self, t): self.l.append(t)
def check_txt(regs, acc, tmp):
    global A
    keep = A; A = Txt(); check(regs, acc, tmp); t = "\n".join(A.l); A = keep
    return t
def gather(name, groups, allchk, between=None, first=None, rsleep=0, once=False):
    A("s_mov_b32 s35, 0")
    if once: groups = [("\n".join(l for l, _ in groups), allchk)]
    if first: A(first)
    else:
        for l, _ in groups: A(l)
    if between: between()
    if name == "L_og" and DIAG and a.tail:
        A("s_waitcnt vmcnt(0)"); tstamp()
    A("s_waitcnt vmcnt(0)")
    A(allchk)
    A(f"s_cbranch_vccnz {name}_retry\n{name}_done:")
    blk = f"{name}_retry:\n"
    for gi, (load, chk) in enumerate(groups):
        blk += f"{name}_g{gi}:\n{chk}\ns_cbranch_vccz {name}_n{gi}\ns_add_u32 s35, s35, 1\ns_cmp_ge_u32 s35, {a.spin}\ns_cbranch_scc1 {name}_done\n"
        if rsleep: blk += f"s_sleep {rsleep}\n"
        blk += f"s_mov_b64 exec, vcc\n{load}\ns_mov_b64 exec, -1\ns_waitcnt vmcnt(0)\ns_branch {name}_g{gi}\n{name}_n{gi}:\n"
    blk += f"s_branch {name}_done"
    OOL.append(blk)
def tagged(loads, acc, tmp):
    return [(l, check_txt(list(range(r, r+4)), acc, tmp)) for l, r in loads], check_txt(sum((list(range(r, r+4)) for _, r in loads), []), acc, tmp)
def pub(line):
    if not a.fast:
        A(line + " sc1"); return
    pub.n += 1
    A(f"s_cmp_eq_u32 s62, 0\ns_cbranch_scc1 L_ps{pub.n}\n{line}\nL_pd{pub.n}:")
    OOL.append(f"L_ps{pub.n}:\n{line} sc1\ns_branch L_pd{pub.n}")
pub.n = 0
def gettag():
    A(f"""s_waitcnt lgkmcnt(0)
s_add_u32 s44, s44, 1
s_and_b32 s45, s44, {TAGM}
v_mov_b32 v9, s45""")

A("L_compute:")
A(f"""s_mov_b32 s38, {W_SIZE}
s_mov_b32 s39, 0x20000
v_and_b32 v2, 15, v1
v_mov_b32 v14, {L_PROG}
s_lshl_b32 s33, s29, 2
s_add_u32 s33, s33, s31
s_sub_u32 s28, s28, 1
s_mov_b32 s36, s26
s_mov_b32 s37, s27""")
if DIAG:
    for i in range(66, 96): A(f"s_mov_b32 s{i}, 0")
stamp('C')
if a.tlb:
    A(f"""s_cmp_lg_u32 s28, 4
s_cbranch_scc1 L_notlb
s_lshl_b32 s34, s29, 24
s_lshl_b32 s35, s30, {[15, 12, 10][a.il]}
s_add_u32 s34, s34, s35
s_add_u32 s34, s34, {(65536-4096)*256}
s_load_dword s96, s[6:7], s34
s_load_dword s96, s[8:9], s34
s_lshl_b32 s35, s33, 17
s_load_dword s96, s[12:13], s35
""")
    ffn_ids(48, 49)
    A(f"""s_cbranch_scc1 L_notlb
s_mul_i32 s34, s49, {64*3584}
s_load_dword s96, s[16:17], s34
s_load_dword s96, s[18:19], s34
s_lshl_b32 s35, s48, 16
s_load_dword s96, s[20:21], s35
L_notlb:""")
if a.pfcode:
    A(f"""s_cmp_lg_u32 s28, 4
s_cbranch_scc1 L_nopf
s_getpc_b64 s[16:17]
L_pc:
s_min_u32 s34, s30, (L_end - L_pc) / 1024
s_lshl_b32 s34, s34, 10
s_min_u32 s34, s34, L_end - L_pc - 1020
s_add_u32 s16, s16, s34
s_addc_u32 s17, s17, 0
global_load_dwordx4 v[160:163], v4, s[16:17]
L_nopf:""")
def warm_lines():
    if not a.warm: return
    A(f"""s_lshl_b32 s34, s33, 14
s_lshl_b32 s35, s32, 11
s_add_u32 s34, s34, s35
s_add_u32 s34, s34, {W_OP}
v_lshlrev_b32 v15, 7, v1
s_mov_b64 exec, 0xffff
buffer_load_dword v144, v15, s[36:39], s34 offen sc1
s_mov_b64 exec, -1""")
A(f"""s_lshl_b32 s34, s28, 2
v_add_u32 v5, s34, v14
v_mov_b32 v6, 1
s_lshl_b32 s46, s28, 10
s_add_u32 s46, s46, {L_XN}
v_add_u32 v7, s46, v4
s_mov_b32 s63, 0""")
A("""v_lshrrev_b32 v8, 2, v2
v_lshl_add_u32 v8, v3, 2, v8
v_lshrrev_b32 v15, 1, v8
v_and_b32 v15, 3, v15
v_and_b32 v16, 3, v2
v_lshlrev_b32 v16, 3, v16
v_lshl_add_u32 v17, v8, 7, v16
v_lshl_add_u32 v10, v15, 5, v17""")
for t in range(1, 4): A(f"v_xor_b32 v{10+t}, {t*32}, v10")
A(f"""s_mov_b32 s47, {(~TAGM) & 0xffffffff}
s_mov_b32 s54, 0x00010001
s_mov_b32 s55, 0x00010001
s_cmp_lg_u32 s28, 1
s_cbranch_scc1 L_noinit
v_mov_b32 v15, 0
v_lshl_add_u32 v17, v1, 2, v14
ds_write_b32 v17, v15
s_waitcnt lgkmcnt(0)
L_noinit:
s_barrier
s_cmp_eq_u32 s28, 4
s_cbranch_scc1 L_ffn""")

QG, QW, KA, QR, PW, MW, MR, VA, OS, OG, MG, OW, G16, TA_, XG, PR, XR = 136, 137, 138, 142, 143, 144, 145, 146, 148, 149, 150, 151, 152, 153, 154, 155, 156
KF, WOF, PF = 56, 88, 104
A(f"""v_lshlrev_b32 v{G16}, 4, v3
s_lshl_b32 s34, s28, 5
v_xor_b32 v{TA_}, s34, v10
s_lshl_b32 s34, s31, 8
s_add_u32 s34, s34, s46
v_lshl_add_u32 v{XR}, v3, 3, s34
s_lshl_b32 s48, s33, 11
s_lshl_b32 s34, s32, 8
s_add_u32 s48, s48, s34
s_lshl_b32 s34, s28, 6
s_add_u32 s48, s48, s34
s_add_u32 s48, s48, {W_QP}
s_lshl_b32 s50, s29, 9
s_add_u32 s50, s50, {W_XC}
s_lshl_b32 s34, s30, 4
s_add_u32 s51, s50, s34
s_getreg_b32 s61, hwreg(HW_REG_XCC_ID, 0, 4)
s_lshl_b32 s60, s61, 16""")
def late_setup():
    A(f"""v_lshlrev_b32 v15, 4, v2
v_lshl_add_u32 v{QG}, v3, 11, v15
s_mul_i32 s34, s28, 320
s_add_u32 s34, s34, {L_Q}
v_and_b32 v15, 1, v3
v_lshlrev_b32 v17, 7, v15
v_lshl_add_u32 v17, v2, 3, v17
v_lshrrev_b32 v18, 1, v3
v_lshl_add_u32 v17, v18, 2, v17
v_add_u32 v{QW}, s34, v17
v_and_b32 v17, 3, v1
v_lshlrev_b32 v17, 4, v17
v_lshl_add_u32 v17, v15, 1, v17
v_bfe_u32 v15, v1, 2, 1
v_lshl_add_u32 v17, v15, 3, v17
v_bfe_u32 v15, v1, 3, 1
v_lshl_add_u32 v17, v15, 2, v17
s_lshl_b32 s34, s28, 6
s_add_u32 s34, s34, {L_OF}
v_add_u32 v{OW}, s34, v17
v_and_b32 v17, 7, v1
v_lshlrev_b32 v15, 1, v17
v_xor_b32 v15, v15, v3
v_lshlrev_b32 v15, 4, v15
v_lshl_add_u32 v15, v2, 8, v15
s_lshl_b32 s34, s28, 13
s_add_u32 s34, s34, {L_K}
v_add_u32 v{KA}, s34, v15
v_xor_b32 v{KA+1}, 64, v{KA}
v_xor_b32 v{KA+2}, 128, v{KA}
v_xor_b32 v{KA+3}, 192, v{KA}
v_lshrrev_b32 v15, 3, v1
v_lshlrev_b32 v17, 4, v17
v_lshl_add_u32 v{OG}, v15, 9, v17
v_and_b32 v18, 3, v2
v_mul_u32_u24 v{QR}, 320, v18
v_add_u32 v{QR}, v{QR}, v{G16}
s_lshl_b32 s34, s28, 10
s_add_u32 s34, s34, {L_P}
v_add_u32 v{PW}, s34, v4
v_add_u32 v{PR}, {L_P}, v4
v_lshlrev_b32 v15, 3, v1
v_add_u32 v{MR}, {L_MX}, v15
s_lshl_b32 s34, s28, 9
v_add_u32 v{MW}, s34, v{MR}
v_and_b32 v15, 7, v8
s_lshl_b32 s34, s28, 1
v_xor_b32 v15, s34, v15
v_lshlrev_b32 v15, 5, v15
v_lshl_add_u32 v15, v8, 8, v15
v_add_u32 v15, v15, v16
v_add_u32 v{VA}, {L_V}, v15
v_xor_b32 v{VA+1}, 32, v{VA}
v_lshlrev_b32 v15, 14, v18
v_lshrrev_b32 v17, 2, v2
v_lshl_add_u32 v15, v17, 6, v15
v_add_u32 v{OS}, v15, v{G16}
v_and_b32 v{XG}, 31, v1
v_lshlrev_b32 v{XG}, 4, v{XG}
s_lshl_b32 s49, s29, 13
s_lshl_b32 s34, s28, 9
s_add_u32 s49, s49, s34
s_add_u32 s49, s49, {W_QP}
s_lshl_b32 s53, s29, 16
s_lshl_b32 s34, s30, 9
s_add_u32 s53, s53, s34
s_lshl_b32 s35, s28, 7
s_add_u32 s53, s53, s35
s_add_u32 s53, s53, {W_OP}
s_lshl_b32 s56, s33, 14
s_add_u32 s56, s56, s35
s_add_u32 s56, s56, {W_OP}
s_add_u32 s57, s56, 4096
s_add_u32 s4, s56, 8192
s_add_u32 s5, s56, 12288
s_lshl_b32 s59, s32, 13
s_lshl_b32 s34, s33, 6
s_add_u32 s59, s59, s34
s_lshl_b32 s34, s28, 11
s_add_u32 s59, s59, s34
s_add_u32 s59, s59, {W_SP}
s_mov_b32 s46, {LOG2E}
s_mov_b32 s10, {SCALE}
s_mov_b32 s11, {SCALE}
s_mov_b32 s16, 0x000f000f
s_mov_b32 s17, 0x000f000f
s_mov_b32 s18, 0x00f000f0
s_mov_b32 s19, 0x00f000f0
s_mov_b32 s14, 0x00ff00ff
s_mov_b32 s15, 0x00ff00ff""")
if not a.late: late_setup()
A("s_waitcnt vmcnt(0)")
stamp('C')
gettag()
layernorm()
for s in range(4): A(f"ds_read2_b64 v[{24+4*s}:{27+4*s}], v{XR} offset0:{8*s} offset1:{8*s+4}")
A("v_or_b32 v44, s60, v9\nv_mov_b32 v45, v9\nv_mov_b32 v46, v9\nv_mov_b32 v47, v9")
if not a.ackstamp: stamp('C')
waitprog(PROG['wq'], "L_wq", 0)
stamp('C')
for s in range(4):
    A(f"ds_read_b64_tr_b16 v[{56+4*s}:{57+4*s}], v{TA_} offset:{L_WQ + s*4096}")
    A(f"ds_read_b64_tr_b16 v[{58+4*s}:{59+4*s}], v{TA_} offset:{L_WQ + s*4096 + 2048}")
for s in range(4):
    A(f"s_waitcnt lgkmcnt({6-2*s})")
    c = "0" if s == 0 else "v[40:43]"
    A(f"v_mfma_f32_16x16x32_bf16 v[40:43], v[{56+4*s}:{59+4*s}], v[{24+4*s}:{27+4*s}], {c}")
A("s_mov_b64 exec, s[54:55]")
tag(range(40, 44), True)
A(f"""buffer_store_dwordx4 v[40:43], v{G16}, s[36:39], s48 offen sc1
s_mov_b64 exec, 1
s_cmp_lg_u32 s28, 0
s_cbranch_scc1 L_noxc
buffer_store_dwordx4 v[44:47], off, s[36:39], s51 sc1
L_noxc:""")
A(f"ds_write_b32 v5, v6 offset:{L_FQ - L_PROG}\ns_mov_b64 exec, -1")
stamp('C')
A("s_branch L_over3")
keepC = stamp_n.get('C')
second_program()
if keepC: stamp_n['C'] = keepC
A("L_over3:")
if a.late: late_setup()
for i in range(32): A(f"v_mov_b32 v{PF+i}, 0")
A("s_waitcnt vmcnt(0)")
if 'S' in PROG: waitprog(PROG['S'], "L_S")
stamp('C')
def k_frags():
    if 'HG' in order: setflag(L_FG)
    waitprog(PROG['k'], "L_k")
    for t in range(2):
        for s in range(4):
            r = KF + 16*t + 4*s
            A(f"ds_read_b128 v[{r}:{r+3}], v{KA+s} offset:{t*4096}")
gather("L_qg", *tagged([(f"buffer_load_dwordx4 v[24:27], v{QG}, s[36:39], s49 offen sc1", 24),
                        (f"buffer_load_dwordx4 v[28:31], v{QG}, s[36:39], s49 offen offset:256 sc1", 28),
                        (f"buffer_load_dwordx4 v[32:35], v{XG}, s[36:39], s50 offen sc1", 32)], 36, 37), between=k_frags, once=True)
stamp('C'); cstamp('C')
untag(range(24, 32))
A("v_lshrrev_b32 v32, 16, v32")
for i in range(4): A(f"v_permlane16_swap_b32 v{24+i}, v{28+i}")
A("v_cmp_ne_u32 vcc, s61, v32")
A("v_pk_add_f32 v[24:25], v[24:25], v[28:29]\nv_pk_add_f32 v[26:27], v[26:27], v[30:31]")
A("v_permlane32_swap_b32 v24, v26\nv_permlane32_swap_b32 v25, v27")
A("v_pk_add_f32 v[24:25], v[24:25], v[26:27]\nv_cvt_pk_bf16_f32 v24, v24, v25")
A(f"ds_write_b32 v{QW}, v24")
setflag(L_F1)
A("s_cmp_eq_u64 vcc, 0\ns_cselect_b32 s62, 1, 0")
sync(L_F1, "L_s1", "\n".join(f"ds_read_b128 v[{40+4*s}:{43+4*s}], v{QR} offset:{L_Q + 64*s}" for s in range(4)))
for s in range(4):
    A(f"s_waitcnt lgkmcnt({3-s})")
    for t in range(2):
        r = KF + 16*t + 4*s
        c = "0" if s == 0 else f"v[{32+4*t}:{35+4*t}]"
        A(f"v_mfma_f32_16x16x32_bf16 v[{32+4*t}:{35+4*t}], v[{r}:{r+3}], v[{40+4*s}:{43+4*s}], {c}")
for i in range(4): bfr2(32+2*i, 33+2*i)
for i in range(4): A(f"v_pk_mul_f32 v[{32+2*i}:{33+2*i}], v[{32+2*i}:{33+2*i}], s[10:11]")
for i in range(4): bfr2(32+2*i, 33+2*i)
A("""v_max3_f32 v40, v32, v33, v34
v_max3_f32 v41, v35, v36, v37
v_max3_f32 v40, v40, v38, v39
v_max_f32 v40, v40, v41""")
xrow("v_max_f32", 40, 41)
A("v_mul_f32 v40, s46, v40")
for i in range(8): A(f"v_fma_f32 v{32+i}, v{32+i}, s46, -v40")
for i in range(8): A(f"v_exp_f32 v{32+i}, v{32+i}")
A("""v_pk_add_f32 v[42:43], v[32:33], v[34:35]
v_pk_add_f32 v[44:45], v[36:37], v[38:39]""")
for i in range(4): A(f"v_cvt_pk_bf16_f32 v{32+i}, v{32+2*i}, v{33+2*i}")
A(f"ds_write_b128 v{PW}, v[32:35]")
setflag(L_F2)
A("v_pk_add_f32 v[42:43], v[42:43], v[44:45]\nv_add_f32 v41, v42, v43")
xrow("v_add_f32", 41, 42)
A(f"ds_write_b64 v{MW}, v[40:41]")
setflag(L_FM)
wo_early = PROG['wo'] < PROG['v3']
rd = "s_mov_b64 exec, s[16:17]\n" + "\n".join(f"ds_read_b128 v[{PF+8*w}:{PF+3+8*w}], v{PR} offset:{1024*w}" for w in range(4))
rd += "\ns_mov_b64 exec, s[18:19]\n" + "\n".join(f"ds_read_b128 v[{PF+4+8*w}:{PF+7+8*w}], v{PR} offset:{1024*w}" for w in range(4))
rd += "\ns_mov_b64 exec, -1"
sync(L_F2, "L_s2", rd, prog=bool(a.pvopt))
EARLY[0] = False
stamp('C')
def weights():
    sync(L_FM, "L_sm", "\n".join(f"ds_read_b64 v[{76+2*w}:{77+2*w}], v{MR} offset:{512*w}" for w in range(4)), prog=bool(a.pvopt))
    A("s_waitcnt lgkmcnt(0)\nv_max3_f32 v46, v76, v78, v80\nv_max_f32 v46, v46, v82")
    for w in range(4): A(f"v_sub_f32 v{76+2*w}, v{76+2*w}, v46")
    for w in range(4): A(f"v_exp_f32 v{76+2*w}, v{76+2*w}")
    A("s_and_b32 s34, s44, 0x1fffff\nv_mov_b32 v7, s34\nv_mul_f32 v41, v76, v77")
    for w in range(1, 4): A(f"v_fmac_f32 v41, v{76+2*w}, v{77+2*w}")
    A("v_log_f32 v54, v41\nv_rcp_f32 v52, v41\ns_mov_b32 s34, 0xffe00000\nv_add_f32 v54, v54, v46")
    for w in range(4): A(f"v_mul_f32 v{76+2*w}, v{76+2*w}, v52")
    A("v_add_u32 v54, 0x200, v54\nv_and_or_b32 v53, v54, s34, v7\nv_lshlrev_b32 v54, 11, v54\nv_and_or_b32 v55, v54, s34, v7")
def wo_frags():
    waitprog(PROG['wo'], "L_wo", 1 if wo_early else 0)
    for s in range(4):
        A(f"ds_read_b64_tr_b16 v[{WOF+4*s}:{WOF+1+4*s}], v{TA_} offset:{L_WO + s*4096}")
        A(f"ds_read_b64_tr_b16 v[{WOF+2+4*s}:{WOF+3+4*s}], v{TA_} offset:{L_WO + s*4096 + 2048}")
def v_reads(w):
    waitprog(PROG[f'v{w}'], f"L_v{w}", 0)
    if w == 3: stamp('C')
    ar = 24 + 8*(w & 1)
    for t in range(2):
        A(f"ds_read_b64_tr_b16 v[{ar+4*t}:{ar+4*t+1}], v{VA+t} offset:{w*8192}")
        A(f"ds_read_b64_tr_b16 v[{ar+4*t+2}:{ar+4*t+3}], v{VA+t} offset:{w*8192+4096}")
def v_mfma(w, pend):
    ar = 24 + 8*(w & 1); D = 56 + 4*w
    for t in range(2):
        A(f"s_waitcnt lgkmcnt({pend + 2 - 2*t})")
        c = "0" if t == 0 else f"v[{D}:{D+3}]"
        A(f"v_mfma_f32_16x16x32_bf16 v[{D}:{D+3}], v[{ar+4*t}:{ar+4*t+3}], v[{PF+8*w+4*t}:{PF+3+8*w+4*t}], {c}")
def v_acc(w):
    D = 56 + 4*w
    for j in range(2):
        if w == 0: A(f"v_pk_mul_f32 v[{48+2*j}:{49+2*j}], v[{D+2*j}:{D+1+2*j}], v[76:77] op_sel_hi:[1,0]")
        else: A(f"v_pk_fma_f32 v[{48+2*j}:{49+2*j}], v[{D+2*j}:{D+1+2*j}], v[{76+2*w}:{77+2*w}], v[{48+2*j}:{49+2*j}] op_sel_hi:[1,0,1]")
if a.pvopt:
    wo_early = False
    v_reads(0); v_reads(1); v_mfma(0, 4); weights(); v_reads(2); v_mfma(1, 4); v_acc(0); v_reads(3); v_mfma(2, 4); v_acc(1); v_mfma(3, 0); v_acc(2)
else:
    weights()
    if wo_early: wo_frags()
    v_reads(0); v_reads(1); v_mfma(0, 4); v_reads(2); v_mfma(1, 4); v_acc(0); v_reads(3); v_mfma(2, 4); v_acc(1); v_mfma(3, 0); v_acc(2)
A("s_mov_b64 exec, s[14:15]")
v_acc(3)
A("v_cvt_pk_bf16_f32 v52, v48, v49\nv_cvt_pk_bf16_f32 v54, v50, v51")
pub(f"buffer_store_dwordx4 v[52:55], v{OS}, s[36:39], s53 offen")
if 'HO' in order: setflag(L_FO)
else: A("s_mov_b64 exec, -1")
stamp('C')
if a.ackstamp:
    A("s_waitcnt vmcnt(0)"); stamp('C')
OGL = [f"buffer_load_dwordx4 v[{24+4*i}:{27+4*i}], v{OG}, s[36:39], {so} offen sc1" for i, so in enumerate(("s56", "s57", "s4", "s5"))]
def ochk(idx):
    o = [f"v_bitop3_b32 v{40+k}, v{25+4*i}, v{27+4*i}, v7 bitop3:0x7e" for k, i in enumerate(idx)]
    if len(o) == 4: o.append("v_or3_b32 v40, v40, v41, v42\nv_or_b32 v40, v40, v43")
    o.append("v_lshlrev_b32 v40, 11, v40\nv_cmp_ne_u32 vcc, 0, v40")
    return "\n".join(o)
A("s_mov_b32 s34, 0xffe00000")
gather("L_og", [(OGL[i], ochk([i])) for i in range(4)], ochk(range(4)), once=True, between=(None if wo_early or not a.wofirst else wo_frags))
stamp('C'); cstamp('C')
for i in range(4): A(f"v_lshrrev_b32 v{27+4*i}, 11, v{27+4*i}")
for i in range(4): A(f"v_bfi_b32 v{27+4*i}, s34, v{25+4*i}, v{27+4*i}")
for i in range(4): A(f"v_and_b32 v{25+4*i}, s47, v{27+4*i}")
A("v_max3_f32 v40, v25, v29, v33\nv_max_f32 v40, v40, v37")
def unp(i):
    return [f"v_lshlrev_b32 v{56+4*i}, 16, v{24+4*i}", f"v_and_b32 v{57+4*i}, 0xffff0000, v{24+4*i}",
            f"v_lshlrev_b32 v{58+4*i}, 16, v{26+4*i}", f"v_and_b32 v{59+4*i}, 0xffff0000, v{26+4*i}"]
U = sum((unp(i) for i in range(4)), [])
A("\n".join(U[0:2])); dpp("v_max_f32", 40, 40, "row_ror:8")
A("v_mov_b32 v41, v40"); A("\n".join(U[2:4])); A("v_permlane16_swap_b32 v41, v40\nv_max_f32 v40, v40, v41")
A("v_mov_b32 v41, v40"); A("\n".join(U[4:6])); A("v_permlane32_swap_b32 v41, v40\nv_max_f32 v40, v40, v41")
for i in range(4): A(f"v_sub_f32 v{72+2*i}, v{25+4*i}, v40")
for i in range(4): A(f"v_exp_f32 v{72+2*i}, v{72+2*i}")
A("\n".join(U[6:]))
A("v_add_f32 v40, v72, v74\nv_add_f32 v41, v76, v78")
for j in range(2): A(f"v_pk_mul_f32 v[{56+2*j}:{57+2*j}], v[{56+2*j}:{57+2*j}], v[72:73] op_sel_hi:[1,0]")
A("v_add_f32 v40, v40, v41")
for j in range(2): A(f"v_pk_fma_f32 v[{56+2*j}:{57+2*j}], v[{60+2*j}:{61+2*j}], v[74:75], v[{56+2*j}:{57+2*j}] op_sel_hi:[1,0,1]")
dpp("v_add_f32", 40, 40, "row_ror:8")
for j in range(2): A(f"v_pk_fma_f32 v[{56+2*j}:{57+2*j}], v[{64+2*j}:{65+2*j}], v[76:77], v[{56+2*j}:{57+2*j}] op_sel_hi:[1,0,1]")
A("v_mov_b32 v41, v40")
for j in range(2): A(f"v_pk_fma_f32 v[{56+2*j}:{57+2*j}], v[{68+2*j}:{69+2*j}], v[78:79], v[{56+2*j}:{57+2*j}] op_sel_hi:[1,0,1]")
A("v_permlane16_swap_b32 v41, v40\nv_add_f32 v40, v40, v41\nv_mov_b32 v41, v40")
for i in range(2): dpp("v_add_f32", 56+i, 56+i, "row_ror:8", "0x3")
A("v_permlane32_swap_b32 v41, v40")
for i in range(2): dpp("v_add_f32", 56+i, 58+i, "row_ror:8", "0xc")
A("v_add_f32 v40, v40, v41\nv_rcp_f32 v40, v40")
A("v_permlane16_swap_b32 v56, v57\nv_add_f32 v56, v56, v57\nv_mov_b32 v57, v56\nv_permlane32_swap_b32 v57, v56\nv_add_f32 v56, v56, v57")
A(f"v_mul_f32 v56, v56, v40\nv_cvt_pk_bf16_f32 v56, v56, v56\nds_write_b16 v{OW}, v56")
if not wo_early and not a.wofirst: wo_frags()
tstamp()
A("s_waitcnt lgkmcnt(0)\ns_barrier")
tstamp()
if DIAG and a.tail: cstamp('C', 's62')
for s in range(4): A(f"ds_read_b128 v[{24+4*s}:{27+4*s}], v{G16} offset:{L_OF + 64*s}")
A("s_mov_b64 exec, s[54:55]") if False else None
for s in range(4):
    A(f"s_waitcnt lgkmcnt({3-s})")
    c = "0" if s == 0 else "v[40:43]"
    A(f"v_mfma_f32_16x16x32_bf16 v[40:43], v[{WOF+4*s}:{WOF+3+4*s}], v[{24+4*s}:{27+4*s}], {c}")
A("s_mov_b64 exec, s[54:55]")
tag(range(40, 44))
A(f"buffer_store_dwordx4 v[40:43], v{G16}, s[36:39], s59 offen sc1")
if a.clean:
    A(f"s_mov_b64 exec, s[14:15]\nbuffer_store_dwordx4 v[52:55], v{OS}, s[36:39], s53 offen sc1")
stamp('C')
A("s_branch L_fin" if DIAG else "s_endpgm")

for b in reversed(OOL): A(b)
OOL.clear()
A("L_ffn:")
stamp_n['F'] = 2
A("s_mov_b32 s54, 0x000f000f\ns_mov_b32 s55, 0x000f000f")
ffn_ids(60, 61)
A(f"""s_cbranch_scc1 L_final
s_mov_b32 s48, 0x22222222
s_mov_b32 s49, 0x22222222
s_mov_b32 s50, 0x44444444
s_mov_b32 s51, 0x44444444
s_mov_b32 s52, 0x88888888
s_mov_b32 s53, 0x88888888
s_lshl_b32 s34, s61, 7
s_add_u32 s34, s34, s46
v_lshl_add_u32 v128, v3, 3, s34
v_lshl_add_u32 v133, v3, 3, s46
v_lshlrev_b32 v129, 6, v2
v_lshl_add_u32 v129, v3, 4, v129
v_lshlrev_b32 v132, 11, v2
v_lshl_add_u32 v132, v3, 4, v132
s_lshl_b32 s56, s60, 12
s_add_u32 s56, s56, {W_GU}
s_lshl_b32 s35, s61, 9
s_add_u32 s57, s56, s35
v_lshrrev_b32 v17, 1, v3
v_lshlrev_b32 v131, 2, v17
v_lshl_add_u32 v131, v2, 3, v131
v_add_u32 v131, s46, v131
s_lshl_b32 s58, s61, 13
s_lshl_b32 s35, s60, 6
s_add_u32 s58, s58, s35
s_add_u32 s58, s58, {W_GP}
s_waitcnt vmcnt(0)""")
gettag()
layernorm()
for s in range(2): A(f"ds_read2_b64 v[{24+4*s}:{27+4*s}], v128 offset0:{8*s} offset1:{8*s+4}")
waitprog(PROG['gu'], "L_gu")
stamp('F')
def gemv(base, nsteps, bfrag, acc, areg):
    k = 0
    for s in range(nsteps):
        for t in range(4):
            r = areg + 4*k
            A(f"ds_read_b64_tr_b16 v[{r}:{r+1}], v{10+t} offset:{base + s*4096}")
            A(f"ds_read_b64_tr_b16 v[{r+2}:{r+3}], v{10+t} offset:{base + s*4096 + 2048}")
            k += 1
    k = 0; n = nsteps*4
    for s in range(nsteps):
        for t in range(4):
            r = areg + 4*k
            A(f"s_waitcnt lgkmcnt({min(15, 2*(n-1-k))})")
            c = "0" if s == 0 else f"v[{acc+4*t}:{acc+4*t+3}]"
            A(f"v_mfma_f32_16x16x32_bf16 v[{acc+4*t}:{acc+4*t+3}], v[{r}:{r+3}], v[{bfrag+4*s}:{bfrag+4*s+3}], {c}")
            k += 1
gemv(L_G, 2, 24, 32, 64)
gemv(L_U, 2, 24, 48, 96)
select4(32, [32, 36, 40, 44]); select4(48, [48, 52, 56, 60])
tag(list(range(32, 36)) + list(range(48, 52)), True)
A("""s_mov_b64 exec, s[54:55]
buffer_store_dwordx4 v[32:35], v129, s[36:39], s57 offen sc1
buffer_store_dwordx4 v[48:51], v129, s[36:39], s57 offen offset:256 sc1
s_mov_b64 exec, -1""")
warm_lines()
stamp('F')
A("s_waitcnt vmcnt(0)")
stamp('F')
gather("L_gug", *tagged([(f"buffer_load_dwordx4 v[{32+4*i}:{35+4*i}], v4, s[36:39], s56 offen" + (f" offset:{1024*i}" if i else "") + " sc1", 32+4*i) for i in range(4)], 56, 57), rsleep=2, once=True)
stamp('F'); cstamp('F')
untag(range(32, 48))
for j in range(2): A(f"v_pk_add_f32 v[{32+2*j}:{33+2*j}], v[{32+2*j}:{33+2*j}], v[{36+2*j}:{37+2*j}]")
for j in range(2): A(f"v_pk_add_f32 v[{40+2*j}:{41+2*j}], v[{40+2*j}:{41+2*j}], v[{44+2*j}:{45+2*j}]")
for j in range(2): A(f"v_pk_add_f32 v[{32+2*j}:{33+2*j}], v[{32+2*j}:{33+2*j}], v[{40+2*j}:{41+2*j}]")
A("v_permlane32_swap_b32 v32, v34\nv_permlane32_swap_b32 v33, v35\nv_pk_add_f32 v[34:35], v[32:33], v[34:35]")
bfr2(34, 35)
A("v_mov_b32 v32, v34\nv_mov_b32 v33, v35\nv_permlane16_swap_b32 v32, v34\nv_permlane16_swap_b32 v33, v35")
C1 = f32(-2*math.sqrt(2/math.pi)*math.log2(math.e)); C3 = f32(-2*math.sqrt(2/math.pi)*math.log2(math.e)*0.044715)
A(f"s_mov_b32 s60, {C3}\nv_mov_b32 v18, {C1}")
for i in range(2): A(f"v_mul_f32 v{48+i}, v{32+i}, v{32+i}")
for i in range(2): A(f"v_fma_f32 v{48+i}, v{48+i}, s60, v18")
for i in range(2): A(f"v_mul_f32 v{48+i}, v{48+i}, v{32+i}")
for i in range(2): A(f"v_exp_f32 v{48+i}, v{48+i}")
for i in range(2): A(f"v_add_f32 v{48+i}, 1.0, v{48+i}")
for i in range(2): A(f"v_rcp_f32 v{48+i}, v{48+i}")
for i in range(2): A(f"v_mul_f32 v{32+i}, v{32+i}, v{48+i}")
bfr2(32, 33)
A("v_pk_mul_f32 v[32:33], v[32:33], v[34:35]\nv_cvt_pk_bf16_f32 v32, v32, v33\nds_write_b32 v131, v32")
for s in range(2): A(f"ds_read2_b64 v[{24+4*s}:{27+4*s}], v133 offset0:{8*s} offset1:{8*s+4}")
waitprog(PROG['dn'], "L_dn")
stamp('F')
gemv(L_DN, 2, 24, 32, 64)
select4(32, [32, 36, 40, 44])
tag(range(32, 36))
A("""s_mov_b64 exec, s[54:55]
buffer_store_dwordx4 v[32:35], v132, s[36:39], s58 offen sc1
s_mov_b64 exec, -1""")
stamp('F')
A("s_barrier")
A("s_branch L_fin" if DIAG else "s_endpgm")

A("L_final:")
stamp_n['Z'] = 2
if a.ex3: A("s_mov_b32 s34, s33")
else: A("s_lshl_b32 s34, s32, 2\ns_add_u32 s34, s34, s33\ns_sub_u32 s34, s34, 28")
A(f"""s_lshl_b32 s56, s34, 11
s_add_u32 s58, s56, {W_GP}
s_add_u32 s56, s56, {W_SP}
s_lshl_b32 s60, s34, 5
s_mov_b32 s61, s34
v_and_b32 v129, 3, v1
v_lshlrev_b32 v129, 3, v129
v_lshl_add_u32 v129, v3, 1, v129
s_waitcnt vmcnt(0)
buffer_load_ushort v20, v129, s[40:43], s60 offen
s_mov_b32 s46, {LOG2E}""")
waitprog(PROG['gu'], "L_zw", 4)
warm_lines()
A("""v_lshlrev_b32 v15, 5, v1
buffer_load_dword v26, v15, s[36:39], s58 offen sc1""")
gettag()
for i in range(4): A(f"v_mov_b32 v{44+i}, v9")
A("s_mov_b32 s18, -1\ns_mov_b32 s19, 0xffff\ns_waitcnt vmcnt(0)\nv_lshlrev_b32 v20, 16, v20")
srd(40, 22, 1024)
A("s_barrier")
stamp('Z')
def red2(r):
    untag(range(r, r+8))
    A(f"v_pk_add_f32 v[{r}:{r+1}], v[{r}:{r+1}], v[{r+4}:{r+5}]\nv_pk_add_f32 v[{r+2}:{r+3}], v[{r+2}:{r+3}], v[{r+6}:{r+7}]")
    A(f"v_permlane32_swap_b32 v{r}, v{r+2}\nv_permlane32_swap_b32 v{r+1}, v{r+3}\nv_pk_add_f32 v[{r}:{r+1}], v[{r}:{r+1}], v[{r+2}:{r+3}]")
    A(f"v_permlane16_swap_b32 v{r}, v{r+1}\nv_add_f32 v{r}, v{r}, v{r+1}")
    rowred("v_add_f32", [r], ("row_ror:8", "row_ror:4"))
ZG = ["buffer_load_dwordx4 v[40:43], v4, s[36:39], s58 offen sc1", "buffer_load_dwordx4 v[44:47], v4, s[36:39], s58 offen offset:1024 sc1"]
def silu():
    red2(40)
    bfr(40)
    A("v_mul_f32 v44, s46, v40\nv_exp_f32 v44, -v44\nv_add_f32 v44, 1.0, v44\nv_rcp_f32 v44, v44\nv_mul_f32 v40, v40, v44")
    bfr(40)
ZS = "buffer_load_dwordx4 v[24:27], v4, s[36:39], s56 offen sc1\nbuffer_load_dwordx4 v[28:31], v4, s[36:39], s56 offen offset:1024 sc1"
def gpart():
    A("s_waitcnt vmcnt(2)")
    A(check_txt(list(range(40, 48)), 56, 57))
    A("s_cbranch_vccnz L_gg_retry\nL_gg_done:")
    OOL.append("L_gg_retry:\ns_add_u32 s35, s35, 1\ns_cmp_ge_u32 s35, %d\ns_cbranch_scc1 L_gg_done\ns_mov_b64 exec, vcc\n" % a.spin + ZG[0] +
               "\ns_and_b64 exec, exec, s[18:19]\n" + ZG[1] + "\ns_mov_b64 exec, -1\ns_waitcnt vmcnt(0)\n" + check_txt(list(range(40, 48)), 56, 57) +
               "\ns_cbranch_vccnz L_gg_retry\ns_branch L_gg_done")
    stamp('Z'); cstamp('Z')
    silu()
gather("L_sg", [(ZS, check_txt(list(range(24, 32)), 56, 57))], check_txt(list(range(24, 32)), 56, 57), between=gpart,
       first=ZG[0] + "\ns_mov_b64 exec, s[18:19]\n" + ZG[1] + "\ns_mov_b64 exec, -1\n" + ZS)
stamp('Z'); cstamp('Z')
red2(24)
bfr(24)
A("v_mul_f32 v24, v24, v40")
bfr(24)
A("""v_add_f32 v24, v24, v20
v_cvt_pk_bf16_f32 v24, v24, v24
s_mov_b64 exec, s[54:55]
buffer_store_short v24, v129, s[40:43], s60 offen""" + (" " + a.outsc if a.outsc else ""))
stamp('Z')
if DIAG: A("s_waitcnt vmcnt(0)")
stamp('Z')
if a.pad:
    if a.padh >= 0: A(f"s_cmp_lg_u32 s29, {a.padh}\ns_cbranch_scc1 L_pad_done")
    A(f"L_pad:\ns_memrealtime s[66:67]\ns_waitcnt lgkmcnt(0)\ns_sub_u32 s66, s66, s64\ns_cmp_lt_u32 s66, {a.pad}\ns_cbranch_scc1 L_pad\nL_pad_done:")
A("""s_cmp_lg_u32 s61, 31
s_cbranch_scc1 L_fin
s_mov_b64 exec, 1
v_mov_b32 v16, s44
buffer_store_dword v16, off, s[36:39], 0""" + (" " + a.outsc if a.outsc else ""))
A("L_fin:")
if DIAG:
    A("s_mov_b64 exec, -1\ns_waitcnt vmcnt(0)\ns_memrealtime s[94:95]\ns_waitcnt lgkmcnt(0)\nv_mov_b32 v9, 0")
    for i in range(16): A(f"v_writelane_b32 v9, s{64+2*i}, {i}")
    A("v_lshrrev_b32 v4, 6, v0\nv_readfirstlane_b32 s28, v4")
    if DIAG >= 2:
        A(f"s_cmp_lg_u32 s28, {DIAG-2}\ns_cbranch_scc1 L_stop")
        A("s_not_b32 s34, s64\nv_writelane_b32 v9, s34, 0")
        srd(36, 24, 256)
        A("v_lshlrev_b32 v10, 2, v1\ns_mov_b64 exec, 0xffff\nbuffer_atomic_umax v9, v10, s[36:39], 0 offen\ns_endpgm")
    A("s_lshl_b32 s34, s28, 8\ns_add_u32 s34, s34, s2\ns_lshl_b32 s34, s34, 6\ns_add_u32 s34, s34, 0x10000000")
    srd(36, 26, 536870912)
    A("v_lshlrev_b32 v10, 2, v1\ns_mov_b64 exec, 0xffff\nbuffer_store_dword v9, v10, s[36:39], s34 offen")
A("L_stop:\ns_endpgm")
for b in OOL: A(b)
A("L_end:\ns_endpgm")
NV = 164
A('.section .rodata,"a"'); A(".p2align 6"); A(f".amdhsa_kernel {NAME}_kernel")
A(f".amdhsa_next_free_vgpr {NV}\n.amdhsa_next_free_sgpr 102\n.amdhsa_accum_offset {NV}")
A(".amdhsa_group_segment_fixed_size 0\n.amdhsa_kernarg_size 96\n.amdhsa_user_sgpr_count 2")
A(".amdhsa_user_sgpr_kernarg_segment_ptr 1\n.amdhsa_system_sgpr_workgroup_id_x 1\n.end_amdhsa_kernel")
sys.stdout.write("\n".join(hdr) + "\n" + A.text())
```

```python
import sys, argparse, struct, math
sys.path.insert(0, 'tools')
from asmlib import Asm
NAME = "recurrent_scan__sliding_block_cached__geglu_ffn__decode"
ap = argparse.ArgumentParser()
ap.add_argument("--diag", type=int, default=0)
ap.add_argument("--order", default="wq,g,u,k:3,HQ,k:2,S,T5,k:3,dn,HG,T0,wo,v")
ap.add_argument("--win", type=int, default=32)
ap.add_argument("--nt", type=int, default=1)
ap.add_argument("--thr", type=int, default=0)
ap.add_argument("--fast", type=int, default=1)
ap.add_argument("--qdelay", type=int, default=0)
ap.add_argument("--pfcode", type=int, default=1)
ap.add_argument("--warm", type=int, default=1)
ap.add_argument("--tlb", type=int, default=1)
ap.add_argument("--ackstamp", type=int, default=0)
ap.add_argument("--ogflag", default="sc1")
ap.add_argument("--cbrot", type=int, default=0)
ap.add_argument("--ex3", type=int, default=1)
ap.add_argument("--tail", type=int, default=0)
ap.add_argument("--order3", default="wq,k:5,HQ,k:1,S,T5,k:2,wo:3,HG,T0,wo:1,v")
ap.add_argument("--atom", type=int, default=1)
ap.add_argument("--wofirst", type=int, default=1)
ap.add_argument("--clean", type=int, default=0)
ap.add_argument("--outsc", default="")
ap.add_argument("--il", type=int, default=2)
ap.add_argument("--rot", type=int, default=1)
ap.add_argument("--wrot", type=int, default=0)
ap.add_argument("--pad", type=int, default=0)
ap.add_argument("--pvopt", type=int, default=1)
ap.add_argument("--al12", type=int, default=1)
ap.add_argument("--pf0", type=int, default=4)
ap.add_argument("--late", type=int, default=1)
ap.add_argument("--padh", type=int, default=-1)
ap.add_argument("--full", type=int, default=0)
ap.add_argument("--zdelay", type=int, default=0)
ap.add_argument("--gtrig", default="k")
ap.add_argument("--gearly", type=int, default=0)
ap.add_argument("--spin", type=int, default=2000000)
a = ap.parse_args()
DIAG = a.diag
NT = " nt" if a.nt else ""
A = Asm()
def f32(x): return struct.unpack('<I', struct.pack('<f', x))[0]

L_WQ, L_G, L_U, L_WO, L_DN = 0, 16384, 24576, 32768, 49152
L_PROG = 57344
L_F1 = 57360
L_F2 = 57376
L_FO = 57392
L_FQ = 57408
L_FM = 57424
L_FG = 57440
L_OF = 57600
L_Q = 57856
L_XN = 59392
L_K = 65536; L_V = 98304
L_P = 131072
L_MX = 135168
L_SU = 136192
LDS_BYTES = 137216
W_XC = 0x2000; W_QP = 0x10000; W_GU = 0x20000
W_SP = 0x40000 if a.full else 0x50000; W_GP = 0x60000; W_OP = 0x80000; W_SIZE = 0x100000
TAGM = 0x3ff
LOG2E = 0x3fb8aa3b
SCALE = 0x3db504f3
DPPM = "row_mask:0xf bank_mask:0xf"

NWAVES = 6
hdr = [f"; fused decode step: LN -> (q proj, sliding-window GQA attention, out proj) * silu(GEGLU FFN) + x",
       f"; 256 workgroups (one per CU): wave 0 streams every weight / K / V tile into LDS, waves 1-4 attention,",
       f"; wave 5 FFN or output finaliser; partial results travel through d_ws as self-tagged 16-byte granules",
       f"; @launch grid=(256,1,1) block=({NWAVES*64},1,1) lds={LDS_BYTES}"]
A('.amdgcn_target "amdgcn-amd-amdhsa--gfx950"')
A(".text"); A(f".globl {NAME}_kernel")
if a.al12: A(".p2align 12")
A(".p2align 8"); A(f".type {NAME}_kernel,@function"); A(f"{NAME}_kernel:")

def ffn_ids(fb, j):
    if a.ex3:
        A(f"""s_mul_i32 s{fb}, s33, 7
s_add_u32 s{fb}, s{fb}, s32
s_cmp_gt_u32 s32, 3
s_subb_u32 s{fb}, s{fb}, 0
s_and_b32 s{j}, s{fb}, 7
s_lshr_b32 s{fb}, s{fb}, 3
s_cmp_eq_u32 s32, 3""")
    else:
        A(f"s_mov_b32 s{fb}, s33\ns_mov_b32 s{j}, s32\ns_cmp_ge_u32 s33, 28")
stamp_n = {}
EARLY = [True]
def tstamp():
    if DIAG and a.tail: stamp('C')
def stamp(role):
    if not DIAG: return
    if a.tail and role == 'C' and EARLY[0]: return
    k = stamp_n.get(role, 1); stamp_n[role] = k + 1
    assert k < 15
    A(f"s_memrealtime s[{64+2*k}:{65+2*k}]")
def cstamp(role, reg="s35"):
    if not DIAG: return
    if a.tail and role == 'C' and EARLY[0]: return
    k = stamp_n.get(role, 1); stamp_n[role] = k + 1
    assert k < 15
    A(f"s_waitcnt lgkmcnt(0)\ns_mul_i32 s{64+2*k}, {reg}, 100\ns_add_u32 s{64+2*k}, s{64+2*k}, s64")
def srd(d, p, n):
    A(f"s_mov_b32 s{d}, s{p}\ns_mov_b32 s{d+1}, s{p+1}\ns_mov_b32 s{d+2}, {n}\ns_mov_b32 s{d+3}, 0x20000")


if DIAG or a.pad: A("s_memrealtime s[64:65]")
A(f"""s_load_dwordx16 s[4:19], s[0:1], 0
s_load_dwordx8 s[20:27], s[0:1], 64
v_lshrrev_b32 v4, 6, v0
v_and_b32 v1, 63, v0
v_readfirstlane_b32 s28, v4
s_cmp_ge_u32 s2, 256
s_cbranch_scc1 L_end
s_and_b32 s29, s2, 7
s_lshr_b32 s30, s2, 3
s_lshr_b32 s31, s30, 3
s_add_u32 s32, s30, {a.cbrot}
s_and_b32 s32, s32, 7
v_lshrrev_b32 v3, 4, v1
s_cmp_lg_u32 s28, 0
s_cbranch_scc1 L_xload""")
A(f"""v_lshrrev_b32 v2, 3, v1
v_and_b32 v5, 7, v1
v_lshlrev_b32 v6, 1, v3
v_xor_b32 v5, v6, v5
v_lshlrev_b32 v5, 4, v5
v_lshl_add_u32 v20, v2, 13, v5
v_mov_b32 v21, v20
s_lshl_b32 s46, s31, 20
s_lshl_b32 s34, s29, 10
s_add_u32 s46, s46, s34
s_lshl_b32 s35, s32, 7
s_add_u32 s46, s46, s35
s_mov_b32 s50, 4194304
s_mov_b32 s51, 0x20000
s_mov_b32 s52, {8*8192-1024}
s_mov_b32 s53, {8*8192+3072}
s_movk_i32 s55, 0x1000
s_mov_b32 s43, -1
s_mov_b32 m0, {L_WQ}
s_mov_b32 s54, 3
s_getpc_b64 s[62:63]
L_pc0:
s_add_u32 s62, s62, L_ld_start - L_pc0
s_addc_u32 s63, s63, 0
s_waitcnt lgkmcnt(0)
s_mov_b32 s48, s10
s_mov_b32 s49, s11""")
stamp('L')
A(f"""L_quads:
buffer_load_dwordx4 v20, s[48:51], s46 offen{NT} lds
s_add_u32 s46, s46, s52
buffer_load_dwordx4 v21, s[48:51], s46 offen offset:1024{NT} lds
s_add_u32 s46, s46, s52
buffer_load_dwordx4 v20, s[48:51], s46 offen offset:2048{NT} lds
s_add_u32 s46, s46, s52
buffer_load_dwordx4 v21, s[48:51], s46 offen offset:3072{NT} lds
s_add_u32 s46, s46, s53
s_add_u32 m0, m0, s55""")
if a.rot or a.wrot:
    A("s_cmp_ge_u32 s46, s43\ns_cselect_b32 s34, s44, 0\ns_cselect_b32 s47, s45, 0\ns_sub_u32 s46, s46, s34\ns_sub_u32 m0, m0, s47")
A("""s_sub_u32 s54, s54, 1
s_cbranch_scc0 L_quads
s_setpc_b64 s[62:63]
L_xload:
v_lshlrev_b32 v4, 4, v1""")
if a.pf0:
    if a.pf0 > 1: A(f"s_and_b32 s34, s30, {a.pf0 - 1}\ns_cbranch_scc1 L_nopf0")
    A("""s_getpc_b64 s[34:35]
v_lshlrev_b32 v15, 4, v0
global_load_dwordx4 v[160:163], v15, s[34:35] offset:-1024
L_nopf0:""")
A("""s_setprio 3
s_mov_b32 s42, 1024
s_mov_b32 s43, 0x20000
s_waitcnt lgkmcnt(0)
s_mov_b32 s40, s4
s_mov_b32 s41, s5
buffer_load_dwordx4 v[20:23], v4, s[40:43], 0 offen
s_load_dword s44, s[26:27], 0
s_branch L_compute
L_ld3b:
s_barrier
s_branch L_ld3
L_ld_start:""")
QUADS = {'wq': 4, 'g': 2, 'u': 2, 'k': 8, 'v': 8, 'wo': 4, 'dn': 2}
HOLDS = ('HQ', 'HO', 'HG')
def parse(spec):
    out = []
    for o in spec.split(','):
        if ':' in o: n, q = o.split(':'); out.append((n, int(q)))
        else: out.append((o, QUADS.get(o, 0)))
    return out
order = parse(a.order)
assert order[0] == ('wq', 4)
names = [n for n, _ in order]
def completion(order):
    ev = []; done = {}; idx = 0
    for n, q in order:
        if n == 'S': ev.append((idx, 'S'))
        if n not in QUADS: continue
        for j in range(q):
            done[n] = done.get(n, 0) + 1; idx += 1
            if n == 'v' and done[n] % 2 == 0: ev.append((idx, f'v{done[n]//2-1}'))
            elif n != 'v' and done[n] == QUADS[n] and n != 'g': ev.append((idx, n))
    return ev, done
ev, done = completion(order)
assert done == QUADS, done
assert names.index('g') < names.index('u')
PROG = {n: i + 1 for i, (_, n) in enumerate(ev)}
PROG['gu'] = PROG['u']
def signal(p):
    A(f"v_mov_b32 v12, {p}\ns_mov_b64 exec, 1\nds_write_b32 v14, v12\ns_mov_b64 exec, -1")
def wait4(off, lbl, sleep=0):
    A(f"{lbl}:")
    if sleep: A(f"s_sleep {sleep}")
    A(f"""ds_read_b128 v[16:19], v14 offset:{off - L_PROG}
s_waitcnt lgkmcnt(0)
v_and_b32 v16, v16, v17
v_and_b32 v18, v18, v19
v_and_b32 v16, v16, v18
v_readfirstlane_b32 s34, v16
s_cmp_eq_u32 s34, 0
s_cbranch_scc1 {lbl}""")
SEG = {
    'g':  (16, 1835008, (7, 7), 57, 8*3584, L_G),
    'u':  (18, 1835008, (7, 7), 57, 8*3584, L_U),
    'k':  (6, 134217728, (9, 10), 58, 32768 if a.il == 2 else 1024, L_K),
    'v':  (8, 134217728, (9, 10), 58, 32768 if a.il == 2 else 1024, L_V),
    'wo': (12, 4194304, (8, 8), 59, 8*1024, L_WO),
    'dn': (20, 1835008, (8, 8), 60, 8*1024, L_DN),
}
def program(order, pre, bar=False):
    ev, _ = completion(order)
    pend = [(e, PROG[n]) for e, n in ev]
    assert [p for _, p in pend] == sorted(p for _, p in pend)
    st = dict(issued=4, bar=bar, win=a.win // 4, thr=False)
    def emit_sig():
        e, p = pend.pop(0)
        A(f"s_waitcnt vmcnt({4*(st['issued'] - e)})"); signal(p); stamp('L')
    def ensure_barrier():
        if not st['bar']: A("s_barrier"); st['bar'] = True
    cur = 'wq'; donec = {}; curv = None; curstep = 8*8192
    for n, q in order[1:]:
        if n == 'S': continue
        if n[0] == 'T':
            w = int(n[1:]); st['thr'] = w > 0; st['win'] = w if w else a.win // 4
            continue
        if n in HOLDS:
            ensure_barrier()
            if n == 'HG': wait4(L_FG, pre + "hg")
            elif n == 'HQ':
                while PROG['wq'] in [p for _, p in pend]: emit_sig()
                wait4(L_FQ, pre + "hq")
            else:
                while pend and pend[0][0] <= st['issued']: emit_sig()
                A("s_setprio 3")
                wait4(L_FO, pre + "ho")
            stamp('L')
            continue
        ptr, size, vo, base, step, lb = SEG[n]
        d0 = donec.get(n, 0)
        if n != cur:
            A(f"s_mov_b32 s48, s{ptr}\ns_mov_b32 s49, s{ptr+1}\ns_mov_b32 s50, {size}")
            qstep = 131072 if (a.il and n in 'kv') else 4*step
            rot = {'k': (29, a.rot), 'v': (29, a.rot), 'wo': (33, a.wrot), 'dn': (40, a.wrot)}.get(n, (0, 0))
            if rot[1]:
                nq = QUADS[n]
                A(f"s_mul_i32 s34, s{rot[0]}, {rot[1]}\ns_add_u32 s34, s34, {d0}\ns_and_b32 s34, s34, {nq-1}\ns_mul_i32 s46, s34, {qstep}\ns_add_u32 s46, s46, s{base}")
                A(f"s_add_u32 s43, s{base}, {nq*qstep}\ns_mov_b32 s44, {nq*qstep}")
                if n in 'kv': A(f"s_mov_b32 s45, 0\ns_mov_b32 m0, {lb + d0*4096}")
                else: A(f"s_mov_b32 s45, {nq*4096}\ns_lshl_b32 s34, s34, 12\ns_add_u32 m0, s34, {lb}")
            else:
                if d0: A(f"s_add_u32 s46, s{base}, {d0*qstep}")
                else: A(f"s_mov_b32 s46, s{base}")
                if a.rot or a.wrot: A("s_mov_b32 s43, -1")
                A(f"s_mov_b32 m0, {lb + d0*4096}")
            if vo != curv: A(f"v_mov_b32 v20, v{vo[0]}\nv_mov_b32 v21, v{vo[1]}"); curv = vo
            if step != curstep: A(f"s_mov_b32 s52, {step-1024}\ns_mov_b32 s53, {qstep - 3*(step-1024)}"); curstep = step
        cur = n
        left = q
        while left:
            take = left
            if st['thr']: take = 1
            elif not st['bar']: take = min(take, max(1, 8 - st['issued']))
            elif pend:
                due = pend[0][0] + st['win'] - st['issued']
                if 0 < due < take: take = due
            A(f"s_mov_b32 s54, {take-1}\ns_call_b64 s[62:63], L_quads")
            st['issued'] += take; left -= take
            if st['issued'] >= min(8, st['win']): ensure_barrier()
            sig = False
            while st['bar'] and pend and pend[0][0] + st['win'] <= st['issued']: emit_sig(); sig = True
            if st['thr'] and not sig and st['issued'] > st['win']: A(f"s_waitcnt vmcnt({4*st['win']})")
        donec[n] = d0 + q
    ensure_barrier()
    A("s_setprio 3\ns_mov_b64 exec, 1")
    while pend:
        e, p = pend.pop(0)
        A(f"v_mov_b32 v{24+p}, {p}\ns_waitcnt vmcnt({4*(st['issued'] - e)})\nds_write_b32 v14, v{24+p}"); stamp('L')
    A("s_branch L_fin" if DIAG else "s_endpgm")
A(f"""v_mov_b32 v14, {L_PROG}
s_lshl_b32 s33, s29, 2
s_add_u32 s33, s33, s31
v_mul_u32_u24 v7, 3584, v2
v_add_u32 v7, v7, v5
v_lshl_add_u32 v8, v2, 10, v5
v_and_b32 v2, 15, v1
v_xor_b32 v9, v6, v2
v_lshlrev_b32 v9, 4, v9
v_lshl_add_u32 v9, v3, 8, v9
v_xor_b32 v10, 0x80, v9
s_lshl_b32 s58, s29, 24
s_lshl_b32 s34, s30, {[15, 12, 10][a.il]}
s_add_u32 s58, s58, s34
s_add_u32 s58, s58, {(65536-4096)*256}
s_lshl_b32 s59, s33, 17
s_add_u32 s59, s59, s35""")
if DIAG:
    for i in range(68, 96): A(f"s_mov_b32 s{i}, 0")
ffn_ids(40, 41)
A(f"""s_cbranch_scc1 L_ld3b
s_mul_i32 s57, s41, {64*3584}
s_lshl_b32 s34, s40, 7
s_add_u32 s57, s57, s34
s_lshl_b32 s60, s40, 16
s_lshl_b32 s34, s41, 7
s_add_u32 s60, s60, s34""")
save = dict(stamp_n)
program(order, "L_a")
def second_program():
    A("L_ld3:")
    stamp_n.update(save)
    program(parse(a.order3), "L_b", bar=True)
order = names

OOL = []
def waitprog(p, lbl, sleep=1):
    A(f"s_cmp_ge_u32 s63, {p}\ns_cbranch_scc1 {lbl}_ok")
    A(f"""{lbl}:
ds_read_b32 v15, v14
s_waitcnt lgkmcnt(0)
v_readfirstlane_b32 s63, v15
s_cmp_ge_u32 s63, {p}""")
    if sleep: A(f"s_cbranch_scc1 {lbl}_ok\ns_sleep {sleep}\ns_branch {lbl}")
    else: A(f"s_cbranch_scc0 {lbl}")
    A(f"{lbl}_ok:")
def setflag(off):
    A(f"s_mov_b64 exec, 1\nds_write_b32 v5, v6 offset:{off - L_PROG}\ns_mov_b64 exec, -1")
def sync(off, lbl, reads, prog=False):
    A(f"{lbl}:")
    if prog: A("ds_read_b32 v15, v14")
    A(f"ds_read_b128 v[16:19], v14 offset:{off - L_PROG}")
    A(reads)
    n = sum(1 for l in reads.split("\n") if l.strip().startswith("ds_"))
    A(f"""s_waitcnt lgkmcnt({n})
v_and_b32 v16, v16, v17
v_and_b32 v18, v18, v19
v_and_b32 v16, v16, v18""")
    if prog: A("v_readfirstlane_b32 s63, v15")
    A(f"""v_readfirstlane_b32 s34, v16
s_cmp_eq_u32 s34, 0
s_cbranch_scc1 {lbl}""")
def tag(regs, rnd=False):
    if rnd:
        for r in regs: A(f"v_add_u32 v{r}, {(TAGM+1)//2}, v{r}")
    for r in regs: A(f"v_and_or_b32 v{r}, v{r}, s47, v9")
def check(regs, acc, tmp, dst="vcc"):
    ps = [(regs[i], regs[i+1]) for i in range(0, len(regs), 2)]
    A(f"v_bitop3_b32 v{acc}, v{ps[0][0]}, v{ps[0][1]}, v9 bitop3:0x7e")
    i = 1
    while i < len(ps):
        if i + 1 < len(ps):
            A(f"v_bitop3_b32 v{tmp}, v{ps[i][0]}, v{ps[i][1]}, v9 bitop3:0x7e")
            A(f"v_bitop3_b32 v{tmp+1}, v{ps[i+1][0]}, v{ps[i+1][1]}, v9 bitop3:0x7e")
            A(f"v_or3_b32 v{acc}, v{acc}, v{tmp}, v{tmp+1}"); i += 2
        else:
            A(f"v_bitop3_b32 v{tmp}, v{ps[i][0]}, v{ps[i][1]}, v9 bitop3:0x7e")
            A(f"v_or_b32 v{acc}, v{acc}, v{tmp}"); i += 1
    A(f"v_and_b32 v{acc}, {TAGM}, v{acc}")
    A(f"v_cmp_ne_u32 {dst}, 0, v{acc}")
def untag(regs):
    for r in regs: A(f"v_and_b32 v{r}, s47, v{r}")
def dpp(op, d, s, ctl, bank="0xf"):
    A(f"{op}_dpp v{d}, v{s}, v{s} {ctl} row_mask:0xf bank_mask:{bank}")
def rowred(op, regs, steps=("row_ror:8", "row_ror:4", "row_ror:2", "row_ror:1")):
    for s in steps:
        for r in regs: dpp(op, r, r, s)
def xrow(op, r, t):
    A(f"v_mov_b32 v{t}, v{r}\nv_permlane16_swap_b32 v{t}, v{r}\n{op} v{r}, v{r}, v{t}")
    A(f"v_mov_b32 v{t}, v{r}\nv_permlane32_swap_b32 v{t}, v{r}\n{op} v{r}, v{r}, v{t}")
def bfr(r):
    A(f"v_cvt_pk_bf16_f32 v{r}, v{r}, v{r}\nv_lshlrev_b32 v{r}, 16, v{r}")
def bfr2(r0, r1):
    A(f"v_cvt_pk_bf16_f32 v{r1}, v{r0}, v{r1}\nv_lshlrev_b32 v{r0}, 16, v{r1}\nv_and_b32 v{r1}, 0xffff0000, v{r1}")
def select4(dst, srcs, masks=("s[48:49]", "s[50:51]", "s[52:53]")):
    for t in range(1, len(srcs)):
        for i in range(4):
            s0 = srcs[0] + i if t == 1 else dst + i
            A(f"v_cndmask_b32 v{dst+i}, v{s0}, v{srcs[t]+i}, {masks[t-1]}")
def layernorm():
    for i in range(4):
        A(f"v_lshlrev_b32 v{24+2*i}, 16, v{20+i}\nv_and_b32 v{25+2*i}, 0xffff0000, v{20+i}")
    A("""v_pk_add_f32 v[32:33], v[24:25], v[26:27]
v_pk_add_f32 v[34:35], v[28:29], v[30:31]
v_pk_add_f32 v[32:33], v[32:33], v[34:35]
v_add_f32 v32, v32, v33""")
    rowred("v_add_f32", [32]); xrow("v_add_f32", 32, 33)
    A("v_mul_f32 v32, 0x3b000000, v32")
    for i in range(4): A(f"v_pk_add_f32 v[{36+2*i}:{37+2*i}], v[{24+2*i}:{25+2*i}], v[32:33] op_sel_hi:[1,0] neg_lo:[0,1] neg_hi:[0,1]")
    A("v_pk_mul_f32 v[34:35], v[36:37], v[36:37]")
    for i in range(1, 4): A(f"v_pk_fma_f32 v[34:35], v[{36+2*i}:{37+2*i}], v[{36+2*i}:{37+2*i}], v[34:35]")
    A("v_add_f32 v33, v34, v35")
    rowred("v_add_f32", [33]); xrow("v_add_f32", 33, 34)
    A("v_mul_f32 v33, 0x3b000000, v33")
    bfr2(32, 33)
    A("v_add_f32 v34, 0x3727c5ac, v33")
    for i in range(2): A(f"v_pk_add_f32 v[{24+2*i}:{25+2*i}], v[{24+2*i}:{25+2*i}], v[32:33] op_sel_hi:[1,0] neg_lo:[0,1] neg_hi:[0,1]")
    bfr(34)
    A("v_sqrt_f32 v34, v34")
    for i in range(2, 4): A(f"v_pk_add_f32 v[{24+2*i}:{25+2*i}], v[{24+2*i}:{25+2*i}], v[32:33] op_sel_hi:[1,0] neg_lo:[0,1] neg_hi:[0,1]")
    bfr(34)
    A("v_rcp_f32 v44, v34")
    for i in range(4): bfr2(24+2*i, 25+2*i)
    for i in range(4): A(f"v_pk_mul_f32 v[{36+2*i}:{37+2*i}], v[{24+2*i}:{25+2*i}], v[44:45] op_sel_hi:[1,0]")
    for i in range(4): A(f"v_pk_fma_f32 v[{24+2*i}:{25+2*i}], v[{36+2*i}:{37+2*i}], v[34:35], v[{24+2*i}:{25+2*i}] op_sel_hi:[1,0,1] neg_lo:[1,0,0] neg_hi:[1,0,0]")
    for i in range(4): A(f"v_pk_fma_f32 v[{36+2*i}:{37+2*i}], v[{24+2*i}:{25+2*i}], v[44:45], v[{36+2*i}:{37+2*i}] op_sel_hi:[1,0,1]")
    for i in range(4): A(f"v_cvt_pk_bf16_f32 v{24+i}, v{36+2*i}, v{37+2*i}")
    A("ds_write_b128 v7, v[24:27]")
class Txt:
    def __init__(self): self.l = []
    def __call__(self, t): self.l.append(t)
def check_txt(regs, acc, tmp):
    global A
    keep = A; A = Txt(); check(regs, acc, tmp); t = "\n".join(A.l); A = keep
    return t
def gather(name, groups, allchk, between=None, first=None, rsleep=0, once=False):
    A("s_mov_b32 s35, 0")
    if once: groups = [("\n".join(l for l, _ in groups), allchk)]
    if first: A(first)
    else:
        for l, _ in groups: A(l)
    if between: between()
    if name == "L_og" and DIAG and a.tail:
        A("s_waitcnt vmcnt(0)"); tstamp()
    A("s_waitcnt vmcnt(0)")
    A(allchk)
    A(f"s_cbranch_vccnz {name}_retry\n{name}_done:")
    assert len(groups) == 1
    load, chk = groups[0]
    blk = f"{name}_retry:\n"
    if rsleep: blk += f"s_sleep {rsleep}\n"
    blk += f"s_mov_b64 exec, vcc\n{load}\ns_mov_b64 exec, -1\ns_add_u32 s35, s35, 1\ns_cmp_ge_u32 s35, {a.spin}\ns_waitcnt vmcnt(0)\ns_cbranch_scc1 {name}_done\n"
    blk += f"{chk}\ns_cbranch_vccnz {name}_retry\ns_branch {name}_done"
    OOL.append(blk)
def tagged(loads, acc, tmp):
    return [(l, check_txt(list(range(r, r+4)), acc, tmp)) for l, r in loads], check_txt(sum((list(range(r, r+4)) for _, r in loads), []), acc, tmp)
def pub(line):
    if not a.fast:
        A(line + " sc1"); return
    pub.n += 1
    A(f"s_cmp_eq_u32 s62, 0\ns_cbranch_scc1 L_ps{pub.n}\n{line}\nL_pd{pub.n}:")
    OOL.append(f"L_ps{pub.n}:\n{line} sc1\ns_branch L_pd{pub.n}")
pub.n = 0
def gettag():
    A(f"""s_waitcnt lgkmcnt(0)
s_add_u32 s44, s44, 1
s_and_b32 s45, s44, {TAGM}
v_mov_b32 v9, s45""")

A("L_compute:")
A(f"""s_mov_b32 s38, {W_SIZE}
s_mov_b32 s39, 0x20000
v_and_b32 v2, 15, v1
v_mov_b32 v14, {L_PROG}
s_lshl_b32 s33, s29, 2
s_add_u32 s33, s33, s31
s_sub_u32 s28, s28, 1
s_mov_b32 s36, s26
s_mov_b32 s37, s27""")
if DIAG:
    for i in range(66, 96): A(f"s_mov_b32 s{i}, 0")
stamp('C')
if a.tlb:
    A(f"""s_cmp_lg_u32 s28, 4
s_cbranch_scc1 L_notlb
s_lshl_b32 s34, s29, 24
s_lshl_b32 s35, s30, {[15, 12, 10][a.il]}
s_add_u32 s34, s34, s35
s_add_u32 s34, s34, {(65536-4096)*256}
s_load_dword s96, s[6:7], s34
s_load_dword s96, s[8:9], s34
s_lshl_b32 s35, s33, 17
s_load_dword s96, s[12:13], s35
""")
    ffn_ids(48, 49)
    A(f"""s_cbranch_scc1 L_notlb
s_mul_i32 s34, s49, {64*3584}
s_load_dword s96, s[16:17], s34
s_load_dword s96, s[18:19], s34
s_lshl_b32 s35, s48, 16
s_load_dword s96, s[20:21], s35
L_notlb:""")
if a.pfcode:
    A(f"""s_cmp_lg_u32 s28, 4
s_cbranch_scc1 L_nopf
s_getpc_b64 s[16:17]
L_pc:
s_min_u32 s34, s30, (L_end - L_pc) / 1024
s_lshl_b32 s34, s34, 10
s_min_u32 s34, s34, L_end - L_pc - 1020
s_add_u32 s16, s16, s34
s_addc_u32 s17, s17, 0
global_load_dwordx4 v[160:163], v4, s[16:17]
L_nopf:""")
def warm_lines():
    if not a.warm: return
    A(f"""s_lshl_b32 s34, s33, 14
s_lshl_b32 s35, s32, 11
s_add_u32 s34, s34, s35
s_add_u32 s34, s34, {W_OP}
v_lshlrev_b32 v15, 7, v1
s_mov_b64 exec, 0xffff
buffer_load_dword v144, v15, s[36:39], s34 offen sc1
s_mov_b64 exec, -1""")
A(f"""s_lshl_b32 s34, s28, 2
v_add_u32 v5, s34, v14
v_mov_b32 v6, 1
s_lshl_b32 s46, s28, 10
s_add_u32 s46, s46, {L_XN}
v_add_u32 v7, s46, v4
s_mov_b32 s63, 0""")
A("""v_lshrrev_b32 v8, 2, v2
v_lshl_add_u32 v8, v3, 2, v8
v_lshrrev_b32 v15, 1, v8
v_and_b32 v15, 3, v15
v_and_b32 v16, 3, v2
v_lshlrev_b32 v16, 3, v16
v_lshl_add_u32 v17, v8, 7, v16
v_lshl_add_u32 v10, v15, 5, v17""")
for t in range(1, 4): A(f"v_xor_b32 v{10+t}, {t*32}, v10")
A(f"""s_mov_b32 s47, {(~TAGM) & 0xffffffff}
s_mov_b32 s54, 0x00010001
s_mov_b32 s55, 0x00010001
s_cmp_lg_u32 s28, 1
s_cbranch_scc1 L_noinit
v_mov_b32 v15, 0
v_lshl_add_u32 v17, v1, 2, v14
ds_write_b32 v17, v15
s_waitcnt lgkmcnt(0)
L_noinit:
s_barrier
s_cmp_eq_u32 s28, 4
s_cbranch_scc1 L_ffn""")

QG, QW, KA, QR, PW, MW, MR, VA, OS, OG, MG, OW, G16, TA_, XG, PR, XR = 136, 137, 138, 142, 143, 144, 145, 146, 148, 149, 150, 151, 152, 153, 154, 155, 156
KF, WOF, PF = 56, 88, 104
A(f"""v_lshlrev_b32 v{G16}, 4, v3
s_lshl_b32 s34, s28, 5
v_xor_b32 v{TA_}, s34, v10
s_lshl_b32 s34, s31, 8
s_add_u32 s34, s34, s46
v_lshl_add_u32 v{XR}, v3, 3, s34
s_lshl_b32 s48, s33, 11
s_lshl_b32 s34, s32, 8
s_add_u32 s48, s48, s34
s_lshl_b32 s34, s28, 6
s_add_u32 s48, s48, s34
s_add_u32 s48, s48, {W_QP}
s_lshl_b32 s50, s29, 9
s_add_u32 s50, s50, {W_XC}
s_lshl_b32 s34, s30, 4
s_add_u32 s51, s50, s34
s_getreg_b32 s61, hwreg(HW_REG_XCC_ID, 0, 4)
s_lshl_b32 s60, s61, 16""")
def late_setup():
    A(f"""v_lshlrev_b32 v15, 4, v2
v_lshl_add_u32 v{QG}, v3, 11, v15
s_mul_i32 s34, s28, 320
s_add_u32 s34, s34, {L_Q}
v_and_b32 v15, 1, v3
v_lshlrev_b32 v17, 7, v15
v_lshl_add_u32 v17, v2, 3, v17
v_lshrrev_b32 v18, 1, v3
v_lshl_add_u32 v17, v18, 2, v17
v_add_u32 v{QW}, s34, v17
v_and_b32 v17, 3, v1
v_lshlrev_b32 v17, 4, v17
v_lshl_add_u32 v17, v15, 1, v17
v_bfe_u32 v15, v1, 2, 1
v_lshl_add_u32 v17, v15, 3, v17
v_bfe_u32 v15, v1, 3, 1
v_lshl_add_u32 v17, v15, 2, v17
s_lshl_b32 s34, s28, 6
s_add_u32 s34, s34, {L_OF}
v_add_u32 v{OW}, s34, v17
v_and_b32 v17, 7, v1
v_lshlrev_b32 v15, 1, v17
v_xor_b32 v15, v15, v3
v_lshlrev_b32 v15, 4, v15
v_lshl_add_u32 v15, v2, 8, v15
s_lshl_b32 s34, s28, 13
s_add_u32 s34, s34, {L_K}
v_add_u32 v{KA}, s34, v15
v_xor_b32 v{KA+1}, 64, v{KA}
v_xor_b32 v{KA+2}, 128, v{KA}
v_xor_b32 v{KA+3}, 192, v{KA}
v_lshrrev_b32 v15, 3, v1
v_lshlrev_b32 v17, 4, v17
v_lshl_add_u32 v{OG}, v15, 9, v17
v_and_b32 v18, 3, v2
v_mul_u32_u24 v{QR}, 320, v18
v_add_u32 v{QR}, v{QR}, v{G16}
s_lshl_b32 s34, s28, 10
s_add_u32 s34, s34, {L_P}
v_add_u32 v{PW}, s34, v4
v_add_u32 v{PR}, {L_P}, v4
v_lshlrev_b32 v15, 3, v1
v_add_u32 v{MR}, {L_MX}, v15
s_lshl_b32 s34, s28, 9
v_add_u32 v{MW}, s34, v{MR}
v_and_b32 v15, 7, v8
s_lshl_b32 s34, s28, 1
v_xor_b32 v15, s34, v15
v_lshlrev_b32 v15, 5, v15
v_lshl_add_u32 v15, v8, 8, v15
v_add_u32 v15, v15, v16
v_add_u32 v{VA}, {L_V}, v15
v_xor_b32 v{VA+1}, 32, v{VA}
v_lshlrev_b32 v15, 14, v18
v_lshrrev_b32 v17, 2, v2
v_lshl_add_u32 v15, v17, 6, v15
v_add_u32 v{OS}, v15, v{G16}
v_and_b32 v{XG}, 31, v1
v_lshlrev_b32 v{XG}, 4, v{XG}
s_lshl_b32 s49, s29, 13
s_lshl_b32 s34, s28, 9
s_add_u32 s49, s49, s34
s_add_u32 s49, s49, {W_QP}
s_lshl_b32 s53, s29, 16
s_lshl_b32 s34, s30, 9
s_add_u32 s53, s53, s34
s_lshl_b32 s35, s28, 7
s_add_u32 s53, s53, s35
s_add_u32 s53, s53, {W_OP}
s_lshl_b32 s56, s33, 14
s_add_u32 s56, s56, s35
s_add_u32 s56, s56, {W_OP}
s_add_u32 s57, s56, 4096
s_add_u32 s4, s56, 8192
s_add_u32 s5, s56, 12288
s_lshl_b32 s59, s32, {13 + a.full}
s_lshl_b32 s34, s33, {6 + a.full}
s_add_u32 s59, s59, s34
s_lshl_b32 s34, s28, {11 + a.full}
s_add_u32 s59, s59, s34
v_lshl_add_u32 v157, v2, 6, v{G16}
s_add_u32 s59, s59, {W_SP}
s_mov_b32 s46, {LOG2E}
s_mov_b32 s10, {SCALE}
s_mov_b32 s11, {SCALE}
s_mov_b32 s16, 0x000f000f
s_mov_b32 s17, 0x000f000f
s_mov_b32 s18, 0x00f000f0
s_mov_b32 s19, 0x00f000f0
s_mov_b32 s14, 0x00ff00ff
s_mov_b32 s15, 0x00ff00ff""")
if not a.late: late_setup()
A("s_waitcnt vmcnt(0)")
stamp('C')
gettag()
layernorm()
for s in range(4): A(f"ds_read2_b64 v[{24+4*s}:{27+4*s}], v{XR} offset0:{8*s} offset1:{8*s+4}")
A("v_or_b32 v44, s60, v9\nv_mov_b32 v45, v9\nv_mov_b32 v46, v9\nv_mov_b32 v47, v9")
if not a.ackstamp: stamp('C')
waitprog(PROG['wq'], "L_wq", 0)
stamp('C')
for s in range(4):
    A(f"ds_read_b64_tr_b16 v[{56+4*s}:{57+4*s}], v{TA_} offset:{L_WQ + s*4096}")
    A(f"ds_read_b64_tr_b16 v[{58+4*s}:{59+4*s}], v{TA_} offset:{L_WQ + s*4096 + 2048}")
for s in range(4):
    A(f"s_waitcnt lgkmcnt({6-2*s})")
    c = "0" if s == 0 else "v[40:43]"
    A(f"v_mfma_f32_16x16x32_bf16 v[40:43], v[{56+4*s}:{59+4*s}], v[{24+4*s}:{27+4*s}], {c}")
A("s_mov_b64 exec, s[54:55]")
tag(range(40, 44), True)
A(f"""buffer_store_dwordx4 v[40:43], v{G16}, s[36:39], s48 offen sc1
s_mov_b64 exec, 1
s_cmp_lg_u32 s28, 0
s_cbranch_scc1 L_noxc
buffer_store_dwordx4 v[44:47], off, s[36:39], s51 sc1
L_noxc:""")
A(f"ds_write_b32 v5, v6 offset:{L_FQ - L_PROG}\ns_mov_b64 exec, -1")
stamp('C')
A("s_branch L_over3")
keepC = stamp_n.get('C')
second_program()
if keepC: stamp_n['C'] = keepC
A("L_over3:")
if a.late: late_setup()
for i in range(32): A(f"v_mov_b32 v{PF+i}, 0")
A("s_waitcnt vmcnt(0)")
if 'S' in PROG: waitprog(PROG['S'], "L_S")
stamp('C')
def k_frags():
    if 'HG' in order: setflag(L_FG)
    waitprog(PROG['k'], "L_k")
    for t in range(2):
        for s in range(4):
            r = KF + 16*t + 4*s
            A(f"ds_read_b128 v[{r}:{r+3}], v{KA+s} offset:{t*4096}")
gather("L_qg", *tagged([(f"buffer_load_dwordx4 v[24:27], v{QG}, s[36:39], s49 offen sc1", 24),
                        (f"buffer_load_dwordx4 v[28:31], v{QG}, s[36:39], s49 offen offset:256 sc1", 28),
                        (f"buffer_load_dwordx4 v[32:35], v{XG}, s[36:39], s50 offen sc1", 32)], 36, 37), between=k_frags, once=True)
stamp('C'); cstamp('C')
untag(range(24, 32))
A("v_lshrrev_b32 v32, 16, v32")
for i in range(4): A(f"v_permlane16_swap_b32 v{24+i}, v{28+i}")
A("v_cmp_ne_u32 vcc, s61, v32")
A("v_pk_add_f32 v[24:25], v[24:25], v[28:29]\nv_pk_add_f32 v[26:27], v[26:27], v[30:31]")
A("v_permlane32_swap_b32 v24, v26\nv_permlane32_swap_b32 v25, v27")
A("v_pk_add_f32 v[24:25], v[24:25], v[26:27]\nv_cvt_pk_bf16_f32 v24, v24, v25")
A(f"ds_write_b32 v{QW}, v24")
setflag(L_F1)
A("s_cmp_eq_u64 vcc, 0\ns_cselect_b32 s62, 1, 0")
sync(L_F1, "L_s1", "\n".join(f"ds_read_b128 v[{40+4*s}:{43+4*s}], v{QR} offset:{L_Q + 64*s}" for s in range(4)))
for s in range(4):
    A(f"s_waitcnt lgkmcnt({3-s})")
    for t in range(2):
        r = KF + 16*t + 4*s
        c = "0" if s == 0 else f"v[{32+4*t}:{35+4*t}]"
        A(f"v_mfma_f32_16x16x32_bf16 v[{32+4*t}:{35+4*t}], v[{r}:{r+3}], v[{40+4*s}:{43+4*s}], {c}")
for i in range(4): bfr2(32+2*i, 33+2*i)
for i in range(4): A(f"v_pk_mul_f32 v[{32+2*i}:{33+2*i}], v[{32+2*i}:{33+2*i}], s[10:11]")
for i in range(4): bfr2(32+2*i, 33+2*i)
A("""v_max3_f32 v40, v32, v33, v34
v_max3_f32 v41, v35, v36, v37
v_max3_f32 v40, v40, v38, v39
v_max_f32 v40, v40, v41""")
xrow("v_max_f32", 40, 41)
A("v_mul_f32 v40, s46, v40")
for i in range(8): A(f"v_fma_f32 v{32+i}, v{32+i}, s46, -v40")
for i in range(8): A(f"v_exp_f32 v{32+i}, v{32+i}")
A("""v_pk_add_f32 v[42:43], v[32:33], v[34:35]
v_pk_add_f32 v[44:45], v[36:37], v[38:39]""")
for i in range(4): A(f"v_cvt_pk_bf16_f32 v{32+i}, v{32+2*i}, v{33+2*i}")
A(f"ds_write_b128 v{PW}, v[32:35]")
setflag(L_F2)
A("v_pk_add_f32 v[42:43], v[42:43], v[44:45]\nv_add_f32 v41, v42, v43")
xrow("v_add_f32", 41, 42)
A(f"ds_write_b64 v{MW}, v[40:41]")
setflag(L_FM)
wo_early = PROG['wo'] < PROG['v3']
rd = "s_mov_b64 exec, s[16:17]\n" + "\n".join(f"ds_read_b128 v[{PF+8*w}:{PF+3+8*w}], v{PR} offset:{1024*w}" for w in range(4))
rd += "\ns_mov_b64 exec, s[18:19]\n" + "\n".join(f"ds_read_b128 v[{PF+4+8*w}:{PF+7+8*w}], v{PR} offset:{1024*w}" for w in range(4))
rd += "\ns_mov_b64 exec, -1"
sync(L_F2, "L_s2", rd, prog=bool(a.pvopt))
EARLY[0] = False
stamp('C')
def weights():
    sync(L_FM, "L_sm", "\n".join(f"ds_read_b64 v[{76+2*w}:{77+2*w}], v{MR} offset:{512*w}" for w in range(4)), prog=bool(a.pvopt))
    A("s_waitcnt lgkmcnt(0)\nv_max3_f32 v46, v76, v78, v80\nv_max_f32 v46, v46, v82")
    for w in range(4): A(f"v_sub_f32 v{76+2*w}, v{76+2*w}, v46")
    for w in range(4): A(f"v_exp_f32 v{76+2*w}, v{76+2*w}")
    A("s_and_b32 s34, s44, 0x1fffff\nv_mov_b32 v7, s34\nv_mul_f32 v41, v76, v77")
    for w in range(1, 4): A(f"v_fmac_f32 v41, v{76+2*w}, v{77+2*w}")
    A("v_log_f32 v54, v41\nv_rcp_f32 v52, v41\ns_mov_b32 s34, 0xffe00000\nv_add_f32 v54, v54, v46")
    for w in range(4): A(f"v_mul_f32 v{76+2*w}, v{76+2*w}, v52")
    A("v_add_u32 v54, 0x200, v54\nv_and_or_b32 v53, v54, s34, v7\nv_lshlrev_b32 v54, 11, v54\nv_and_or_b32 v55, v54, s34, v7")
def wo_frags():
    waitprog(PROG['wo'], "L_wo", 1 if wo_early else 0)
    for s in range(4):
        A(f"ds_read_b64_tr_b16 v[{WOF+4*s}:{WOF+1+4*s}], v{TA_} offset:{L_WO + s*4096}")
        A(f"ds_read_b64_tr_b16 v[{WOF+2+4*s}:{WOF+3+4*s}], v{TA_} offset:{L_WO + s*4096 + 2048}")
def v_reads(w):
    waitprog(PROG[f'v{w}'], f"L_v{w}", 0)
    if w == 3: stamp('C')
    ar = 24 + 8*(w & 1)
    for t in range(2):
        A(f"ds_read_b64_tr_b16 v[{ar+4*t}:{ar+4*t+1}], v{VA+t} offset:{w*8192}")
        A(f"ds_read_b64_tr_b16 v[{ar+4*t+2}:{ar+4*t+3}], v{VA+t} offset:{w*8192+4096}")
def v_mfma(w, pend):
    ar = 24 + 8*(w & 1); D = 56 + 4*w
    for t in range(2):
        A(f"s_waitcnt lgkmcnt({pend + 2 - 2*t})")
        c = "0" if t == 0 else f"v[{D}:{D+3}]"
        A(f"v_mfma_f32_16x16x32_bf16 v[{D}:{D+3}], v[{ar+4*t}:{ar+4*t+3}], v[{PF+8*w+4*t}:{PF+3+8*w+4*t}], {c}")
def v_acc(w):
    D = 56 + 4*w
    for j in range(2):
        if w == 0: A(f"v_pk_mul_f32 v[{48+2*j}:{49+2*j}], v[{D+2*j}:{D+1+2*j}], v[76:77] op_sel_hi:[1,0]")
        else: A(f"v_pk_fma_f32 v[{48+2*j}:{49+2*j}], v[{D+2*j}:{D+1+2*j}], v[{76+2*w}:{77+2*w}], v[{48+2*j}:{49+2*j}] op_sel_hi:[1,0,1]")
if a.pvopt:
    wo_early = False
    v_reads(0); v_reads(1); v_mfma(0, 4); weights(); v_reads(2); v_mfma(1, 4); v_acc(0); v_reads(3); v_mfma(2, 4); v_acc(1); v_mfma(3, 0); v_acc(2)
else:
    weights()
    if wo_early: wo_frags()
    v_reads(0); v_reads(1); v_mfma(0, 4); v_reads(2); v_mfma(1, 4); v_acc(0); v_reads(3); v_mfma(2, 4); v_acc(1); v_mfma(3, 0); v_acc(2)
A("s_mov_b64 exec, s[14:15]")
v_acc(3)
A("v_cvt_pk_bf16_f32 v52, v48, v49\nv_cvt_pk_bf16_f32 v54, v50, v51")
pub(f"buffer_store_dwordx4 v[52:55], v{OS}, s[36:39], s53 offen")
if 'HO' in order: setflag(L_FO)
else: A("s_mov_b64 exec, -1")
stamp('C')
if a.ackstamp:
    A("s_waitcnt vmcnt(0)"); stamp('C')
OGL = [f"buffer_load_dwordx4 v[{24+4*i}:{27+4*i}], v{OG}, s[36:39], {so} offen sc1" for i, so in enumerate(("s56", "s57", "s4", "s5"))]
def ochk(idx):
    o = [f"v_bitop3_b32 v{40+k}, v{25+4*i}, v{27+4*i}, v7 bitop3:0x7e" for k, i in enumerate(idx)]
    if len(o) == 4: o.append("v_or3_b32 v40, v40, v41, v42\nv_or_b32 v40, v40, v43")
    o.append("v_lshlrev_b32 v40, 11, v40\nv_cmp_ne_u32 vcc, 0, v40")
    return "\n".join(o)
A("s_mov_b32 s34, 0xffe00000")
gather("L_og", [(OGL[i], ochk([i])) for i in range(4)], ochk(range(4)), once=True, between=(None if wo_early or not a.wofirst else wo_frags))
stamp('C'); cstamp('C')
for i in range(4): A(f"v_lshrrev_b32 v{27+4*i}, 11, v{27+4*i}")
for i in range(4): A(f"v_bfi_b32 v{27+4*i}, s34, v{25+4*i}, v{27+4*i}")
for i in range(4): A(f"v_and_b32 v{25+4*i}, s47, v{27+4*i}")
A("v_max3_f32 v40, v25, v29, v33\nv_max_f32 v40, v40, v37")
def unp(i):
    return [f"v_lshlrev_b32 v{56+4*i}, 16, v{24+4*i}", f"v_and_b32 v{57+4*i}, 0xffff0000, v{24+4*i}",
            f"v_lshlrev_b32 v{58+4*i}, 16, v{26+4*i}", f"v_and_b32 v{59+4*i}, 0xffff0000, v{26+4*i}"]
U = sum((unp(i) for i in range(4)), [])
A("\n".join(U[0:2])); dpp("v_max_f32", 40, 40, "row_ror:8")
A("v_mov_b32 v41, v40"); A("\n".join(U[2:4])); A("v_permlane16_swap_b32 v41, v40\nv_max_f32 v40, v40, v41")
A("v_mov_b32 v41, v40"); A("\n".join(U[4:6])); A("v_permlane32_swap_b32 v41, v40\nv_max_f32 v40, v40, v41")
for i in range(4): A(f"v_sub_f32 v{72+2*i}, v{25+4*i}, v40")
for i in range(4): A(f"v_exp_f32 v{72+2*i}, v{72+2*i}")
A("\n".join(U[6:]))
A("v_add_f32 v40, v72, v74\nv_add_f32 v41, v76, v78")
for j in range(2): A(f"v_pk_mul_f32 v[{56+2*j}:{57+2*j}], v[{56+2*j}:{57+2*j}], v[72:73] op_sel_hi:[1,0]")
A("v_add_f32 v40, v40, v41")
for j in range(2): A(f"v_pk_fma_f32 v[{56+2*j}:{57+2*j}], v[{60+2*j}:{61+2*j}], v[74:75], v[{56+2*j}:{57+2*j}] op_sel_hi:[1,0,1]")
dpp("v_add_f32", 40, 40, "row_ror:8")
for j in range(2): A(f"v_pk_fma_f32 v[{56+2*j}:{57+2*j}], v[{64+2*j}:{65+2*j}], v[76:77], v[{56+2*j}:{57+2*j}] op_sel_hi:[1,0,1]")
A("v_mov_b32 v41, v40")
for j in range(2): A(f"v_pk_fma_f32 v[{56+2*j}:{57+2*j}], v[{68+2*j}:{69+2*j}], v[78:79], v[{56+2*j}:{57+2*j}] op_sel_hi:[1,0,1]")
A("v_permlane16_swap_b32 v41, v40\nv_add_f32 v40, v40, v41\nv_mov_b32 v41, v40")
for i in range(2): dpp("v_add_f32", 56+i, 56+i, "row_ror:8", "0x3")
A("v_permlane32_swap_b32 v41, v40")
for i in range(2): dpp("v_add_f32", 56+i, 58+i, "row_ror:8", "0xc")
A("v_add_f32 v40, v40, v41\nv_rcp_f32 v40, v40")
A("v_permlane16_swap_b32 v56, v57\nv_add_f32 v56, v56, v57\nv_mov_b32 v57, v56\nv_permlane32_swap_b32 v57, v56\nv_add_f32 v56, v56, v57")
A(f"v_mul_f32 v56, v56, v40\nv_cvt_pk_bf16_f32 v56, v56, v56\nds_write_b16 v{OW}, v56")
if not wo_early and not a.wofirst: wo_frags()
tstamp()
A("s_waitcnt lgkmcnt(0)\ns_barrier")
tstamp()
if DIAG and a.tail: cstamp('C', 's62')
for s in range(4): A(f"ds_read_b128 v[{24+4*s}:{27+4*s}], v{G16} offset:{L_OF + 64*s}")
A("s_mov_b64 exec, s[54:55]") if False else None
for s in range(4):
    A(f"s_waitcnt lgkmcnt({3-s})")
    c = "0" if s == 0 else "v[40:43]"
    A(f"v_mfma_f32_16x16x32_bf16 v[40:43], v[{WOF+4*s}:{WOF+3+4*s}], v[{24+4*s}:{27+4*s}], {c}")
A("s_mov_b32 exec_lo, 0x00030003\ns_mov_b32 exec_hi, 0x00030003" if a.full else "s_mov_b64 exec, s[54:55]")
tag(range(40, 44))
A(f"buffer_store_dwordx4 v[40:43], v{157 if a.full else G16}, s[36:39], s59 offen sc1")
if a.clean:
    A(f"s_mov_b64 exec, s[14:15]\nbuffer_store_dwordx4 v[52:55], v{OS}, s[36:39], s53 offen sc1")
stamp('C')
A("s_branch L_fin" if DIAG else "s_endpgm")

for b in reversed(OOL): A(b)
OOL.clear()
A("L_ffn:")
stamp_n['F'] = 2
A("s_mov_b32 s54, 0x000f000f\ns_mov_b32 s55, 0x000f000f")
ffn_ids(60, 61)
A(f"""s_cbranch_scc1 L_final
s_mov_b32 s48, 0x22222222
s_mov_b32 s49, 0x22222222
s_mov_b32 s50, 0x44444444
s_mov_b32 s51, 0x44444444
s_mov_b32 s52, 0x88888888
s_mov_b32 s53, 0x88888888
s_lshl_b32 s34, s61, 7
s_add_u32 s34, s34, s46
v_lshl_add_u32 v128, v3, 3, s34
v_lshl_add_u32 v133, v3, 3, s46
v_lshlrev_b32 v129, 6, v2
v_lshl_add_u32 v129, v3, 4, v129
v_lshlrev_b32 v132, 11, v2
v_lshl_add_u32 v132, v3, 4, v132
s_lshl_b32 s56, s60, 12
s_add_u32 s56, s56, {W_GU}
s_lshl_b32 s35, s61, 9
s_add_u32 s57, s56, s35
v_lshrrev_b32 v17, 1, v3
v_lshlrev_b32 v131, 2, v17
v_lshl_add_u32 v131, v2, 3, v131
v_add_u32 v131, s46, v131
s_lshl_b32 s58, s61, 13
s_lshl_b32 s35, s60, 6
s_add_u32 s58, s58, s35
s_add_u32 s58, s58, {W_GP}
s_waitcnt vmcnt(0)""")
gettag()
layernorm()
for s in range(2): A(f"ds_read2_b64 v[{24+4*s}:{27+4*s}], v128 offset0:{8*s} offset1:{8*s+4}")
waitprog(PROG['gu'], "L_gu")
stamp('F')
def gemv(base, nsteps, bfrag, acc, areg):
    k = 0
    for s in range(nsteps):
        for t in range(4):
            r = areg + 4*k
            A(f"ds_read_b64_tr_b16 v[{r}:{r+1}], v{10+t} offset:{base + s*4096}")
            A(f"ds_read_b64_tr_b16 v[{r+2}:{r+3}], v{10+t} offset:{base + s*4096 + 2048}")
            k += 1
    k = 0; n = nsteps*4
    for s in range(nsteps):
        for t in range(4):
            r = areg + 4*k
            A(f"s_waitcnt lgkmcnt({min(15, 2*(n-1-k))})")
            c = "0" if s == 0 else f"v[{acc+4*t}:{acc+4*t+3}]"
            A(f"v_mfma_f32_16x16x32_bf16 v[{acc+4*t}:{acc+4*t+3}], v[{r}:{r+3}], v[{bfrag+4*s}:{bfrag+4*s+3}], {c}")
            k += 1
gemv(L_G, 2, 24, 32, 64)
gemv(L_U, 2, 24, 48, 96)
select4(32, [32, 36, 40, 44]); select4(48, [48, 52, 56, 60])
tag(list(range(32, 36)) + list(range(48, 52)), True)
A("""s_mov_b64 exec, s[54:55]
buffer_store_dwordx4 v[32:35], v129, s[36:39], s57 offen sc1
buffer_store_dwordx4 v[48:51], v129, s[36:39], s57 offen offset:256 sc1
s_mov_b64 exec, -1""")
warm_lines()
stamp('F')
A("s_waitcnt vmcnt(0)")
if a.gtrig: waitprog(PROG[a.gtrig], "L_gt")
stamp('F')
gather("L_gug", *tagged([(f"buffer_load_dwordx4 v[{32+4*i}:{35+4*i}], v4, s[36:39], s56 offen" + (f" offset:{1024*i}" if i else "") + " sc1", 32+4*i) for i in range(4)], 56, 57), rsleep=2, once=True)
stamp('F'); cstamp('F')
untag(range(32, 48))
for j in range(2): A(f"v_pk_add_f32 v[{32+2*j}:{33+2*j}], v[{32+2*j}:{33+2*j}], v[{36+2*j}:{37+2*j}]")
for j in range(2): A(f"v_pk_add_f32 v[{40+2*j}:{41+2*j}], v[{40+2*j}:{41+2*j}], v[{44+2*j}:{45+2*j}]")
for j in range(2): A(f"v_pk_add_f32 v[{32+2*j}:{33+2*j}], v[{32+2*j}:{33+2*j}], v[{40+2*j}:{41+2*j}]")
A("v_permlane32_swap_b32 v32, v34\nv_permlane32_swap_b32 v33, v35\nv_pk_add_f32 v[34:35], v[32:33], v[34:35]")
bfr2(34, 35)
A("v_mov_b32 v32, v34\nv_mov_b32 v33, v35\nv_permlane16_swap_b32 v32, v34\nv_permlane16_swap_b32 v33, v35")
C1 = f32(-2*math.sqrt(2/math.pi)*math.log2(math.e)); C3 = f32(-2*math.sqrt(2/math.pi)*math.log2(math.e)*0.044715)
A(f"s_mov_b32 s60, {C3}\nv_mov_b32 v18, {C1}")
for i in range(2): A(f"v_mul_f32 v{48+i}, v{32+i}, v{32+i}")
for i in range(2): A(f"v_fma_f32 v{48+i}, v{48+i}, s60, v18")
for i in range(2): A(f"v_mul_f32 v{48+i}, v{48+i}, v{32+i}")
for i in range(2): A(f"v_exp_f32 v{48+i}, v{48+i}")
for i in range(2): A(f"v_add_f32 v{48+i}, 1.0, v{48+i}")
for i in range(2): A(f"v_rcp_f32 v{48+i}, v{48+i}")
for i in range(2): A(f"v_mul_f32 v{32+i}, v{32+i}, v{48+i}")
bfr2(32, 33)
A("v_pk_mul_f32 v[32:33], v[32:33], v[34:35]\nv_cvt_pk_bf16_f32 v32, v32, v33\nds_write_b32 v131, v32")
for s in range(2): A(f"ds_read2_b64 v[{24+4*s}:{27+4*s}], v133 offset0:{8*s} offset1:{8*s+4}")
waitprog(PROG['dn'], "L_dn")
stamp('F')
gemv(L_DN, 2, 24, 32, 64)
select4(32, [32, 36, 40, 44])
tag(range(32, 36))
A("""s_mov_b64 exec, s[54:55]
buffer_store_dwordx4 v[32:35], v132, s[36:39], s58 offen sc1
s_mov_b64 exec, -1""")
stamp('F')
A("s_barrier")
A("s_branch L_fin" if DIAG else "s_endpgm")

A("L_final:")
stamp_n['Z'] = 2
if a.ex3: A("s_mov_b32 s34, s33")
else: A("s_lshl_b32 s34, s32, 2\ns_add_u32 s34, s34, s33\ns_sub_u32 s34, s34, 28")
A(f"""s_lshl_b32 s56, s34, 11
s_add_u32 s58, s56, {W_GP}
s_lshl_b32 s56, s56, {a.full}
s_add_u32 s56, s56, {W_SP}
v_lshrrev_b32 v130, 2, v1
v_lshlrev_b32 v130, 7, v130
v_and_b32 v131, 3, v1
v_lshl_add_u32 v130, v131, 4, v130
s_lshl_b32 s60, s34, 5
s_mov_b32 s61, s34
v_and_b32 v129, 3, v1
v_lshlrev_b32 v129, 3, v129
v_lshl_add_u32 v129, v3, 1, v129
s_waitcnt vmcnt(0)
buffer_load_ushort v20, v129, s[40:43], s60 offen
s_mov_b32 s46, {LOG2E}""")
waitprog(PROG['gu'], "L_zw", 4)
warm_lines()
A("""v_lshlrev_b32 v15, 5, v1
buffer_load_dword v26, v15, s[36:39], s58 offen sc1""")
gettag()
for i in range(4): A(f"v_mov_b32 v{44+i}, v9")
A("s_mov_b32 s18, -1\ns_mov_b32 s19, 0xffff\ns_waitcnt vmcnt(0)\nv_lshlrev_b32 v20, 16, v20")
srd(40, 22, 1024)
ZG = ["buffer_load_dwordx4 v[40:43], v4, s[36:39], s58 offen sc1", "buffer_load_dwordx4 v[44:47], v4, s[36:39], s58 offen offset:1024 sc1"]
ZG1 = ZG[0] + "\ns_mov_b64 exec, s[18:19]\n" + ZG[1] + "\ns_mov_b64 exec, -1"
if a.gearly:
    waitprog(PROG['v3'], "L_zv", 1)
    A(ZG1)
A("s_barrier")
stamp('Z')
def red2(r):
    untag(range(r, r+8))
    A(f"v_pk_add_f32 v[{r}:{r+1}], v[{r}:{r+1}], v[{r+4}:{r+5}]\nv_pk_add_f32 v[{r+2}:{r+3}], v[{r+2}:{r+3}], v[{r+6}:{r+7}]")
    A(f"v_permlane32_swap_b32 v{r}, v{r+2}\nv_permlane32_swap_b32 v{r+1}, v{r+3}\nv_pk_add_f32 v[{r}:{r+1}], v[{r}:{r+1}], v[{r+2}:{r+3}]")
    A(f"v_permlane16_swap_b32 v{r}, v{r+1}\nv_add_f32 v{r}, v{r}, v{r+1}")
    rowred("v_add_f32", [r], ("row_ror:8", "row_ror:4"))
ZG = ["buffer_load_dwordx4 v[40:43], v4, s[36:39], s58 offen sc1", "buffer_load_dwordx4 v[44:47], v4, s[36:39], s58 offen offset:1024 sc1"]
def silu():
    red2(40)
    bfr(40)
    A("v_mul_f32 v44, s46, v40\nv_exp_f32 v44, -v44\nv_add_f32 v44, 1.0, v44\nv_rcp_f32 v44, v44\nv_mul_f32 v40, v40, v44")
    bfr(40)
ZS = "buffer_load_dwordx4 v[24:27], v4, s[36:39], s56 offen sc1\nbuffer_load_dwordx4 v[28:31], v4, s[36:39], s56 offen offset:1024 sc1"
if a.full: ZS = "buffer_load_dwordx4 v[24:27], v130, s[36:39], s56 offen sc1\nbuffer_load_dwordx4 v[28:31], v130, s[36:39], s56 offen offset:2048 sc1"
def gpart():
    A("s_waitcnt vmcnt(2)")
    A(check_txt(list(range(40, 48)), 56, 57))
    A("s_cbranch_vccnz L_gg_retry\nL_gg_done:")
    OOL.append("L_gg_retry:\ns_add_u32 s35, s35, 1\ns_cmp_ge_u32 s35, %d\ns_cbranch_scc1 L_gg_done\ns_mov_b64 exec, vcc\n" % a.spin + ZG[0] +
               "\ns_and_b64 exec, exec, s[18:19]\n" + ZG[1] + "\ns_mov_b64 exec, -1\n" + ZS + "\ns_waitcnt vmcnt(0)\n" + check_txt(list(range(40, 48)), 56, 57) +
               "\ns_cbranch_vccnz L_gg_retry\ns_branch L_gg_done")
    stamp('Z'); cstamp('Z')
    silu()
gather("L_sg", [(ZS, check_txt(list(range(24, 32)), 56, 57))], check_txt(list(range(24, 32)), 56, 57), between=gpart, rsleep=a.zdelay,
       first=ZS if a.gearly else ZG1 + "\n" + ZS)
stamp('Z'); cstamp('Z')
red2(24)
bfr(24)
A("v_mul_f32 v24, v24, v40")
bfr(24)
A("""v_add_f32 v24, v24, v20
v_cvt_pk_bf16_f32 v24, v24, v24
s_mov_b64 exec, s[54:55]
buffer_store_short v24, v129, s[40:43], s60 offen""" + (" " + a.outsc if a.outsc else ""))
stamp('Z')
if DIAG: A("s_waitcnt vmcnt(0)")
stamp('Z')
if a.pad:
    if a.padh >= 0: A(f"s_cmp_lg_u32 s29, {a.padh}\ns_cbranch_scc1 L_pad_done")
    A(f"L_pad:\ns_memrealtime s[66:67]\ns_waitcnt lgkmcnt(0)\ns_sub_u32 s66, s66, s64\ns_cmp_lt_u32 s66, {a.pad}\ns_cbranch_scc1 L_pad\nL_pad_done:")
A("""s_cmp_lg_u32 s61, 31
s_cbranch_scc1 L_fin
s_mov_b64 exec, 1
v_mov_b32 v16, s44
buffer_store_dword v16, off, s[36:39], 0""" + (" " + a.outsc if a.outsc else ""))
A("L_fin:")
if DIAG:
    A("s_mov_b64 exec, -1\ns_waitcnt vmcnt(0)\ns_memrealtime s[94:95]\ns_waitcnt lgkmcnt(0)\nv_mov_b32 v9, 0")
    for i in range(16): A(f"v_writelane_b32 v9, s{64+2*i}, {i}")
    A("v_lshrrev_b32 v4, 6, v0\nv_readfirstlane_b32 s28, v4")
    if DIAG >= 2:
        A(f"s_cmp_lg_u32 s28, {DIAG-2}\ns_cbranch_scc1 L_stop")
        A("s_not_b32 s34, s64\nv_writelane_b32 v9, s34, 0")
        srd(36, 24, 256)
        A("v_lshlrev_b32 v10, 2, v1\ns_mov_b64 exec, 0xffff\nbuffer_atomic_umax v9, v10, s[36:39], 0 offen\ns_endpgm")
    A("s_lshl_b32 s34, s28, 8\ns_add_u32 s34, s34, s2\ns_lshl_b32 s34, s34, 6\ns_add_u32 s34, s34, 0x10000000")
    srd(36, 26, 536870912)
    A("v_lshlrev_b32 v10, 2, v1\ns_mov_b64 exec, 0xffff\nbuffer_store_dword v9, v10, s[36:39], s34 offen")
A("L_stop:\ns_endpgm")
for b in OOL: A(b)
A("L_end:\ns_endpgm")
NV = 164
A('.section .rodata,"a"'); A(".p2align 6"); A(f".amdhsa_kernel {NAME}_kernel")
A(f".amdhsa_next_free_vgpr {NV}\n.amdhsa_next_free_sgpr 102\n.amdhsa_accum_offset {NV}")
A(".amdhsa_group_segment_fixed_size 0\n.amdhsa_kernarg_size 96\n.amdhsa_user_sgpr_count 2")
A(".amdhsa_user_sgpr_kernarg_segment_ptr 1\n.amdhsa_system_sgpr_workgroup_id_x 1\n.end_amdhsa_kernel")
sys.stdout.write("\n".join(hdr) + "\n" + A.text())
```

```python
import sys, argparse, struct, math
sys.path.insert(0, 'tools')
from asmlib import Asm
NAME = "recurrent_scan__sliding_block_cached__geglu_ffn__decode"
ap = argparse.ArgumentParser()
ap.add_argument("--diag", type=int, default=0)
ap.add_argument("--order", default="wq,g,u,k:3,HQ,k:2,S,T5,k:3,dn,HG,T0,wo,v")
ap.add_argument("--win", type=int, default=32)
ap.add_argument("--nt", type=int, default=1)
ap.add_argument("--thr", type=int, default=0)
ap.add_argument("--fast", type=int, default=1)
ap.add_argument("--qdelay", type=int, default=0)
ap.add_argument("--pfcode", type=int, default=0)
ap.add_argument("--warm", type=int, default=0)
ap.add_argument("--tlb", type=int, default=0)
ap.add_argument("--ackstamp", type=int, default=0)
ap.add_argument("--ogflag", default="sc1")
ap.add_argument("--cbrot", type=int, default=0)
ap.add_argument("--ex3", type=int, default=1)
ap.add_argument("--tail", type=int, default=0)
ap.add_argument("--order3", default="wq,k:5,HQ,k:1,S,T5,k:2,wo:3,HG,T0,wo:1,v")
ap.add_argument("--atom", type=int, default=1)
ap.add_argument("--wofirst", type=int, default=1)
ap.add_argument("--clean", type=int, default=0)
ap.add_argument("--outsc", default="")
ap.add_argument("--il", type=int, default=2)
ap.add_argument("--rot", type=int, default=1)
ap.add_argument("--wrot", type=int, default=0)
ap.add_argument("--pad", type=int, default=0)
ap.add_argument("--pvopt", type=int, default=1)
ap.add_argument("--al12", type=int, default=1)
ap.add_argument("--pf0", type=int, default=4)
ap.add_argument("--late", type=int, default=1)
ap.add_argument("--padh", type=int, default=-1)
ap.add_argument("--full", type=int, default=0)
ap.add_argument("--zdelay", type=int, default=0)
ap.add_argument("--gtrig", default="k")
ap.add_argument("--gearly", type=int, default=0)
ap.add_argument("--zpipe", type=int, default=1)
ap.add_argument("--vsleep", type=int, default=0)
ap.add_argument("--xc1", type=int, default=1)
ap.add_argument("--elate", type=int, default=0)
ap.add_argument("--ognt", type=int, default=1)
ap.add_argument("--spin", type=int, default=2000000)
a = ap.parse_args()
DIAG = a.diag
NT = " nt" if a.nt else ""
A = Asm()
def f32(x): return struct.unpack('<I', struct.pack('<f', x))[0]

L_WQ, L_G, L_U, L_WO, L_DN = 0, 16384, 24576, 32768, 49152
L_PROG = 57344
L_F1 = 57360
L_F2 = 57376
L_FO = 57392
L_FQ = 57408
L_FM = 57424
L_FG = 57440
L_OF = 57600
L_Q = 57856
L_XN = 59392
L_K = 65536; L_V = 98304
L_P = 131072
L_MX = 135168
L_SU = 136192
LDS_BYTES = 137216
W_XC = 0x2000; W_QP = 0x10000; W_GU = 0x20000
W_SP = 0x40000 if a.full else 0x50000; W_GP = 0x60000; W_OP = 0x80000; W_SIZE = 0x100000
TAGM = 0x3ff
LOG2E = 0x3fb8aa3b
SCALE = 0x3db504f3
DPPM = "row_mask:0xf bank_mask:0xf"

NWAVES = 6
hdr = [f"; fused decode step: LN -> (q proj, sliding-window GQA attention, out proj) * silu(GEGLU FFN) + x",
       f"; 256 workgroups (one per CU): wave 0 streams every weight / K / V tile into LDS, waves 1-4 attention,",
       f"; wave 5 FFN or output finaliser; partial results travel through d_ws as self-tagged 16-byte granules",
       f"; @launch grid=(256,1,1) block=({NWAVES*64},1,1) lds={LDS_BYTES}"]
A('.amdgcn_target "amdgcn-amd-amdhsa--gfx950"')
A(".text"); A(f".globl {NAME}_kernel")
if a.al12: A(".p2align 12")
A(".p2align 8"); A(f".type {NAME}_kernel,@function"); A(f"{NAME}_kernel:")

def ffn_ids(fb, j):
    if a.ex3:
        A(f"""s_mul_i32 s{fb}, s33, 7
s_add_u32 s{fb}, s{fb}, s32
s_cmp_gt_u32 s32, 3
s_subb_u32 s{fb}, s{fb}, 0
s_and_b32 s{j}, s{fb}, 7
s_lshr_b32 s{fb}, s{fb}, 3
s_cmp_eq_u32 s32, 3""")
    else:
        A(f"s_mov_b32 s{fb}, s33\ns_mov_b32 s{j}, s32\ns_cmp_ge_u32 s33, 28")
stamp_n = {}
EARLY = [True]
def tstamp():
    if DIAG and a.tail: stamp('C')
def stamp(role):
    if not DIAG: return
    if a.tail and role == 'C' and EARLY[0]: return
    k = stamp_n.get(role, 1); stamp_n[role] = k + 1
    assert k < 15
    A(f"s_memrealtime s[{64+2*k}:{65+2*k}]")
def cstamp(role, reg="s35"):
    if not DIAG: return
    if a.tail and role == 'C' and EARLY[0]: return
    k = stamp_n.get(role, 1); stamp_n[role] = k + 1
    assert k < 15
    A(f"s_waitcnt lgkmcnt(0)\ns_mul_i32 s{64+2*k}, {reg}, 100\ns_add_u32 s{64+2*k}, s{64+2*k}, s64")
def srd(d, p, n):
    A(f"s_mov_b32 s{d}, s{p}\ns_mov_b32 s{d+1}, s{p+1}\ns_mov_b32 s{d+2}, {n}\ns_mov_b32 s{d+3}, 0x20000")


if DIAG or a.pad: A("s_memrealtime s[64:65]")
A(f"""s_load_dwordx16 s[4:19], s[0:1], 0
s_load_dwordx8 s[20:27], s[0:1], 64
v_lshrrev_b32 v4, 6, v0
v_and_b32 v1, 63, v0
v_readfirstlane_b32 s28, v4
s_cmp_ge_u32 s2, 256
s_cbranch_scc1 L_end
s_and_b32 s29, s2, 7
s_lshr_b32 s30, s2, 3
s_lshr_b32 s31, s30, 3
s_add_u32 s32, s30, {a.cbrot}
s_and_b32 s32, s32, 7
v_lshrrev_b32 v3, 4, v1
s_cmp_lg_u32 s28, 0
s_cbranch_scc1 L_xload""")
A(f"""v_lshrrev_b32 v2, 3, v1
v_and_b32 v5, 7, v1
v_lshlrev_b32 v6, 1, v3
v_xor_b32 v5, v6, v5
v_lshlrev_b32 v5, 4, v5
v_lshl_add_u32 v20, v2, 13, v5
v_mov_b32 v21, v20
s_lshl_b32 s46, s31, 20
s_lshl_b32 s34, s29, 10
s_add_u32 s46, s46, s34
s_lshl_b32 s35, s32, 7
s_add_u32 s46, s46, s35
s_mov_b32 s50, 4194304
s_mov_b32 s51, 0x20000
s_mov_b32 s52, {8*8192-1024}
s_mov_b32 s53, {8*8192+3072}
s_movk_i32 s55, 0x1000
s_mov_b32 s43, -1
s_mov_b32 m0, {L_WQ}
s_mov_b32 s54, 3
s_getpc_b64 s[62:63]
L_pc0:
s_add_u32 s62, s62, L_ld_start - L_pc0
s_addc_u32 s63, s63, 0
s_waitcnt lgkmcnt(0)
s_mov_b32 s48, s10
s_mov_b32 s49, s11""")
stamp('L')
A(f"""L_quads:
buffer_load_dwordx4 v20, s[48:51], s46 offen{NT} lds
s_add_u32 s46, s46, s52
buffer_load_dwordx4 v21, s[48:51], s46 offen offset:1024{NT} lds
s_add_u32 s46, s46, s52
buffer_load_dwordx4 v20, s[48:51], s46 offen offset:2048{NT} lds
s_add_u32 s46, s46, s52
buffer_load_dwordx4 v21, s[48:51], s46 offen offset:3072{NT} lds
s_add_u32 s46, s46, s53
s_add_u32 m0, m0, s55""")
if a.rot or a.wrot:
    A("s_cmp_ge_u32 s46, s43\ns_cselect_b32 s34, s44, 0\ns_cselect_b32 s47, s45, 0\ns_sub_u32 s46, s46, s34\ns_sub_u32 m0, m0, s47")
A("""s_sub_u32 s54, s54, 1
s_cbranch_scc0 L_quads
s_setpc_b64 s[62:63]
L_xload:
v_lshlrev_b32 v4, 4, v1""")
if a.pf0:
    A("""s_and_b32 s33, s30, 3
s_getpc_b64 s[34:35]
L_pc1:
s_mul_i32 s33, s33, 5120
v_lshlrev_b32 v15, 4, v0
v_add_u32 v15, s33, v15
v_cmp_gt_u32 vcc, L_end - L_pc1 + 1024 - 12, v15
s_and_saveexec_b64 s[36:37], vcc
s_cbranch_execz L_nopf0
global_load_dwordx4 v[160:163], v15, s[34:35] offset:-1024
L_nopf0:
s_mov_b64 exec, -1""")
A("""s_setprio 3
s_mov_b32 s42, 1024
s_mov_b32 s43, 0x20000
s_waitcnt lgkmcnt(0)
s_mov_b32 s40, s4
s_mov_b32 s41, s5
buffer_load_dwordx4 v[20:23], v4, s[40:43], 0 offen""")
if not a.elate: A("s_load_dword s44, s[26:27], 0")
A("""s_branch L_compute
L_ld3b:
s_barrier
s_branch L_ld3
L_ld_start:""")
QUADS = {'wq': 4, 'g': 2, 'u': 2, 'k': 8, 'v': 8, 'wo': 4, 'dn': 2}
HOLDS = ('HQ', 'HO', 'HG')
def parse(spec):
    out = []
    for o in spec.split(','):
        if ':' in o: n, q = o.split(':'); out.append((n, int(q)))
        else: out.append((o, QUADS.get(o, 0)))
    return out
order = parse(a.order)
assert order[0] == ('wq', 4)
names = [n for n, _ in order]
def completion(order):
    ev = []; done = {}; idx = 0
    for n, q in order:
        if n == 'S': ev.append((idx, 'S'))
        if n not in QUADS: continue
        for j in range(q):
            done[n] = done.get(n, 0) + 1; idx += 1
            if n == 'v' and done[n] % 2 == 0: ev.append((idx, f'v{done[n]//2-1}'))
            elif n != 'v' and done[n] == QUADS[n] and n != 'g': ev.append((idx, n))
    return ev, done
ev, done = completion(order)
assert done == QUADS, done
assert names.index('g') < names.index('u')
PROG = {n: i + 1 for i, (_, n) in enumerate(ev)}
PROG['gu'] = PROG['u']
def signal(p):
    A(f"v_mov_b32 v12, {p}\ns_mov_b64 exec, 1\nds_write_b32 v14, v12\ns_mov_b64 exec, -1")
def wait4(off, lbl, sleep=0):
    A(f"{lbl}:")
    if sleep: A(f"s_sleep {sleep}")
    A(f"""ds_read_b128 v[16:19], v14 offset:{off - L_PROG}
s_waitcnt lgkmcnt(0)
v_and_b32 v16, v16, v17
v_and_b32 v18, v18, v19
v_and_b32 v16, v16, v18
v_readfirstlane_b32 s34, v16
s_cmp_eq_u32 s34, 0
s_cbranch_scc1 {lbl}""")
SEG = {
    'g':  (16, 1835008, (7, 7), 57, 8*3584, L_G),
    'u':  (18, 1835008, (7, 7), 57, 8*3584, L_U),
    'k':  (6, 134217728, (9, 10), 58, 32768 if a.il == 2 else 1024, L_K),
    'v':  (8, 134217728, (9, 10), 58, 32768 if a.il == 2 else 1024, L_V),
    'wo': (12, 4194304, (8, 8), 59, 8*1024, L_WO),
    'dn': (20, 1835008, (8, 8), 60, 8*1024, L_DN),
}
def program(order, pre, bar=False):
    ev, _ = completion(order)
    pend = [(e, PROG[n]) for e, n in ev]
    assert [p for _, p in pend] == sorted(p for _, p in pend)
    st = dict(issued=4, bar=bar, win=a.win // 4, thr=False)
    def emit_sig():
        e, p = pend.pop(0)
        A(f"s_waitcnt vmcnt({4*(st['issued'] - e)})"); signal(p); stamp('L')
    def ensure_barrier():
        if not st['bar']: A("s_barrier"); st['bar'] = True
    cur = 'wq'; donec = {}; curv = None; curstep = 8*8192
    for n, q in order[1:]:
        if n == 'S': continue
        if n[0] == 'T':
            w = int(n[1:]); st['thr'] = w > 0; st['win'] = w if w else a.win // 4
            continue
        if n in HOLDS:
            ensure_barrier()
            if n == 'HG': wait4(L_FG, pre + "hg")
            elif n == 'HQ':
                while PROG['wq'] in [p for _, p in pend]: emit_sig()
                wait4(L_FQ, pre + "hq")
            else:
                while pend and pend[0][0] <= st['issued']: emit_sig()
                A("s_setprio 3")
                wait4(L_FO, pre + "ho")
            stamp('L')
            continue
        ptr, size, vo, base, step, lb = SEG[n]
        d0 = donec.get(n, 0)
        if n != cur:
            A(f"s_mov_b32 s48, s{ptr}\ns_mov_b32 s49, s{ptr+1}\ns_mov_b32 s50, {size}")
            qstep = 131072 if (a.il and n in 'kv') else 4*step
            rot = {'k': (29, a.rot), 'v': (29, a.rot), 'wo': (33, a.wrot), 'dn': (40, a.wrot)}.get(n, (0, 0))
            if rot[1]:
                nq = QUADS[n]
                A(f"s_mul_i32 s34, s{rot[0]}, {rot[1]}\ns_add_u32 s34, s34, {d0}\ns_and_b32 s34, s34, {nq-1}\ns_mul_i32 s46, s34, {qstep}\ns_add_u32 s46, s46, s{base}")
                A(f"s_add_u32 s43, s{base}, {nq*qstep}\ns_mov_b32 s44, {nq*qstep}")
                if n in 'kv': A(f"s_mov_b32 s45, 0\ns_mov_b32 m0, {lb + d0*4096}")
                else: A(f"s_mov_b32 s45, {nq*4096}\ns_lshl_b32 s34, s34, 12\ns_add_u32 m0, s34, {lb}")
            else:
                if d0: A(f"s_add_u32 s46, s{base}, {d0*qstep}")
                else: A(f"s_mov_b32 s46, s{base}")
                if a.rot or a.wrot: A("s_mov_b32 s43, -1")
                A(f"s_mov_b32 m0, {lb + d0*4096}")
            if vo != curv: A(f"v_mov_b32 v20, v{vo[0]}\nv_mov_b32 v21, v{vo[1]}"); curv = vo
            if step != curstep: A(f"s_mov_b32 s52, {step-1024}\ns_mov_b32 s53, {qstep - 3*(step-1024)}"); curstep = step
        cur = n
        left = q
        while left:
            take = left
            if st['thr']: take = 1
            elif not st['bar']: take = min(take, max(1, 8 - st['issued']))
            elif pend:
                due = pend[0][0] + st['win'] - st['issued']
                if 0 < due < take: take = due
            A(f"s_mov_b32 s54, {take-1}\ns_call_b64 s[62:63], L_quads")
            st['issued'] += take; left -= take
            if st['issued'] >= min(8, st['win']): ensure_barrier()
            sig = False
            while st['bar'] and pend and pend[0][0] + st['win'] <= st['issued']: emit_sig(); sig = True
            if st['thr'] and not sig and st['issued'] > st['win']: A(f"s_waitcnt vmcnt({4*st['win']})")
        donec[n] = d0 + q
    ensure_barrier()
    A("s_setprio 3\ns_mov_b64 exec, 1")
    while pend:
        e, p = pend.pop(0)
        A(f"v_mov_b32 v{24+p}, {p}\ns_waitcnt vmcnt({4*(st['issued'] - e)})\nds_write_b32 v14, v{24+p}"); stamp('L')
    A("s_branch L_fin" if DIAG else "s_endpgm")
A(f"""v_mov_b32 v14, {L_PROG}
s_lshl_b32 s33, s29, 2
s_add_u32 s33, s33, s31
v_mul_u32_u24 v7, 3584, v2
v_add_u32 v7, v7, v5
v_lshl_add_u32 v8, v2, 10, v5
v_and_b32 v2, 15, v1
v_xor_b32 v9, v6, v2
v_lshlrev_b32 v9, 4, v9
v_lshl_add_u32 v9, v3, 8, v9
v_xor_b32 v10, 0x80, v9
s_lshl_b32 s58, s29, 24
s_lshl_b32 s34, s30, {[15, 12, 10][a.il]}
s_add_u32 s58, s58, s34
s_add_u32 s58, s58, {(65536-4096)*256}
s_lshl_b32 s59, s33, 17
s_add_u32 s59, s59, s35""")
if DIAG:
    for i in range(68, 96): A(f"s_mov_b32 s{i}, 0")
ffn_ids(40, 41)
A(f"""s_cbranch_scc1 L_ld3b
s_mul_i32 s57, s41, {64*3584}
s_lshl_b32 s34, s40, 7
s_add_u32 s57, s57, s34
s_lshl_b32 s60, s40, 16
s_lshl_b32 s34, s41, 7
s_add_u32 s60, s60, s34""")
save = dict(stamp_n)
program(order, "L_a")
def second_program():
    A("L_ld3:")
    stamp_n.update(save)
    program(parse(a.order3), "L_b", bar=True)
order = names

OOL = []
def waitprog(p, lbl, sleep=1):
    A(f"s_cmp_ge_u32 s63, {p}\ns_cbranch_scc1 {lbl}_ok")
    A(f"""{lbl}:
ds_read_b32 v15, v14
s_waitcnt lgkmcnt(0)
v_readfirstlane_b32 s63, v15
s_cmp_ge_u32 s63, {p}""")
    if sleep: A(f"s_cbranch_scc1 {lbl}_ok\ns_sleep {sleep}\ns_branch {lbl}")
    else: A(f"s_cbranch_scc0 {lbl}")
    A(f"{lbl}_ok:")
def setflag(off):
    A(f"s_mov_b64 exec, 1\nds_write_b32 v5, v6 offset:{off - L_PROG}\ns_mov_b64 exec, -1")
def sync(off, lbl, reads, prog=False):
    A(f"{lbl}:")
    if prog: A("ds_read_b32 v15, v14")
    A(f"ds_read_b128 v[16:19], v14 offset:{off - L_PROG}")
    A(reads)
    n = sum(1 for l in reads.split("\n") if l.strip().startswith("ds_"))
    A(f"""s_waitcnt lgkmcnt({n})
v_and_b32 v16, v16, v17
v_and_b32 v18, v18, v19
v_and_b32 v16, v16, v18""")
    if prog: A("v_readfirstlane_b32 s63, v15")
    A(f"""v_readfirstlane_b32 s34, v16
s_cmp_eq_u32 s34, 0
s_cbranch_scc1 {lbl}""")
def tag(regs, rnd=False):
    if rnd:
        for r in regs: A(f"v_add_u32 v{r}, {(TAGM+1)//2}, v{r}")
    for r in regs: A(f"v_and_or_b32 v{r}, v{r}, s47, v9")
def check(regs, acc, tmp, dst="vcc"):
    ps = [(regs[i], regs[i+1]) for i in range(0, len(regs), 2)]
    A(f"v_bitop3_b32 v{acc}, v{ps[0][0]}, v{ps[0][1]}, v9 bitop3:0x7e")
    i = 1
    while i < len(ps):
        if i + 1 < len(ps):
            A(f"v_bitop3_b32 v{tmp}, v{ps[i][0]}, v{ps[i][1]}, v9 bitop3:0x7e")
            A(f"v_bitop3_b32 v{tmp+1}, v{ps[i+1][0]}, v{ps[i+1][1]}, v9 bitop3:0x7e")
            A(f"v_or3_b32 v{acc}, v{acc}, v{tmp}, v{tmp+1}"); i += 2
        else:
            A(f"v_bitop3_b32 v{tmp}, v{ps[i][0]}, v{ps[i][1]}, v9 bitop3:0x7e")
            A(f"v_or_b32 v{acc}, v{acc}, v{tmp}"); i += 1
    A(f"v_and_b32 v{acc}, {TAGM}, v{acc}")
    A(f"v_cmp_ne_u32 {dst}, 0, v{acc}")
def untag(regs):
    for r in regs: A(f"v_and_b32 v{r}, s47, v{r}")
def dpp(op, d, s, ctl, bank="0xf"):
    A(f"{op}_dpp v{d}, v{s}, v{s} {ctl} row_mask:0xf bank_mask:{bank}")
def rowred(op, regs, steps=("row_ror:8", "row_ror:4", "row_ror:2", "row_ror:1")):
    for s in steps:
        for r in regs: dpp(op, r, r, s)
def xrow(op, r, t):
    A(f"v_mov_b32 v{t}, v{r}\nv_permlane16_swap_b32 v{t}, v{r}\n{op} v{r}, v{r}, v{t}")
    A(f"v_mov_b32 v{t}, v{r}\nv_permlane32_swap_b32 v{t}, v{r}\n{op} v{r}, v{r}, v{t}")
def bfr(r):
    A(f"v_cvt_pk_bf16_f32 v{r}, v{r}, v{r}\nv_lshlrev_b32 v{r}, 16, v{r}")
def bfr2(r0, r1):
    A(f"v_cvt_pk_bf16_f32 v{r1}, v{r0}, v{r1}\nv_lshlrev_b32 v{r0}, 16, v{r1}\nv_and_b32 v{r1}, 0xffff0000, v{r1}")
def select4(dst, srcs, masks=("s[48:49]", "s[50:51]", "s[52:53]")):
    for t in range(1, len(srcs)):
        for i in range(4):
            s0 = srcs[0] + i if t == 1 else dst + i
            A(f"v_cndmask_b32 v{dst+i}, v{s0}, v{srcs[t]+i}, {masks[t-1]}")
def layernorm():
    for i in range(4):
        A(f"v_lshlrev_b32 v{24+2*i}, 16, v{20+i}\nv_and_b32 v{25+2*i}, 0xffff0000, v{20+i}")
    A("""v_pk_add_f32 v[32:33], v[24:25], v[26:27]
v_pk_add_f32 v[34:35], v[28:29], v[30:31]
v_pk_add_f32 v[32:33], v[32:33], v[34:35]
v_add_f32 v32, v32, v33""")
    rowred("v_add_f32", [32]); xrow("v_add_f32", 32, 33)
    A("v_mul_f32 v32, 0x3b000000, v32")
    for i in range(4): A(f"v_pk_add_f32 v[{36+2*i}:{37+2*i}], v[{24+2*i}:{25+2*i}], v[32:33] op_sel_hi:[1,0] neg_lo:[0,1] neg_hi:[0,1]")
    A("v_pk_mul_f32 v[34:35], v[36:37], v[36:37]")
    for i in range(1, 4): A(f"v_pk_fma_f32 v[34:35], v[{36+2*i}:{37+2*i}], v[{36+2*i}:{37+2*i}], v[34:35]")
    A("v_add_f32 v33, v34, v35")
    rowred("v_add_f32", [33]); xrow("v_add_f32", 33, 34)
    A("v_mul_f32 v33, 0x3b000000, v33")
    bfr2(32, 33)
    A("v_add_f32 v34, 0x3727c5ac, v33")
    for i in range(2): A(f"v_pk_add_f32 v[{24+2*i}:{25+2*i}], v[{24+2*i}:{25+2*i}], v[32:33] op_sel_hi:[1,0] neg_lo:[0,1] neg_hi:[0,1]")
    bfr(34)
    A("v_sqrt_f32 v34, v34")
    for i in range(2, 4): A(f"v_pk_add_f32 v[{24+2*i}:{25+2*i}], v[{24+2*i}:{25+2*i}], v[32:33] op_sel_hi:[1,0] neg_lo:[0,1] neg_hi:[0,1]")
    bfr(34)
    A("v_rcp_f32 v44, v34")
    for i in range(4): bfr2(24+2*i, 25+2*i)
    for i in range(4): A(f"v_pk_mul_f32 v[{36+2*i}:{37+2*i}], v[{24+2*i}:{25+2*i}], v[44:45] op_sel_hi:[1,0]")
    for i in range(4): A(f"v_pk_fma_f32 v[{24+2*i}:{25+2*i}], v[{36+2*i}:{37+2*i}], v[34:35], v[{24+2*i}:{25+2*i}] op_sel_hi:[1,0,1] neg_lo:[1,0,0] neg_hi:[1,0,0]")
    for i in range(4): A(f"v_pk_fma_f32 v[{36+2*i}:{37+2*i}], v[{24+2*i}:{25+2*i}], v[44:45], v[{36+2*i}:{37+2*i}] op_sel_hi:[1,0,1]")
    for i in range(4): A(f"v_cvt_pk_bf16_f32 v{24+i}, v{36+2*i}, v{37+2*i}")
    A("ds_write_b128 v7, v[24:27]")
class Txt:
    def __init__(self): self.l = []
    def __call__(self, t): self.l.append(t)
def check_txt(regs, acc, tmp):
    global A
    keep = A; A = Txt(); check(regs, acc, tmp); t = "\n".join(A.l); A = keep
    return t
def gather(name, groups, allchk, between=None, first=None, rsleep=0, once=False):
    A("s_mov_b32 s35, 0")
    if once: groups = [("\n".join(l for l, _ in groups), allchk)]
    if first: A(first)
    else:
        for l, _ in groups: A(l)
    if between: between()
    if name == "L_og" and DIAG and a.tail:
        A("s_waitcnt vmcnt(0)"); tstamp()
    A("s_waitcnt vmcnt(0)")
    A(allchk)
    A(f"s_cbranch_vccnz {name}_retry\n{name}_done:")
    assert len(groups) == 1
    load, chk = groups[0]
    blk = f"{name}_retry:\n"
    if rsleep: blk += f"s_sleep {rsleep}\n"
    blk += f"s_mov_b64 exec, vcc\n{load}\ns_mov_b64 exec, -1\ns_add_u32 s35, s35, 1\ns_cmp_ge_u32 s35, {a.spin}\ns_waitcnt vmcnt(0)\ns_cbranch_scc1 {name}_done\n"
    blk += f"{chk}\ns_cbranch_vccnz {name}_retry\ns_branch {name}_done"
    OOL.append(blk)
def tagged(loads, acc, tmp):
    return [(l, check_txt(list(range(r, r+4)), acc, tmp)) for l, r in loads], check_txt(sum((list(range(r, r+4)) for _, r in loads), []), acc, tmp)
def pub(line):
    if not a.fast:
        A(line + " sc1"); return
    pub.n += 1
    A(f"s_cmp_eq_u32 s62, 0\ns_cbranch_scc1 L_ps{pub.n}\n{line}\nL_pd{pub.n}:")
    OOL.append(f"L_ps{pub.n}:\n{line} sc1\ns_branch L_pd{pub.n}")
pub.n = 0
def gettag():
    A(f"""s_waitcnt lgkmcnt(0)
s_add_u32 s44, s44, 1
s_and_b32 s45, s44, {TAGM}
v_mov_b32 v9, s45""")

A("L_compute:")
A(f"""s_mov_b32 s38, {W_SIZE}
s_mov_b32 s39, 0x20000
v_and_b32 v2, 15, v1
v_mov_b32 v14, {L_PROG}
s_lshl_b32 s33, s29, 2
s_add_u32 s33, s33, s31
s_sub_u32 s28, s28, 1
s_mov_b32 s36, s26
s_mov_b32 s37, s27""")
if DIAG:
    for i in range(66, 96): A(f"s_mov_b32 s{i}, 0")
stamp('C')
if a.tlb:
    A(f"""s_cmp_lg_u32 s28, 4
s_cbranch_scc1 L_notlb
s_lshl_b32 s34, s29, 24
s_lshl_b32 s35, s30, {[15, 12, 10][a.il]}
s_add_u32 s34, s34, s35
s_add_u32 s34, s34, {(65536-4096)*256}
s_load_dword s96, s[6:7], s34
s_load_dword s96, s[8:9], s34
s_lshl_b32 s35, s33, 17
s_load_dword s96, s[12:13], s35
""")
    ffn_ids(48, 49)
    A(f"""s_cbranch_scc1 L_notlb
s_mul_i32 s34, s49, {64*3584}
s_load_dword s96, s[16:17], s34
s_load_dword s96, s[18:19], s34
s_lshl_b32 s35, s48, 16
s_load_dword s96, s[20:21], s35
L_notlb:""")
if a.pfcode:
    A(f"""s_cmp_lg_u32 s28, 4
s_cbranch_scc1 L_nopf
s_getpc_b64 s[16:17]
L_pc:
s_min_u32 s34, s30, (L_end - L_pc) / 1024
s_lshl_b32 s34, s34, 10
s_min_u32 s34, s34, L_end - L_pc - 1020
s_add_u32 s16, s16, s34
s_addc_u32 s17, s17, 0
global_load_dwordx4 v[160:163], v4, s[16:17]
L_nopf:""")
def warm_lines():
    if not a.warm: return
    if a.warm >= 2:
        A(f"""s_lshl_b32 s34, s33, 14
s_lshl_b32 s35, s32, 11
s_add_u32 s34, s34, s35
s_add_u32 s34, s34, {W_OP}
s_add_u32 s96, s26, s34
s_addc_u32 s97, s27, 0""")
        for i in range(0, 2048, 128 if a.warm == 2 else 64): A(f"s_load_dword s98, s[96:97], {i}")
        return
    A(f"""s_lshl_b32 s34, s33, 14
s_lshl_b32 s35, s32, 11
s_add_u32 s34, s34, s35
s_add_u32 s34, s34, {W_OP}
v_lshlrev_b32 v15, 7, v1
s_mov_b64 exec, 0xffff
buffer_load_dword v144, v15, s[36:39], s34 offen sc1 nt
s_mov_b64 exec, -1""")
A(f"""s_lshl_b32 s34, s28, 2
v_add_u32 v5, s34, v14
v_mov_b32 v6, 1
s_lshl_b32 s46, s28, 10
s_add_u32 s46, s46, {L_XN}
v_add_u32 v7, s46, v4
s_mov_b32 s63, 0""")
A("""v_lshrrev_b32 v8, 2, v2
v_lshl_add_u32 v8, v3, 2, v8
v_lshrrev_b32 v15, 1, v8
v_and_b32 v15, 3, v15
v_and_b32 v16, 3, v2
v_lshlrev_b32 v16, 3, v16
v_lshl_add_u32 v17, v8, 7, v16
v_lshl_add_u32 v10, v15, 5, v17""")
for t in range(1, 4): A(f"v_xor_b32 v{10+t}, {t*32}, v10")
A(f"""s_mov_b32 s47, {(~TAGM) & 0xffffffff}
s_mov_b32 s54, 0x00010001
s_mov_b32 s55, 0x00010001
s_cmp_lg_u32 s28, 1
s_cbranch_scc1 L_noinit
v_mov_b32 v15, 0
v_lshl_add_u32 v17, v1, 2, v14
ds_write_b32 v17, v15
s_waitcnt lgkmcnt(0)
L_noinit:""")
if a.elate: A("s_load_dword s44, s[26:27], 0")
A(f"""s_barrier
s_cmp_eq_u32 s28, 4
s_cbranch_scc1 L_ffn""")

QG, QW, KA, QR, PW, MW, MR, VA, OS, OG, MG, OW, G16, TA_, XG, PR, XR = 136, 137, 138, 142, 143, 144, 145, 146, 148, 149, 150, 151, 152, 153, 154, 155, 156
KF, WOF, PF = 56, 88, 104
A(f"""v_lshlrev_b32 v{G16}, 4, v3
s_lshl_b32 s34, s28, 5
v_xor_b32 v{TA_}, s34, v10
s_lshl_b32 s34, s31, 8
s_add_u32 s34, s34, s46
v_lshl_add_u32 v{XR}, v3, 3, s34
s_lshl_b32 s48, s33, 11
s_lshl_b32 s34, s32, 8
s_add_u32 s48, s48, s34
s_lshl_b32 s34, s28, 6
s_add_u32 s48, s48, s34
s_add_u32 s48, s48, {W_QP}
s_lshl_b32 s50, s29, 9
s_add_u32 s50, s50, {W_XC}
s_lshl_b32 s34, s30, 4
s_add_u32 s51, s50, s34
s_getreg_b32 s61, hwreg(HW_REG_XCC_ID, 0, 4)
s_lshl_b32 s60, s61, 16""")
def late_setup():
    A(f"""v_lshlrev_b32 v15, 4, v2
v_lshl_add_u32 v{QG}, v3, 11, v15
s_mul_i32 s34, s28, 320
s_add_u32 s34, s34, {L_Q}
v_and_b32 v15, 1, v3
v_lshlrev_b32 v17, 7, v15
v_lshl_add_u32 v17, v2, 3, v17
v_lshrrev_b32 v18, 1, v3
v_lshl_add_u32 v17, v18, 2, v17
v_add_u32 v{QW}, s34, v17
v_and_b32 v17, 3, v1
v_lshlrev_b32 v17, 4, v17
v_lshl_add_u32 v17, v15, 1, v17
v_bfe_u32 v15, v1, 2, 1
v_lshl_add_u32 v17, v15, 3, v17
v_bfe_u32 v15, v1, 3, 1
v_lshl_add_u32 v17, v15, 2, v17
s_lshl_b32 s34, s28, 6
s_add_u32 s34, s34, {L_OF}
v_add_u32 v{OW}, s34, v17
v_and_b32 v17, 7, v1
v_lshlrev_b32 v15, 1, v17
v_xor_b32 v15, v15, v3
v_lshlrev_b32 v15, 4, v15
v_lshl_add_u32 v15, v2, 8, v15
s_lshl_b32 s34, s28, 13
s_add_u32 s34, s34, {L_K}
v_add_u32 v{KA}, s34, v15
v_xor_b32 v{KA+1}, 64, v{KA}
v_xor_b32 v{KA+2}, 128, v{KA}
v_xor_b32 v{KA+3}, 192, v{KA}
v_lshrrev_b32 v15, 3, v1
v_lshlrev_b32 v17, 4, v17
v_lshl_add_u32 v{OG}, v15, 9, v17
v_and_b32 v18, 3, v2
v_mul_u32_u24 v{QR}, 320, v18
v_add_u32 v{QR}, v{QR}, v{G16}
s_lshl_b32 s34, s28, 10
s_add_u32 s34, s34, {L_P}
v_add_u32 v{PW}, s34, v4
v_add_u32 v{PR}, {L_P}, v4
v_lshlrev_b32 v15, 3, v1
v_add_u32 v{MR}, {L_MX}, v15
s_lshl_b32 s34, s28, 9
v_add_u32 v{MW}, s34, v{MR}
v_and_b32 v15, 7, v8
s_lshl_b32 s34, s28, 1
v_xor_b32 v15, s34, v15
v_lshlrev_b32 v15, 5, v15
v_lshl_add_u32 v15, v8, 8, v15
v_add_u32 v15, v15, v16
v_add_u32 v{VA}, {L_V}, v15
v_xor_b32 v{VA+1}, 32, v{VA}
v_lshlrev_b32 v15, 14, v18
v_lshrrev_b32 v17, 2, v2
v_lshl_add_u32 v15, v17, 6, v15
v_add_u32 v{OS}, v15, v{G16}
v_and_b32 v{XG}, 31, v1
v_lshlrev_b32 v{XG}, 4, v{XG}
s_lshl_b32 s49, s29, 13
s_lshl_b32 s34, s28, 9
s_add_u32 s49, s49, s34
s_add_u32 s49, s49, {W_QP}
s_lshl_b32 s53, s29, 16
s_lshl_b32 s34, s30, 9
s_add_u32 s53, s53, s34
s_lshl_b32 s35, s28, 7
s_add_u32 s53, s53, s35
s_add_u32 s53, s53, {W_OP}
s_lshl_b32 s56, s33, 14
s_add_u32 s56, s56, s35
s_add_u32 s56, s56, {W_OP}
s_add_u32 s57, s56, 4096
s_add_u32 s4, s56, 8192
s_add_u32 s5, s56, 12288
s_lshl_b32 s59, s32, {13 + a.full}
s_lshl_b32 s34, s33, {6 + a.full}
s_add_u32 s59, s59, s34
s_lshl_b32 s34, s28, {11 + a.full}
s_add_u32 s59, s59, s34
v_lshl_add_u32 v157, v2, 6, v{G16}
s_add_u32 s59, s59, {W_SP}
s_mov_b32 s46, {LOG2E}
s_mov_b32 s10, {SCALE}
s_mov_b32 s11, {SCALE}
s_mov_b32 s16, 0x000f000f
s_mov_b32 s17, 0x000f000f
s_mov_b32 s18, 0x00f000f0
s_mov_b32 s19, 0x00f000f0
s_mov_b32 s14, 0x00ff00ff
s_mov_b32 s15, 0x00ff00ff""")
if not a.late: late_setup()
A("s_waitcnt vmcnt(0)")
stamp('C')
layernorm()
for s in range(4): A(f"ds_read2_b64 v[{24+4*s}:{27+4*s}], v{XR} offset0:{8*s} offset1:{8*s+4}")
gettag()
A("v_or_b32 v44, s60, v9\nv_mov_b32 v45, v9\nv_mov_b32 v46, v9\nv_mov_b32 v47, v9")
if not a.ackstamp: stamp('C')
waitprog(PROG['wq'], "L_wq", 0)
stamp('C')
for s in range(4):
    A(f"ds_read_b64_tr_b16 v[{56+4*s}:{57+4*s}], v{TA_} offset:{L_WQ + s*4096}")
    A(f"ds_read_b64_tr_b16 v[{58+4*s}:{59+4*s}], v{TA_} offset:{L_WQ + s*4096 + 2048}")
for s in range(4):
    A(f"s_waitcnt lgkmcnt({6-2*s})")
    c = "0" if s == 0 else "v[40:43]"
    A(f"v_mfma_f32_16x16x32_bf16 v[40:43], v[{56+4*s}:{59+4*s}], v[{24+4*s}:{27+4*s}], {c}")
A("s_mov_b64 exec, s[54:55]")
tag(range(40, 44), True)
A(f"""buffer_store_dwordx4 v[40:43], v{G16}, s[36:39], s48 offen sc1
s_mov_b64 exec, 1
s_cmp_lg_u32 s28, 0
s_cbranch_scc1 L_noxc
buffer_store_dwordx4 v[44:47], off, s[36:39], s51 sc1
L_noxc:""")
A(f"ds_write_b32 v5, v6 offset:{L_FQ - L_PROG}\ns_mov_b64 exec, -1")
stamp('C')
A("s_branch L_over3")
keepC = stamp_n.get('C')
second_program()
if keepC: stamp_n['C'] = keepC
A("L_over3:")
if a.late: late_setup()
for i in range(32): A(f"v_mov_b32 v{PF+i}, 0")
if a.xc1:
    for i in range(4): A(f"v_mov_b32 v{32+i}, v{44+i}")
A("s_waitcnt vmcnt(0)")
if 'S' in PROG: waitprog(PROG['S'], "L_S")
stamp('C')
def k_frags():
    if 'HG' in order: setflag(L_FG)
    waitprog(PROG['k'], "L_k")
    for t in range(2):
        for s in range(4):
            r = KF + 16*t + 4*s
            A(f"ds_read_b128 v[{r}:{r+3}], v{KA+s} offset:{t*4096}")
QL = [(f"buffer_load_dwordx4 v[24:27], v{QG}, s[36:39], s49 offen sc1", 24),
      (f"buffer_load_dwordx4 v[28:31], v{QG}, s[36:39], s49 offen offset:256 sc1", 28),
      (f"buffer_load_dwordx4 v[32:35], v{XG}, s[36:39], s50 offen sc1", 32)]
qfirst = None
if a.xc1:
    qfirst = QL[0][0] + "\n" + QL[1][0] + "\ns_cmp_lg_u32 s28, 0\ns_cbranch_scc1 L_noxg\n" + QL[2][0] + "\nL_noxg:"
gather("L_qg", *tagged(QL, 36, 37), between=k_frags, once=True, first=qfirst)
stamp('C'); cstamp('C')
untag(range(24, 32))
A("v_lshrrev_b32 v32, 16, v32")
for i in range(4): A(f"v_permlane16_swap_b32 v{24+i}, v{28+i}")
A("v_cmp_ne_u32 vcc, s61, v32")
A("v_pk_add_f32 v[24:25], v[24:25], v[28:29]\nv_pk_add_f32 v[26:27], v[26:27], v[30:31]")
A("v_permlane32_swap_b32 v24, v26\nv_permlane32_swap_b32 v25, v27")
A("v_pk_add_f32 v[24:25], v[24:25], v[26:27]\nv_cvt_pk_bf16_f32 v24, v24, v25")
A(f"ds_write_b32 v{QW}, v24")
if a.xc1:
    A(f"s_cmp_eq_u64 vcc, 0\ns_cselect_b32 s62, 3, 1\nv_mov_b32 v36, s62\ns_mov_b64 exec, 1\nds_write_b32 v5, v36 offset:{L_F1 - L_PROG}\ns_mov_b64 exec, -1")
else:
    setflag(L_F1)
    A("s_cmp_eq_u64 vcc, 0\ns_cselect_b32 s62, 1, 0")
sync(L_F1, "L_s1", "\n".join(f"ds_read_b128 v[{40+4*s}:{43+4*s}], v{QR} offset:{L_Q + 64*s}" for s in range(4)))
if a.xc1: A("s_lshr_b32 s62, s34, 1")
for s in range(4):
    A(f"s_waitcnt lgkmcnt({3-s})")
    for t in range(2):
        r = KF + 16*t + 4*s
        c = "0" if s == 0 else f"v[{32+4*t}:{35+4*t}]"
        A(f"v_mfma_f32_16x16x32_bf16 v[{32+4*t}:{35+4*t}], v[{r}:{r+3}], v[{40+4*s}:{43+4*s}], {c}")
for i in range(4): bfr2(32+2*i, 33+2*i)
for i in range(4): A(f"v_pk_mul_f32 v[{32+2*i}:{33+2*i}], v[{32+2*i}:{33+2*i}], s[10:11]")
for i in range(4): bfr2(32+2*i, 33+2*i)
A("""v_max3_f32 v40, v32, v33, v34
v_max3_f32 v41, v35, v36, v37
v_max3_f32 v40, v40, v38, v39
v_max_f32 v40, v40, v41""")
xrow("v_max_f32", 40, 41)
A("v_mul_f32 v40, s46, v40")
for i in range(8): A(f"v_fma_f32 v{32+i}, v{32+i}, s46, -v40")
for i in range(8): A(f"v_exp_f32 v{32+i}, v{32+i}")
A("""v_pk_add_f32 v[42:43], v[32:33], v[34:35]
v_pk_add_f32 v[44:45], v[36:37], v[38:39]""")
for i in range(4): A(f"v_cvt_pk_bf16_f32 v{32+i}, v{32+2*i}, v{33+2*i}")
A(f"ds_write_b128 v{PW}, v[32:35]")
setflag(L_F2)
A("v_pk_add_f32 v[42:43], v[42:43], v[44:45]\nv_add_f32 v41, v42, v43")
xrow("v_add_f32", 41, 42)
A(f"ds_write_b64 v{MW}, v[40:41]")
setflag(L_FM)
wo_early = PROG['wo'] < PROG['v3']
rd = "s_mov_b64 exec, s[16:17]\n" + "\n".join(f"ds_read_b128 v[{PF+8*w}:{PF+3+8*w}], v{PR} offset:{1024*w}" for w in range(4))
rd += "\ns_mov_b64 exec, s[18:19]\n" + "\n".join(f"ds_read_b128 v[{PF+4+8*w}:{PF+7+8*w}], v{PR} offset:{1024*w}" for w in range(4))
rd += "\ns_mov_b64 exec, -1"
sync(L_F2, "L_s2", rd, prog=bool(a.pvopt))
EARLY[0] = False
stamp('C')
def weights():
    sync(L_FM, "L_sm", "\n".join(f"ds_read_b64 v[{76+2*w}:{77+2*w}], v{MR} offset:{512*w}" for w in range(4)), prog=bool(a.pvopt))
    A("s_waitcnt lgkmcnt(0)\nv_max3_f32 v46, v76, v78, v80\nv_max_f32 v46, v46, v82")
    for w in range(4): A(f"v_sub_f32 v{76+2*w}, v{76+2*w}, v46")
    for w in range(4): A(f"v_exp_f32 v{76+2*w}, v{76+2*w}")
    A("s_and_b32 s34, s44, 0x1fffff\nv_mov_b32 v7, s34\nv_mul_f32 v41, v76, v77")
    for w in range(1, 4): A(f"v_fmac_f32 v41, v{76+2*w}, v{77+2*w}")
    A("v_log_f32 v54, v41\nv_rcp_f32 v52, v41\ns_mov_b32 s34, 0xffe00000\nv_add_f32 v54, v54, v46")
    for w in range(4): A(f"v_mul_f32 v{76+2*w}, v{76+2*w}, v52")
    A("v_add_u32 v54, 0x200, v54\nv_and_or_b32 v53, v54, s34, v7\nv_lshlrev_b32 v54, 11, v54\nv_and_or_b32 v55, v54, s34, v7")
def wo_frags():
    waitprog(PROG['wo'], "L_wo", 1 if wo_early else 0)
    for s in range(4):
        A(f"ds_read_b64_tr_b16 v[{WOF+4*s}:{WOF+1+4*s}], v{TA_} offset:{L_WO + s*4096}")
        A(f"ds_read_b64_tr_b16 v[{WOF+2+4*s}:{WOF+3+4*s}], v{TA_} offset:{L_WO + s*4096 + 2048}")
def v_reads(w):
    waitprog(PROG[f'v{w}'], f"L_v{w}", a.vsleep if w < 3 else 0)
    if w == 3: stamp('C')
    ar = 24 + 8*(w & 1)
    for t in range(2):
        A(f"ds_read_b64_tr_b16 v[{ar+4*t}:{ar+4*t+1}], v{VA+t} offset:{w*8192}")
        A(f"ds_read_b64_tr_b16 v[{ar+4*t+2}:{ar+4*t+3}], v{VA+t} offset:{w*8192+4096}")
def v_mfma(w, pend):
    ar = 24 + 8*(w & 1); D = 56 + 4*w
    for t in range(2):
        A(f"s_waitcnt lgkmcnt({pend + 2 - 2*t})")
        c = "0" if t == 0 else f"v[{D}:{D+3}]"
        A(f"v_mfma_f32_16x16x32_bf16 v[{D}:{D+3}], v[{ar+4*t}:{ar+4*t+3}], v[{PF+8*w+4*t}:{PF+3+8*w+4*t}], {c}")
def v_acc(w):
    D = 56 + 4*w
    for j in range(2):
        if w == 0: A(f"v_pk_mul_f32 v[{48+2*j}:{49+2*j}], v[{D+2*j}:{D+1+2*j}], v[76:77] op_sel_hi:[1,0]")
        else: A(f"v_pk_fma_f32 v[{48+2*j}:{49+2*j}], v[{D+2*j}:{D+1+2*j}], v[{76+2*w}:{77+2*w}], v[{48+2*j}:{49+2*j}] op_sel_hi:[1,0,1]")
if a.pvopt:
    wo_early = False
    v_reads(0); v_reads(1); v_mfma(0, 4); weights(); v_reads(2); v_mfma(1, 4); v_acc(0); v_reads(3); v_mfma(2, 4); v_acc(1); v_mfma(3, 0); v_acc(2)
else:
    weights()
    if wo_early: wo_frags()
    v_reads(0); v_reads(1); v_mfma(0, 4); v_reads(2); v_mfma(1, 4); v_acc(0); v_reads(3); v_mfma(2, 4); v_acc(1); v_mfma(3, 0); v_acc(2)
A("s_mov_b64 exec, s[14:15]")
v_acc(3)
A("v_cvt_pk_bf16_f32 v52, v48, v49\nv_cvt_pk_bf16_f32 v54, v50, v51")
pub(f"buffer_store_dwordx4 v[52:55], v{OS}, s[36:39], s53 offen")
if 'HO' in order: setflag(L_FO)
else: A("s_mov_b64 exec, -1")
stamp('C')
if a.ackstamp:
    A("s_waitcnt vmcnt(0)"); stamp('C')
OGL = [f"buffer_load_dwordx4 v[{24+4*i}:{27+4*i}], v{OG}, s[36:39], {so} offen sc1" + (" nt" if a.ognt else "") for i, so in enumerate(("s56", "s57", "s4", "s5"))]
def ochk(idx):
    o = [f"v_bitop3_b32 v{40+k}, v{25+4*i}, v{27+4*i}, v7 bitop3:0x7e" for k, i in enumerate(idx)]
    if len(o) == 4: o.append("v_or3_b32 v40, v40, v41, v42\nv_or_b32 v40, v40, v43")
    o.append("v_lshlrev_b32 v40, 11, v40\nv_cmp_ne_u32 vcc, 0, v40")
    return "\n".join(o)
A("s_mov_b32 s34, 0xffe00000")
gather("L_og", [(OGL[i], ochk([i])) for i in range(4)], ochk(range(4)), once=True, between=(None if wo_early or not a.wofirst else wo_frags))
stamp('C'); cstamp('C')
for i in range(4): A(f"v_lshrrev_b32 v{27+4*i}, 11, v{27+4*i}")
for i in range(4): A(f"v_bfi_b32 v{27+4*i}, s34, v{25+4*i}, v{27+4*i}")
for i in range(4): A(f"v_and_b32 v{25+4*i}, s47, v{27+4*i}")
A("v_max3_f32 v40, v25, v29, v33\nv_max_f32 v40, v40, v37")
def unp(i):
    return [f"v_lshlrev_b32 v{56+4*i}, 16, v{24+4*i}", f"v_and_b32 v{57+4*i}, 0xffff0000, v{24+4*i}",
            f"v_lshlrev_b32 v{58+4*i}, 16, v{26+4*i}", f"v_and_b32 v{59+4*i}, 0xffff0000, v{26+4*i}"]
U = sum((unp(i) for i in range(4)), [])
A("\n".join(U[0:2])); dpp("v_max_f32", 40, 40, "row_ror:8")
A("v_mov_b32 v41, v40"); A("\n".join(U[2:4])); A("v_permlane16_swap_b32 v41, v40\nv_max_f32 v40, v40, v41")
A("v_mov_b32 v41, v40"); A("\n".join(U[4:6])); A("v_permlane32_swap_b32 v41, v40\nv_max_f32 v40, v40, v41")
for i in range(4): A(f"v_sub_f32 v{72+2*i}, v{25+4*i}, v40")
for i in range(4): A(f"v_exp_f32 v{72+2*i}, v{72+2*i}")
A("\n".join(U[6:]))
A("v_add_f32 v40, v72, v74\nv_add_f32 v41, v76, v78")
for j in range(2): A(f"v_pk_mul_f32 v[{56+2*j}:{57+2*j}], v[{56+2*j}:{57+2*j}], v[72:73] op_sel_hi:[1,0]")
A("v_add_f32 v40, v40, v41")
for j in range(2): A(f"v_pk_fma_f32 v[{56+2*j}:{57+2*j}], v[{60+2*j}:{61+2*j}], v[74:75], v[{56+2*j}:{57+2*j}] op_sel_hi:[1,0,1]")
dpp("v_add_f32", 40, 40, "row_ror:8")
for j in range(2): A(f"v_pk_fma_f32 v[{56+2*j}:{57+2*j}], v[{64+2*j}:{65+2*j}], v[76:77], v[{56+2*j}:{57+2*j}] op_sel_hi:[1,0,1]")
A("v_mov_b32 v41, v40")
for j in range(2): A(f"v_pk_fma_f32 v[{56+2*j}:{57+2*j}], v[{68+2*j}:{69+2*j}], v[78:79], v[{56+2*j}:{57+2*j}] op_sel_hi:[1,0,1]")
A("v_permlane16_swap_b32 v41, v40\nv_add_f32 v40, v40, v41\nv_mov_b32 v41, v40")
for i in range(2): dpp("v_add_f32", 56+i, 56+i, "row_ror:8", "0x3")
A("v_permlane32_swap_b32 v41, v40")
for i in range(2): dpp("v_add_f32", 56+i, 58+i, "row_ror:8", "0xc")
A("v_add_f32 v40, v40, v41\nv_rcp_f32 v40, v40")
A("v_permlane16_swap_b32 v56, v57\nv_add_f32 v56, v56, v57\nv_mov_b32 v57, v56\nv_permlane32_swap_b32 v57, v56\nv_add_f32 v56, v56, v57")
A(f"v_mul_f32 v56, v56, v40\nv_cvt_pk_bf16_f32 v56, v56, v56\nds_write_b16 v{OW}, v56")
if not wo_early and not a.wofirst: wo_frags()
tstamp()
A("s_waitcnt lgkmcnt(0)\ns_barrier")
tstamp()
if DIAG and a.tail: cstamp('C', 's62')
for s in range(4): A(f"ds_read_b128 v[{24+4*s}:{27+4*s}], v{G16} offset:{L_OF + 64*s}")
A("s_mov_b64 exec, s[54:55]") if False else None
for s in range(4):
    A(f"s_waitcnt lgkmcnt({3-s})")
    c = "0" if s == 0 else "v[40:43]"
    A(f"v_mfma_f32_16x16x32_bf16 v[40:43], v[{WOF+4*s}:{WOF+3+4*s}], v[{24+4*s}:{27+4*s}], {c}")
A("s_mov_b32 exec_lo, 0x00030003\ns_mov_b32 exec_hi, 0x00030003" if a.full else "s_mov_b64 exec, s[54:55]")
tag(range(40, 44))
A(f"buffer_store_dwordx4 v[40:43], v{157 if a.full else G16}, s[36:39], s59 offen sc1")
if a.clean:
    A(f"s_mov_b64 exec, s[14:15]\nbuffer_store_dwordx4 v[52:55], v{OS}, s[36:39], s53 offen sc1")
stamp('C')
A("s_branch L_fin" if DIAG else "s_endpgm")

for b in reversed(OOL): A(b)
OOL.clear()
A("L_ffn:")
stamp_n['F'] = 2
A("s_mov_b32 s54, 0x000f000f\ns_mov_b32 s55, 0x000f000f")
ffn_ids(60, 61)
A(f"""s_cbranch_scc1 L_final
s_mov_b32 s48, 0x22222222
s_mov_b32 s49, 0x22222222
s_mov_b32 s50, 0x44444444
s_mov_b32 s51, 0x44444444
s_mov_b32 s52, 0x88888888
s_mov_b32 s53, 0x88888888
s_lshl_b32 s34, s61, 7
s_add_u32 s34, s34, s46
v_lshl_add_u32 v128, v3, 3, s34
v_lshl_add_u32 v133, v3, 3, s46
v_lshlrev_b32 v129, 6, v2
v_lshl_add_u32 v129, v3, 4, v129
v_lshlrev_b32 v132, 11, v2
v_lshl_add_u32 v132, v3, 4, v132
s_lshl_b32 s56, s60, 12
s_add_u32 s56, s56, {W_GU}
s_lshl_b32 s35, s61, 9
s_add_u32 s57, s56, s35
v_lshrrev_b32 v17, 1, v3
v_lshlrev_b32 v131, 2, v17
v_lshl_add_u32 v131, v2, 3, v131
v_add_u32 v131, s46, v131
s_lshl_b32 s58, s61, 13
s_lshl_b32 s35, s60, 6
s_add_u32 s58, s58, s35
s_add_u32 s58, s58, {W_GP}
s_waitcnt vmcnt(0)""")
gettag()
layernorm()
for s in range(2): A(f"ds_read2_b64 v[{24+4*s}:{27+4*s}], v128 offset0:{8*s} offset1:{8*s+4}")
waitprog(PROG['gu'], "L_gu")
stamp('F')
def gemv(base, nsteps, bfrag, acc, areg):
    k = 0
    for s in range(nsteps):
        for t in range(4):
            r = areg + 4*k
            A(f"ds_read_b64_tr_b16 v[{r}:{r+1}], v{10+t} offset:{base + s*4096}")
            A(f"ds_read_b64_tr_b16 v[{r+2}:{r+3}], v{10+t} offset:{base + s*4096 + 2048}")
            k += 1
    k = 0; n = nsteps*4
    for s in range(nsteps):
        for t in range(4):
            r = areg + 4*k
            A(f"s_waitcnt lgkmcnt({min(15, 2*(n-1-k))})")
            c = "0" if s == 0 else f"v[{acc+4*t}:{acc+4*t+3}]"
            A(f"v_mfma_f32_16x16x32_bf16 v[{acc+4*t}:{acc+4*t+3}], v[{r}:{r+3}], v[{bfrag+4*s}:{bfrag+4*s+3}], {c}")
            k += 1
gemv(L_G, 2, 24, 32, 64)
gemv(L_U, 2, 24, 48, 96)
select4(32, [32, 36, 40, 44]); select4(48, [48, 52, 56, 60])
tag(list(range(32, 36)) + list(range(48, 52)), True)
A("""s_mov_b64 exec, s[54:55]
buffer_store_dwordx4 v[32:35], v129, s[36:39], s57 offen sc1
buffer_store_dwordx4 v[48:51], v129, s[36:39], s57 offen offset:256 sc1
s_mov_b64 exec, -1""")
warm_lines()
stamp('F')
A("s_waitcnt vmcnt(0)")
if a.gtrig: waitprog(PROG[a.gtrig], "L_gt")
stamp('F')
gather("L_gug", *tagged([(f"buffer_load_dwordx4 v[{32+4*i}:{35+4*i}], v4, s[36:39], s56 offen" + (f" offset:{1024*i}" if i else "") + " sc1", 32+4*i) for i in range(4)], 56, 57), rsleep=2, once=True)
stamp('F'); cstamp('F')
untag(range(32, 48))
for j in range(2): A(f"v_pk_add_f32 v[{32+2*j}:{33+2*j}], v[{32+2*j}:{33+2*j}], v[{36+2*j}:{37+2*j}]")
for j in range(2): A(f"v_pk_add_f32 v[{40+2*j}:{41+2*j}], v[{40+2*j}:{41+2*j}], v[{44+2*j}:{45+2*j}]")
for j in range(2): A(f"v_pk_add_f32 v[{32+2*j}:{33+2*j}], v[{32+2*j}:{33+2*j}], v[{40+2*j}:{41+2*j}]")
A("v_permlane32_swap_b32 v32, v34\nv_permlane32_swap_b32 v33, v35\nv_pk_add_f32 v[34:35], v[32:33], v[34:35]")
bfr2(34, 35)
A("v_mov_b32 v32, v34\nv_mov_b32 v33, v35\nv_permlane16_swap_b32 v32, v34\nv_permlane16_swap_b32 v33, v35")
C1 = f32(-2*math.sqrt(2/math.pi)*math.log2(math.e)); C3 = f32(-2*math.sqrt(2/math.pi)*math.log2(math.e)*0.044715)
A(f"s_mov_b32 s60, {C3}\nv_mov_b32 v18, {C1}")
for i in range(2): A(f"v_mul_f32 v{48+i}, v{32+i}, v{32+i}")
for i in range(2): A(f"v_fma_f32 v{48+i}, v{48+i}, s60, v18")
for i in range(2): A(f"v_mul_f32 v{48+i}, v{48+i}, v{32+i}")
for i in range(2): A(f"v_exp_f32 v{48+i}, v{48+i}")
for i in range(2): A(f"v_add_f32 v{48+i}, 1.0, v{48+i}")
for i in range(2): A(f"v_rcp_f32 v{48+i}, v{48+i}")
for i in range(2): A(f"v_mul_f32 v{32+i}, v{32+i}, v{48+i}")
bfr2(32, 33)
A("v_pk_mul_f32 v[32:33], v[32:33], v[34:35]\nv_cvt_pk_bf16_f32 v32, v32, v33\nds_write_b32 v131, v32")
for s in range(2): A(f"ds_read2_b64 v[{24+4*s}:{27+4*s}], v133 offset0:{8*s} offset1:{8*s+4}")
waitprog(PROG['dn'], "L_dn")
stamp('F')
gemv(L_DN, 2, 24, 32, 64)
select4(32, [32, 36, 40, 44])
tag(range(32, 36))
A("""s_mov_b64 exec, s[54:55]
buffer_store_dwordx4 v[32:35], v132, s[36:39], s58 offen sc1
s_mov_b64 exec, -1""")
stamp('F')
A("s_barrier")
A("s_branch L_fin" if DIAG else "s_endpgm")

A("L_final:")
stamp_n['Z'] = 2
if a.ex3: A("s_mov_b32 s34, s33")
else: A("s_lshl_b32 s34, s32, 2\ns_add_u32 s34, s34, s33\ns_sub_u32 s34, s34, 28")
A(f"""s_lshl_b32 s56, s34, 11
s_add_u32 s58, s56, {W_GP}
s_lshl_b32 s56, s56, {a.full}
s_add_u32 s56, s56, {W_SP}
v_lshrrev_b32 v130, 2, v1
v_lshlrev_b32 v130, 7, v130
v_and_b32 v131, 3, v1
v_lshl_add_u32 v130, v131, 4, v130
s_lshl_b32 s60, s34, 5
s_mov_b32 s61, s34
v_and_b32 v129, 3, v1
v_lshlrev_b32 v129, 3, v129
v_lshl_add_u32 v129, v3, 1, v129
s_waitcnt vmcnt(0)
buffer_load_ushort v20, v129, s[40:43], s60 offen
s_mov_b32 s46, {LOG2E}""")
if a.warm:
    waitprog(PROG['gu'], "L_zw", 4)
    warm_lines()
    if a.warm == 1: A("""v_lshlrev_b32 v15, 5, v1
buffer_load_dword v26, v15, s[36:39], s58 offen sc1""")
gettag()
for i in range(4): A(f"v_mov_b32 v{44+i}, v9")
A("s_mov_b32 s18, -1\ns_mov_b32 s19, 0xffff\ns_waitcnt vmcnt(0)\nv_lshlrev_b32 v20, 16, v20")
srd(40, 22, 1024)
ZG = ["buffer_load_dwordx4 v[40:43], v4, s[36:39], s58 offen sc1", "buffer_load_dwordx4 v[44:47], v4, s[36:39], s58 offen offset:1024 sc1"]
ZG1 = ZG[0] + "\ns_mov_b64 exec, s[18:19]\n" + ZG[1] + "\ns_mov_b64 exec, -1"
if a.gearly:
    waitprog(PROG['v3'], "L_zv", 1)
    A(ZG1)
A("s_barrier")
stamp('Z')
def red2(r, clean=False):
    if not clean: untag(range(r, r+8))
    A(f"v_pk_add_f32 v[{r}:{r+1}], v[{r}:{r+1}], v[{r+4}:{r+5}]\nv_pk_add_f32 v[{r+2}:{r+3}], v[{r+2}:{r+3}], v[{r+6}:{r+7}]")
    A(f"v_permlane32_swap_b32 v{r}, v{r+2}\nv_permlane32_swap_b32 v{r+1}, v{r+3}\nv_pk_add_f32 v[{r}:{r+1}], v[{r}:{r+1}], v[{r+2}:{r+3}]")
    A(f"v_permlane16_swap_b32 v{r}, v{r+1}\nv_add_f32 v{r}, v{r}, v{r+1}")
    rowred("v_add_f32", [r], ("row_ror:8", "row_ror:4"))
ZG = ["buffer_load_dwordx4 v[40:43], v4, s[36:39], s58 offen sc1", "buffer_load_dwordx4 v[44:47], v4, s[36:39], s58 offen offset:1024 sc1"]
def silu():
    red2(40)
    bfr(40)
    A("v_mul_f32 v44, s46, v40\nv_exp_f32 v44, -v44\nv_add_f32 v44, 1.0, v44\nv_rcp_f32 v44, v44\nv_mul_f32 v40, v40, v44")
    bfr(40)
ZS = "buffer_load_dwordx4 v[24:27], v4, s[36:39], s56 offen sc1\nbuffer_load_dwordx4 v[28:31], v4, s[36:39], s56 offen offset:1024 sc1"
if a.full: ZS = "buffer_load_dwordx4 v[24:27], v130, s[36:39], s56 offen sc1\nbuffer_load_dwordx4 v[28:31], v130, s[36:39], s56 offen offset:2048 sc1"
def gpart():
    A("s_waitcnt vmcnt(2)")
    A(check_txt(list(range(40, 48)), 56, 57))
    A("s_cbranch_vccnz L_gg_retry\nL_gg_done:")
    OOL.append("L_gg_retry:\ns_add_u32 s35, s35, 1\ns_cmp_ge_u32 s35, %d\ns_cbranch_scc1 L_gg_done\ns_mov_b64 exec, vcc\n" % a.spin + ZG[0] +
               "\ns_and_b64 exec, exec, s[18:19]\n" + ZG[1] + "\ns_mov_b64 exec, -1\n" + ZS + "\ns_waitcnt vmcnt(0)\n" + check_txt(list(range(40, 48)), 56, 57) +
               "\ns_cbranch_vccnz L_gg_retry\ns_branch L_gg_done")
    stamp('Z'); cstamp('Z')
    silu()
if a.zpipe:
    ZB = ZS.replace("v[24:27]", "v[32:35]").replace("v[28:31]", "v[36:39]")
    A("s_mov_b32 s35, 0"); A(ZG1); A(ZS)
    gpart()
    A(ZB)
    A("L_za:\ns_waitcnt vmcnt(2)")
    A(check_txt(list(range(24, 32)), 56, 57))
    A("s_cbranch_vccnz L_zb\nL_sg_done:")
    OOL.append("L_zb:\n" + ZS + f"\ns_add_u32 s35, s35, 1\ns_cmp_ge_u32 s35, {a.spin}\ns_waitcnt vmcnt(2)\ns_cbranch_scc1 L_zc\n" + check_txt(list(range(32, 40)), 56, 57) +
               "\ns_cbranch_vccz L_zc\n" + ZB + "\ns_branch L_za\nL_zc:\n" +
               "\n".join(f"v_and_b32 v{64+i}, s47, v{32+i}" for i in range(8)) + "\ns_branch L_zd")
    for i in range(8): A(f"v_and_b32 v{64+i}, s47, v{24+i}")
    A("L_zd:")
else:
    gather("L_sg", [(ZS, check_txt(list(range(24, 32)), 56, 57))], check_txt(list(range(24, 32)), 56, 57), between=gpart, rsleep=a.zdelay,
           first=ZS if a.gearly else ZG1 + "\n" + ZS)
stamp('Z'); cstamp('Z')
ZR = 64 if a.zpipe else 24
red2(ZR, clean=bool(a.zpipe))
bfr(ZR)
A(f"v_mul_f32 v{ZR}, v{ZR}, v40")
bfr(ZR)
A(f"""v_add_f32 v{ZR}, v{ZR}, v20
v_cvt_pk_bf16_f32 v{ZR}, v{ZR}, v{ZR}
s_mov_b64 exec, s[54:55]
buffer_store_short v{ZR}, v129, s[40:43], s60 offen""" + (" " + a.outsc if a.outsc else ""))
stamp('Z')
if DIAG: A("s_waitcnt vmcnt(0)")
stamp('Z')
if a.pad:
    if a.padh >= 0: A(f"s_cmp_lg_u32 s29, {a.padh}\ns_cbranch_scc1 L_pad_done")
    A(f"L_pad:\ns_memrealtime s[66:67]\ns_waitcnt lgkmcnt(0)\ns_sub_u32 s66, s66, s64\ns_cmp_lt_u32 s66, {a.pad}\ns_cbranch_scc1 L_pad\nL_pad_done:")
A("""s_cmp_lg_u32 s61, 31
s_cbranch_scc1 L_fin
s_mov_b64 exec, 1
v_mov_b32 v16, s44
buffer_store_dword v16, off, s[36:39], 0""" + (" " + a.outsc if a.outsc else ""))
A("L_fin:")
if DIAG:
    A("s_mov_b64 exec, -1\ns_waitcnt vmcnt(0)\ns_memrealtime s[94:95]\ns_waitcnt lgkmcnt(0)\nv_mov_b32 v9, 0")
    for i in range(16): A(f"v_writelane_b32 v9, s{64+2*i}, {i}")
    A("v_lshrrev_b32 v4, 6, v0\nv_readfirstlane_b32 s28, v4")
    if DIAG >= 2:
        A(f"s_cmp_lg_u32 s28, {DIAG-2}\ns_cbranch_scc1 L_stop")
        A("s_not_b32 s34, s64\nv_writelane_b32 v9, s34, 0")
        srd(36, 24, 256)
        A("v_lshlrev_b32 v10, 2, v1\ns_mov_b64 exec, 0xffff\nbuffer_atomic_umax v9, v10, s[36:39], 0 offen\ns_endpgm")
    A("s_lshl_b32 s34, s28, 8\ns_add_u32 s34, s34, s2\ns_lshl_b32 s34, s34, 6\ns_add_u32 s34, s34, 0x10000000")
    srd(36, 26, 536870912)
    A("v_lshlrev_b32 v10, 2, v1\ns_mov_b64 exec, 0xffff\nbuffer_store_dword v9, v10, s[36:39], s34 offen")
A("L_stop:\ns_endpgm")
for b in OOL: A(b)
A("L_end:\ns_endpgm")
NV = 164
A('.section .rodata,"a"'); A(".p2align 6"); A(f".amdhsa_kernel {NAME}_kernel")
A(f".amdhsa_next_free_vgpr {NV}\n.amdhsa_next_free_sgpr 102\n.amdhsa_accum_offset {NV}")
A(".amdhsa_group_segment_fixed_size 0\n.amdhsa_kernarg_size 96\n.amdhsa_user_sgpr_count 2")
A(".amdhsa_user_sgpr_kernarg_segment_ptr 1\n.amdhsa_system_sgpr_workgroup_id_x 1\n.end_amdhsa_kernel")
sys.stdout.write("\n".join(hdr) + "\n" + A.text())
```

```python
import sys, argparse, struct, math
sys.path.insert(0, 'tools')
from asmlib import Asm
NAME = "recurrent_scan__sliding_block_cached__geglu_ffn__decode"
ap = argparse.ArgumentParser()
ap.add_argument("--diag", type=int, default=0)
ap.add_argument("--order", default="wq,g,u,k:3,HQ,k:2,S,T5,k:3,dn,HG,T0,wo,v")
ap.add_argument("--win", type=int, default=32)
ap.add_argument("--nt", type=int, default=1)
ap.add_argument("--thr", type=int, default=0)
ap.add_argument("--fast", type=int, default=1)
ap.add_argument("--qdelay", type=int, default=0)
ap.add_argument("--pfcode", type=int, default=0)
ap.add_argument("--warm", type=int, default=0)
ap.add_argument("--tlb", type=int, default=0)
ap.add_argument("--ackstamp", type=int, default=0)
ap.add_argument("--ogflag", default="sc1")
ap.add_argument("--cbrot", type=int, default=0)
ap.add_argument("--ex3", type=int, default=1)
ap.add_argument("--tail", type=int, default=0)
ap.add_argument("--order3", default="wq,k:5,HQ,k:1,S,T5,k:2,wo:3,HG,T0,wo:1,v")
ap.add_argument("--atom", type=int, default=1)
ap.add_argument("--wofirst", type=int, default=1)
ap.add_argument("--clean", type=int, default=0)
ap.add_argument("--outsc", default="")
ap.add_argument("--il", type=int, default=2)
ap.add_argument("--rot", type=int, default=1)
ap.add_argument("--wrot", type=int, default=0)
ap.add_argument("--pad", type=int, default=0)
ap.add_argument("--pvopt", type=int, default=1)
ap.add_argument("--al12", type=int, default=1)
ap.add_argument("--pf0", type=int, default=4)
ap.add_argument("--late", type=int, default=1)
ap.add_argument("--padh", type=int, default=-1)
ap.add_argument("--full", type=int, default=0)
ap.add_argument("--zdelay", type=int, default=0)
ap.add_argument("--gtrig", default="k")
ap.add_argument("--gearly", type=int, default=0)
ap.add_argument("--zpipe", type=int, default=1)
ap.add_argument("--vsleep", type=int, default=0)
ap.add_argument("--xc1", type=int, default=1)
ap.add_argument("--elate", type=int, default=0)
ap.add_argument("--ognt", type=int, default=1)
ap.add_argument("--padev", default="")
ap.add_argument("--spin", type=int, default=2000000)
a = ap.parse_args()
DIAG = a.diag or (9 if a.padev else 0)
NT = " nt" if a.nt else ""
A = Asm()
def f32(x): return struct.unpack('<I', struct.pack('<f', x))[0]

L_WQ, L_G, L_U, L_WO, L_DN = 0, 16384, 24576, 32768, 49152
L_PROG = 57344
L_F1 = 57360
L_F2 = 57376
L_FO = 57392
L_FQ = 57408
L_FM = 57424
L_FG = 57440
L_OF = 57600
L_Q = 57856
L_XN = 59392
L_K = 65536; L_V = 98304
L_P = 131072
L_MX = 135168
L_SU = 136192
LDS_BYTES = 137216
W_XC = 0x2000; W_QP = 0x10000; W_GU = 0x20000
W_SP = 0x40000 if a.full else 0x50000; W_GP = 0x60000; W_OP = 0x80000; W_SIZE = 0x100000
TAGM = 0x3ff
LOG2E = 0x3fb8aa3b
SCALE = 0x3db504f3
DPPM = "row_mask:0xf bank_mask:0xf"

NWAVES = 6
hdr = f"""; Fused decode step: out = x + (attn(LN(x)) @ wo) * silu(geglu_ffn(LN(x)))        (gfx950, one kernel)
;
; 256 workgroups (one per CU), workgroup b: kv head h = b & 7, slot c = b >> 3, q head r = 4h + (c >> 3), column block cb = c & 7.
;   wave 0     streams every tile the workgroup needs (wq, gate, up, K, down, wo, V; each byte of HBM is read once)
;              into LDS with LDS-DMA and reports progress through an LDS word
;   waves 1-4  layer norm, 128x64 tile of the q projection, scores / online softmax / P.V for 128 keys x 4 heads (MFMA),
;              then combine the 32 partial results of head r and apply a 128x64 tile of wo
;   wave 5     64x64 tiles of gate / up / down (224 workgroups) or the final sum for 16 output columns (32 workgroups)
; Partial results travel through d_ws as 16-byte granules that carry this launch's tag (d_ws word 0 holds the tag of the
; previous launch, the new one is that value + 1); readers poll until every granule they need shows the tag.
; Stores between workgroups are write-through, except the attention partials when the hardware ids show that the whole
; kv-head group sits on one XCD: then the shared L2 is the meeting point.
; @launch grid=(256,1,1) block=({NWAVES*64},1,1) lds={LDS_BYTES}""".split("\n")
A('.amdgcn_target "amdgcn-amd-amdhsa--gfx950"')
A(".text"); A(f".globl {NAME}_kernel")
if a.al12: A(".p2align 12")
A(".p2align 8"); A(f".type {NAME}_kernel,@function"); A(f"{NAME}_kernel:")

def ffn_ids(fb, j):
    if a.ex3:
        A(f"""s_mul_i32 s{fb}, s33, 7
s_add_u32 s{fb}, s{fb}, s32
s_cmp_gt_u32 s32, 3
s_subb_u32 s{fb}, s{fb}, 0
s_and_b32 s{j}, s{fb}, 7
s_lshr_b32 s{fb}, s{fb}, 3
s_cmp_eq_u32 s32, 3""")
    else:
        A(f"s_mov_b32 s{fb}, s33\ns_mov_b32 s{j}, s32\ns_cmp_ge_u32 s33, 28")
stamp_n = {}
EARLY = [True]
def tstamp():
    if DIAG and a.tail: stamp('C')
def stamp(role):
    if not DIAG: return
    if a.tail and role == 'C' and EARLY[0]: return
    k = stamp_n.get(role, 1); stamp_n[role] = k + 1
    assert k < 15
    A(f"s_memrealtime s[{64+2*k}:{65+2*k}]")
def cstamp(role, reg="s35"):
    if not DIAG: return
    if a.tail and role == 'C' and EARLY[0]: return
    k = stamp_n.get(role, 1); stamp_n[role] = k + 1
    assert k < 15
    A(f"s_waitcnt lgkmcnt(0)\ns_mul_i32 s{64+2*k}, {reg}, 100\ns_add_u32 s{64+2*k}, s{64+2*k}, s64")
def srd(d, p, n):
    A(f"s_mov_b32 s{d}, s{p}\ns_mov_b32 s{d+1}, s{p+1}\ns_mov_b32 s{d+2}, {n}\ns_mov_b32 s{d+3}, 0x20000")


if DIAG or a.pad: A("s_memrealtime s[64:65]")
A(f"""s_load_dwordx16 s[4:19], s[0:1], 0
s_load_dwordx8 s[20:27], s[0:1], 64
v_lshrrev_b32 v4, 6, v0
v_and_b32 v1, 63, v0
v_readfirstlane_b32 s28, v4
s_cmp_ge_u32 s2, 256
s_cbranch_scc1 L_end
s_and_b32 s29, s2, 7
s_lshr_b32 s30, s2, 3
s_lshr_b32 s31, s30, 3
s_add_u32 s32, s30, {a.cbrot}
s_and_b32 s32, s32, 7
v_lshrrev_b32 v3, 4, v1
s_cmp_lg_u32 s28, 0
s_cbranch_scc1 L_xload""")
A(f"""v_lshrrev_b32 v2, 3, v1
v_and_b32 v5, 7, v1
v_lshlrev_b32 v6, 1, v3
v_xor_b32 v5, v6, v5
v_lshlrev_b32 v5, 4, v5
v_lshl_add_u32 v20, v2, 13, v5
v_mov_b32 v21, v20
s_lshl_b32 s46, s31, 20
s_lshl_b32 s34, s29, 10
s_add_u32 s46, s46, s34
s_lshl_b32 s35, s32, 7
s_add_u32 s46, s46, s35
s_mov_b32 s50, 4194304
s_mov_b32 s51, 0x20000
s_mov_b32 s52, {8*8192-1024}
s_mov_b32 s53, {8*8192+3072}
s_movk_i32 s55, 0x1000
s_mov_b32 s43, -1
s_mov_b32 m0, {L_WQ}
s_mov_b32 s54, 3
s_getpc_b64 s[62:63]
L_pc0:
s_add_u32 s62, s62, L_ld_start - L_pc0
s_addc_u32 s63, s63, 0
s_waitcnt lgkmcnt(0)
s_mov_b32 s48, s10
s_mov_b32 s49, s11""")
stamp('L')
A(f"""L_quads:
buffer_load_dwordx4 v20, s[48:51], s46 offen{NT} lds
s_add_u32 s46, s46, s52
buffer_load_dwordx4 v21, s[48:51], s46 offen offset:1024{NT} lds
s_add_u32 s46, s46, s52
buffer_load_dwordx4 v20, s[48:51], s46 offen offset:2048{NT} lds
s_add_u32 s46, s46, s52
buffer_load_dwordx4 v21, s[48:51], s46 offen offset:3072{NT} lds
s_add_u32 s46, s46, s53
s_add_u32 m0, m0, s55""")
if a.rot or a.wrot:
    A("s_cmp_ge_u32 s46, s43\ns_cselect_b32 s34, s44, 0\ns_cselect_b32 s47, s45, 0\ns_sub_u32 s46, s46, s34\ns_sub_u32 m0, m0, s47")
A("""s_sub_u32 s54, s54, 1
s_cbranch_scc0 L_quads
s_setpc_b64 s[62:63]
L_xload:
v_lshlrev_b32 v4, 4, v1""")
if a.pf0:
    A("""s_and_b32 s33, s30, 3
s_getpc_b64 s[34:35]
L_pc1:
s_mul_i32 s33, s33, 5120
v_lshlrev_b32 v15, 4, v0
v_add_u32 v15, s33, v15
v_cmp_gt_u32 vcc, L_end - L_pc1 + 1024 - 12, v15
s_and_saveexec_b64 s[36:37], vcc
s_cbranch_execz L_nopf0
global_load_dwordx4 v[160:163], v15, s[34:35] offset:-1024
L_nopf0:
s_mov_b64 exec, -1""")
A("""s_setprio 3
s_mov_b32 s42, 1024
s_mov_b32 s43, 0x20000
s_waitcnt lgkmcnt(0)
s_mov_b32 s40, s4
s_mov_b32 s41, s5
buffer_load_dwordx4 v[20:23], v4, s[40:43], 0 offen""")
if not a.elate: A("s_load_dword s44, s[26:27], 0")
A("""s_branch L_compute
L_ld3b:
s_barrier
s_branch L_ld3
L_ld_start:""")
QUADS = {'wq': 4, 'g': 2, 'u': 2, 'k': 8, 'v': 8, 'wo': 4, 'dn': 2}
HOLDS = ('HQ', 'HO', 'HG')
def parse(spec):
    out = []
    for o in spec.split(','):
        if ':' in o: n, q = o.split(':'); out.append((n, int(q)))
        else: out.append((o, QUADS.get(o, 0)))
    return out
order = parse(a.order)
assert order[0] == ('wq', 4)
names = [n for n, _ in order]
def completion(order):
    ev = []; done = {}; idx = 0
    for n, q in order:
        if n == 'S': ev.append((idx, 'S'))
        if n not in QUADS: continue
        for j in range(q):
            done[n] = done.get(n, 0) + 1; idx += 1
            if n == 'v' and done[n] % 2 == 0: ev.append((idx, f'v{done[n]//2-1}'))
            elif n != 'v' and done[n] == QUADS[n] and n != 'g': ev.append((idx, n))
    return ev, done
ev, done = completion(order)
assert done == QUADS, done
assert names.index('g') < names.index('u')
PROG = {n: i + 1 for i, (_, n) in enumerate(ev)}
PROG['gu'] = PROG['u']
def signal(p):
    A(f"v_mov_b32 v12, {p}\ns_mov_b64 exec, 1\nds_write_b32 v14, v12\ns_mov_b64 exec, -1")
def wait4(off, lbl, sleep=0):
    A(f"{lbl}:")
    if sleep: A(f"s_sleep {sleep}")
    A(f"""ds_read_b128 v[16:19], v14 offset:{off - L_PROG}
s_waitcnt lgkmcnt(0)
v_and_b32 v16, v16, v17
v_and_b32 v18, v18, v19
v_and_b32 v16, v16, v18
v_readfirstlane_b32 s34, v16
s_cmp_eq_u32 s34, 0
s_cbranch_scc1 {lbl}""")
SEG = {
    'g':  (16, 1835008, (7, 7), 57, 8*3584, L_G),
    'u':  (18, 1835008, (7, 7), 57, 8*3584, L_U),
    'k':  (6, 134217728, (9, 10), 58, 32768 if a.il == 2 else 1024, L_K),
    'v':  (8, 134217728, (9, 10), 58, 32768 if a.il == 2 else 1024, L_V),
    'wo': (12, 4194304, (8, 8), 59, 8*1024, L_WO),
    'dn': (20, 1835008, (8, 8), 60, 8*1024, L_DN),
}
def program(order, pre, bar=False):
    ev, _ = completion(order)
    pend = [(e, PROG[n]) for e, n in ev]
    assert [p for _, p in pend] == sorted(p for _, p in pend)
    st = dict(issued=4, bar=bar, win=a.win // 4, thr=False)
    def emit_sig():
        e, p = pend.pop(0)
        A(f"s_waitcnt vmcnt({4*(st['issued'] - e)})"); signal(p); stamp('L')
    def ensure_barrier():
        if not st['bar']: A("s_barrier"); st['bar'] = True
    cur = 'wq'; donec = {}; curv = None; curstep = 8*8192
    for n, q in order[1:]:
        if n == 'S': continue
        if n[0] == 'T':
            w = int(n[1:]); st['thr'] = w > 0; st['win'] = w if w else a.win // 4
            continue
        if n in HOLDS:
            ensure_barrier()
            if n == 'HG': wait4(L_FG, pre + "hg")
            elif n == 'HQ':
                while PROG['wq'] in [p for _, p in pend]: emit_sig()
                wait4(L_FQ, pre + "hq")
            else:
                while pend and pend[0][0] <= st['issued']: emit_sig()
                A("s_setprio 3")
                wait4(L_FO, pre + "ho")
            stamp('L')
            continue
        ptr, size, vo, base, step, lb = SEG[n]
        d0 = donec.get(n, 0)
        if n != cur:
            A(f"s_mov_b32 s48, s{ptr}\ns_mov_b32 s49, s{ptr+1}\ns_mov_b32 s50, {size}")
            qstep = 131072 if (a.il and n in 'kv') else 4*step
            rot = {'k': (29, a.rot), 'v': (29, a.rot), 'wo': (33, a.wrot), 'dn': (40, a.wrot)}.get(n, (0, 0))
            if rot[1]:
                nq = QUADS[n]
                A(f"s_mul_i32 s34, s{rot[0]}, {rot[1]}\ns_add_u32 s34, s34, {d0}\ns_and_b32 s34, s34, {nq-1}\ns_mul_i32 s46, s34, {qstep}\ns_add_u32 s46, s46, s{base}")
                A(f"s_add_u32 s43, s{base}, {nq*qstep}\ns_mov_b32 s44, {nq*qstep}")
                if n in 'kv': A(f"s_mov_b32 s45, 0\ns_mov_b32 m0, {lb + d0*4096}")
                else: A(f"s_mov_b32 s45, {nq*4096}\ns_lshl_b32 s34, s34, 12\ns_add_u32 m0, s34, {lb}")
            else:
                if d0: A(f"s_add_u32 s46, s{base}, {d0*qstep}")
                else: A(f"s_mov_b32 s46, s{base}")
                if a.rot or a.wrot: A("s_mov_b32 s43, -1")
                A(f"s_mov_b32 m0, {lb + d0*4096}")
            if vo != curv: A(f"v_mov_b32 v20, v{vo[0]}\nv_mov_b32 v21, v{vo[1]}"); curv = vo
            if step != curstep: A(f"s_mov_b32 s52, {step-1024}\ns_mov_b32 s53, {qstep - 3*(step-1024)}"); curstep = step
        cur = n
        left = q
        while left:
            take = left
            if st['thr']: take = 1
            elif not st['bar']: take = min(take, max(1, 8 - st['issued']))
            elif pend:
                due = pend[0][0] + st['win'] - st['issued']
                if 0 < due < take: take = due
            A(f"s_mov_b32 s54, {take-1}\ns_call_b64 s[62:63], L_quads")
            st['issued'] += take; left -= take
            if st['issued'] >= min(8, st['win']): ensure_barrier()
            sig = False
            while st['bar'] and pend and pend[0][0] + st['win'] <= st['issued']: emit_sig(); sig = True
            if st['thr'] and not sig and st['issued'] > st['win']: A(f"s_waitcnt vmcnt({4*st['win']})")
        donec[n] = d0 + q
    ensure_barrier()
    A("s_setprio 3\ns_mov_b64 exec, 1")
    while pend:
        e, p = pend.pop(0)
        A(f"v_mov_b32 v{24+p}, {p}\ns_waitcnt vmcnt({4*(st['issued'] - e)})\nds_write_b32 v14, v{24+p}"); stamp('L')
    A("s_branch L_fin" if DIAG else "s_endpgm")
A(f"""v_mov_b32 v14, {L_PROG}
s_lshl_b32 s33, s29, 2
s_add_u32 s33, s33, s31
v_mul_u32_u24 v7, 3584, v2
v_add_u32 v7, v7, v5
v_lshl_add_u32 v8, v2, 10, v5
v_and_b32 v2, 15, v1
v_xor_b32 v9, v6, v2
v_lshlrev_b32 v9, 4, v9
v_lshl_add_u32 v9, v3, 8, v9
v_xor_b32 v10, 0x80, v9
s_lshl_b32 s58, s29, 24
s_lshl_b32 s34, s30, {[15, 12, 10][a.il]}
s_add_u32 s58, s58, s34
s_add_u32 s58, s58, {(65536-4096)*256}
s_lshl_b32 s59, s33, 17
s_add_u32 s59, s59, s35""")
if DIAG:
    for i in range(68, 96): A(f"s_mov_b32 s{i}, 0")
ffn_ids(40, 41)
A(f"""s_cbranch_scc1 L_ld3b
s_mul_i32 s57, s41, {64*3584}
s_lshl_b32 s34, s40, 7
s_add_u32 s57, s57, s34
s_lshl_b32 s60, s40, 16
s_lshl_b32 s34, s41, 7
s_add_u32 s60, s60, s34""")
save = dict(stamp_n)
program(order, "L_a")
def second_program():
    A("L_ld3:")
    stamp_n.update(save)
    program(parse(a.order3), "L_b", bar=True)
order = names

OOL = []
def waitprog(p, lbl, sleep=1):
    A(f"s_cmp_ge_u32 s63, {p}\ns_cbranch_scc1 {lbl}_ok")
    A(f"""{lbl}:
ds_read_b32 v15, v14
s_waitcnt lgkmcnt(0)
v_readfirstlane_b32 s63, v15
s_cmp_ge_u32 s63, {p}""")
    if sleep: A(f"s_cbranch_scc1 {lbl}_ok\ns_sleep {sleep}\ns_branch {lbl}")
    else: A(f"s_cbranch_scc0 {lbl}")
    A(f"{lbl}_ok:")
def setflag(off):
    A(f"s_mov_b64 exec, 1\nds_write_b32 v5, v6 offset:{off - L_PROG}\ns_mov_b64 exec, -1")
def sync(off, lbl, reads, prog=False):
    A(f"{lbl}:")
    if prog: A("ds_read_b32 v15, v14")
    A(f"ds_read_b128 v[16:19], v14 offset:{off - L_PROG}")
    A(reads)
    n = sum(1 for l in reads.split("\n") if l.strip().startswith("ds_"))
    A(f"""s_waitcnt lgkmcnt({n})
v_and_b32 v16, v16, v17
v_and_b32 v18, v18, v19
v_and_b32 v16, v16, v18""")
    if prog: A("v_readfirstlane_b32 s63, v15")
    A(f"""v_readfirstlane_b32 s34, v16
s_cmp_eq_u32 s34, 0
s_cbranch_scc1 {lbl}""")
def tag(regs, rnd=False):
    if rnd:
        for r in regs: A(f"v_add_u32 v{r}, {(TAGM+1)//2}, v{r}")
    for r in regs: A(f"v_and_or_b32 v{r}, v{r}, s47, v9")
def check(regs, acc, tmp, dst="vcc"):
    ps = [(regs[i], regs[i+1]) for i in range(0, len(regs), 2)]
    A(f"v_bitop3_b32 v{acc}, v{ps[0][0]}, v{ps[0][1]}, v9 bitop3:0x7e")
    i = 1
    while i < len(ps):
        if i + 1 < len(ps):
            A(f"v_bitop3_b32 v{tmp}, v{ps[i][0]}, v{ps[i][1]}, v9 bitop3:0x7e")
            A(f"v_bitop3_b32 v{tmp+1}, v{ps[i+1][0]}, v{ps[i+1][1]}, v9 bitop3:0x7e")
            A(f"v_or3_b32 v{acc}, v{acc}, v{tmp}, v{tmp+1}"); i += 2
        else:
            A(f"v_bitop3_b32 v{tmp}, v{ps[i][0]}, v{ps[i][1]}, v9 bitop3:0x7e")
            A(f"v_or_b32 v{acc}, v{acc}, v{tmp}"); i += 1
    A(f"v_and_b32 v{acc}, {TAGM}, v{acc}")
    A(f"v_cmp_ne_u32 {dst}, 0, v{acc}")
def untag(regs):
    for r in regs: A(f"v_and_b32 v{r}, s47, v{r}")
def dpp(op, d, s, ctl, bank="0xf"):
    A(f"{op}_dpp v{d}, v{s}, v{s} {ctl} row_mask:0xf bank_mask:{bank}")
def rowred(op, regs, steps=("row_ror:8", "row_ror:4", "row_ror:2", "row_ror:1")):
    for s in steps:
        for r in regs: dpp(op, r, r, s)
def xrow(op, r, t):
    A(f"v_mov_b32 v{t}, v{r}\nv_permlane16_swap_b32 v{t}, v{r}\n{op} v{r}, v{r}, v{t}")
    A(f"v_mov_b32 v{t}, v{r}\nv_permlane32_swap_b32 v{t}, v{r}\n{op} v{r}, v{r}, v{t}")
def bfr(r):
    A(f"v_cvt_pk_bf16_f32 v{r}, v{r}, v{r}\nv_lshlrev_b32 v{r}, 16, v{r}")
def bfr2(r0, r1):
    A(f"v_cvt_pk_bf16_f32 v{r1}, v{r0}, v{r1}\nv_lshlrev_b32 v{r0}, 16, v{r1}\nv_and_b32 v{r1}, 0xffff0000, v{r1}")
def select4(dst, srcs, masks=("s[48:49]", "s[50:51]", "s[52:53]")):
    for t in range(1, len(srcs)):
        for i in range(4):
            s0 = srcs[0] + i if t == 1 else dst + i
            A(f"v_cndmask_b32 v{dst+i}, v{s0}, v{srcs[t]+i}, {masks[t-1]}")
def layernorm():
    for i in range(4):
        A(f"v_lshlrev_b32 v{24+2*i}, 16, v{20+i}\nv_and_b32 v{25+2*i}, 0xffff0000, v{20+i}")
    A("""v_pk_add_f32 v[32:33], v[24:25], v[26:27]
v_pk_add_f32 v[34:35], v[28:29], v[30:31]
v_pk_add_f32 v[32:33], v[32:33], v[34:35]
v_add_f32 v32, v32, v33""")
    rowred("v_add_f32", [32]); xrow("v_add_f32", 32, 33)
    A("v_mul_f32 v32, 0x3b000000, v32")
    for i in range(4): A(f"v_pk_add_f32 v[{36+2*i}:{37+2*i}], v[{24+2*i}:{25+2*i}], v[32:33] op_sel_hi:[1,0] neg_lo:[0,1] neg_hi:[0,1]")
    A("v_pk_mul_f32 v[34:35], v[36:37], v[36:37]")
    for i in range(1, 4): A(f"v_pk_fma_f32 v[34:35], v[{36+2*i}:{37+2*i}], v[{36+2*i}:{37+2*i}], v[34:35]")
    A("v_add_f32 v33, v34, v35")
    rowred("v_add_f32", [33]); xrow("v_add_f32", 33, 34)
    A("v_mul_f32 v33, 0x3b000000, v33")
    bfr2(32, 33)
    A("v_add_f32 v34, 0x3727c5ac, v33")
    for i in range(2): A(f"v_pk_add_f32 v[{24+2*i}:{25+2*i}], v[{24+2*i}:{25+2*i}], v[32:33] op_sel_hi:[1,0] neg_lo:[0,1] neg_hi:[0,1]")
    bfr(34)
    A("v_sqrt_f32 v34, v34")
    for i in range(2, 4): A(f"v_pk_add_f32 v[{24+2*i}:{25+2*i}], v[{24+2*i}:{25+2*i}], v[32:33] op_sel_hi:[1,0] neg_lo:[0,1] neg_hi:[0,1]")
    bfr(34)
    A("v_rcp_f32 v44, v34")
    for i in range(4): bfr2(24+2*i, 25+2*i)
    for i in range(4): A(f"v_pk_mul_f32 v[{36+2*i}:{37+2*i}], v[{24+2*i}:{25+2*i}], v[44:45] op_sel_hi:[1,0]")
    for i in range(4): A(f"v_pk_fma_f32 v[{24+2*i}:{25+2*i}], v[{36+2*i}:{37+2*i}], v[34:35], v[{24+2*i}:{25+2*i}] op_sel_hi:[1,0,1] neg_lo:[1,0,0] neg_hi:[1,0,0]")
    for i in range(4): A(f"v_pk_fma_f32 v[{36+2*i}:{37+2*i}], v[{24+2*i}:{25+2*i}], v[44:45], v[{36+2*i}:{37+2*i}] op_sel_hi:[1,0,1]")
    for i in range(4): A(f"v_cvt_pk_bf16_f32 v{24+i}, v{36+2*i}, v{37+2*i}")
    A("ds_write_b128 v7, v[24:27]")
class Txt:
    def __init__(self): self.l = []
    def __call__(self, t): self.l.append(t)
def check_txt(regs, acc, tmp):
    global A
    keep = A; A = Txt(); check(regs, acc, tmp); t = "\n".join(A.l); A = keep
    return t
def gather(name, groups, allchk, between=None, first=None, rsleep=0, once=False):
    A("s_mov_b32 s35, 0")
    if once: groups = [("\n".join(l for l, _ in groups), allchk)]
    if first: A(first)
    else:
        for l, _ in groups: A(l)
    if between: between()
    if name == "L_og" and DIAG and a.tail:
        A("s_waitcnt vmcnt(0)"); tstamp()
    A("s_waitcnt vmcnt(0)")
    A(allchk)
    A(f"s_cbranch_vccnz {name}_retry\n{name}_done:")
    assert len(groups) == 1
    load, chk = groups[0]
    blk = f"{name}_retry:\n"
    if rsleep: blk += f"s_sleep {rsleep}\n"
    blk += f"s_mov_b64 exec, vcc\n{load}\ns_mov_b64 exec, -1\ns_add_u32 s35, s35, 1\ns_cmp_ge_u32 s35, {a.spin}\ns_waitcnt vmcnt(0)\ns_cbranch_scc1 {name}_done\n"
    blk += f"{chk}\ns_cbranch_vccnz {name}_retry\ns_branch {name}_done"
    OOL.append(blk)
def tagged(loads, acc, tmp):
    return [(l, check_txt(list(range(r, r+4)), acc, tmp)) for l, r in loads], check_txt(sum((list(range(r, r+4)) for _, r in loads), []), acc, tmp)
def pub(line):
    if not a.fast:
        A(line + " sc1"); return
    pub.n += 1
    A(f"s_cmp_eq_u32 s62, 0\ns_cbranch_scc1 L_ps{pub.n}\n{line}\nL_pd{pub.n}:")
    OOL.append(f"L_ps{pub.n}:\n{line} sc1\ns_branch L_pd{pub.n}")
pub.n = 0
def gettag():
    A(f"""s_waitcnt lgkmcnt(0)
s_add_u32 s44, s44, 1
s_and_b32 s45, s44, {TAGM}
v_mov_b32 v9, s45""")

A("L_compute:")
A(f"""s_mov_b32 s38, {W_SIZE}
s_mov_b32 s39, 0x20000
v_and_b32 v2, 15, v1
v_mov_b32 v14, {L_PROG}
s_lshl_b32 s33, s29, 2
s_add_u32 s33, s33, s31
s_sub_u32 s28, s28, 1
s_mov_b32 s36, s26
s_mov_b32 s37, s27""")
if DIAG:
    for i in range(66, 96): A(f"s_mov_b32 s{i}, 0")
stamp('C')
if a.tlb:
    A(f"""s_cmp_lg_u32 s28, 4
s_cbranch_scc1 L_notlb
s_lshl_b32 s34, s29, 24
s_lshl_b32 s35, s30, {[15, 12, 10][a.il]}
s_add_u32 s34, s34, s35
s_add_u32 s34, s34, {(65536-4096)*256}
s_load_dword s96, s[6:7], s34
s_load_dword s96, s[8:9], s34
s_lshl_b32 s35, s33, 17
s_load_dword s96, s[12:13], s35
""")
    ffn_ids(48, 49)
    A(f"""s_cbranch_scc1 L_notlb
s_mul_i32 s34, s49, {64*3584}
s_load_dword s96, s[16:17], s34
s_load_dword s96, s[18:19], s34
s_lshl_b32 s35, s48, 16
s_load_dword s96, s[20:21], s35
L_notlb:""")
if a.pfcode:
    A(f"""s_cmp_lg_u32 s28, 4
s_cbranch_scc1 L_nopf
s_getpc_b64 s[16:17]
L_pc:
s_min_u32 s34, s30, (L_end - L_pc) / 1024
s_lshl_b32 s34, s34, 10
s_min_u32 s34, s34, L_end - L_pc - 1020
s_add_u32 s16, s16, s34
s_addc_u32 s17, s17, 0
global_load_dwordx4 v[160:163], v4, s[16:17]
L_nopf:""")
def warm_lines():
    if not a.warm: return
    if a.warm >= 2:
        A(f"""s_lshl_b32 s34, s33, 14
s_lshl_b32 s35, s32, 11
s_add_u32 s34, s34, s35
s_add_u32 s34, s34, {W_OP}
s_add_u32 s96, s26, s34
s_addc_u32 s97, s27, 0""")
        for i in range(0, 2048, 128 if a.warm == 2 else 64): A(f"s_load_dword s98, s[96:97], {i}")
        return
    A(f"""s_lshl_b32 s34, s33, 14
s_lshl_b32 s35, s32, 11
s_add_u32 s34, s34, s35
s_add_u32 s34, s34, {W_OP}
v_lshlrev_b32 v15, 7, v1
s_mov_b64 exec, 0xffff
buffer_load_dword v144, v15, s[36:39], s34 offen sc1 nt
s_mov_b64 exec, -1""")
A(f"""s_lshl_b32 s34, s28, 2
v_add_u32 v5, s34, v14
v_mov_b32 v6, 1
s_lshl_b32 s46, s28, 10
s_add_u32 s46, s46, {L_XN}
v_add_u32 v7, s46, v4
s_mov_b32 s63, 0""")
A("""v_lshrrev_b32 v8, 2, v2
v_lshl_add_u32 v8, v3, 2, v8
v_lshrrev_b32 v15, 1, v8
v_and_b32 v15, 3, v15
v_and_b32 v16, 3, v2
v_lshlrev_b32 v16, 3, v16
v_lshl_add_u32 v17, v8, 7, v16
v_lshl_add_u32 v10, v15, 5, v17""")
for t in range(1, 4): A(f"v_xor_b32 v{10+t}, {t*32}, v10")
A(f"""s_mov_b32 s47, {(~TAGM) & 0xffffffff}
s_mov_b32 s54, 0x00010001
s_mov_b32 s55, 0x00010001
s_cmp_lg_u32 s28, 1
s_cbranch_scc1 L_noinit
v_mov_b32 v15, 0
v_lshl_add_u32 v17, v1, 2, v14
ds_write_b32 v17, v15
s_waitcnt lgkmcnt(0)
L_noinit:""")
if a.elate: A("s_load_dword s44, s[26:27], 0")
A(f"""s_barrier
s_cmp_eq_u32 s28, 4
s_cbranch_scc1 L_ffn""")

QG, QW, KA, QR, PW, MW, MR, VA, OS, OG, MG, OW, G16, TA_, XG, PR, XR = 136, 137, 138, 142, 143, 144, 145, 146, 148, 149, 150, 151, 152, 153, 154, 155, 156
KF, WOF, PF = 56, 88, 104
A(f"""v_lshlrev_b32 v{G16}, 4, v3
s_lshl_b32 s34, s28, 5
v_xor_b32 v{TA_}, s34, v10
s_lshl_b32 s34, s31, 8
s_add_u32 s34, s34, s46
v_lshl_add_u32 v{XR}, v3, 3, s34
s_lshl_b32 s48, s33, 11
s_lshl_b32 s34, s32, 8
s_add_u32 s48, s48, s34
s_lshl_b32 s34, s28, 6
s_add_u32 s48, s48, s34
s_add_u32 s48, s48, {W_QP}
s_lshl_b32 s50, s29, 9
s_add_u32 s50, s50, {W_XC}
s_lshl_b32 s34, s30, 4
s_add_u32 s51, s50, s34
s_getreg_b32 s61, hwreg(HW_REG_XCC_ID, 0, 4)
s_lshl_b32 s60, s61, 16""")
def late_setup():
    A(f"""v_lshlrev_b32 v15, 4, v2
v_lshl_add_u32 v{QG}, v3, 11, v15
s_mul_i32 s34, s28, 320
s_add_u32 s34, s34, {L_Q}
v_and_b32 v15, 1, v3
v_lshlrev_b32 v17, 7, v15
v_lshl_add_u32 v17, v2, 3, v17
v_lshrrev_b32 v18, 1, v3
v_lshl_add_u32 v17, v18, 2, v17
v_add_u32 v{QW}, s34, v17
v_and_b32 v17, 3, v1
v_lshlrev_b32 v17, 4, v17
v_lshl_add_u32 v17, v15, 1, v17
v_bfe_u32 v15, v1, 2, 1
v_lshl_add_u32 v17, v15, 3, v17
v_bfe_u32 v15, v1, 3, 1
v_lshl_add_u32 v17, v15, 2, v17
s_lshl_b32 s34, s28, 6
s_add_u32 s34, s34, {L_OF}
v_add_u32 v{OW}, s34, v17
v_and_b32 v17, 7, v1
v_lshlrev_b32 v15, 1, v17
v_xor_b32 v15, v15, v3
v_lshlrev_b32 v15, 4, v15
v_lshl_add_u32 v15, v2, 8, v15
s_lshl_b32 s34, s28, 13
s_add_u32 s34, s34, {L_K}
v_add_u32 v{KA}, s34, v15
v_xor_b32 v{KA+1}, 64, v{KA}
v_xor_b32 v{KA+2}, 128, v{KA}
v_xor_b32 v{KA+3}, 192, v{KA}
v_lshrrev_b32 v15, 3, v1
v_lshlrev_b32 v17, 4, v17
v_lshl_add_u32 v{OG}, v15, 9, v17
v_and_b32 v18, 3, v2
v_mul_u32_u24 v{QR}, 320, v18
v_add_u32 v{QR}, v{QR}, v{G16}
s_lshl_b32 s34, s28, 10
s_add_u32 s34, s34, {L_P}
v_add_u32 v{PW}, s34, v4
v_add_u32 v{PR}, {L_P}, v4
v_lshlrev_b32 v15, 3, v1
v_add_u32 v{MR}, {L_MX}, v15
s_lshl_b32 s34, s28, 9
v_add_u32 v{MW}, s34, v{MR}
v_and_b32 v15, 7, v8
s_lshl_b32 s34, s28, 1
v_xor_b32 v15, s34, v15
v_lshlrev_b32 v15, 5, v15
v_lshl_add_u32 v15, v8, 8, v15
v_add_u32 v15, v15, v16
v_add_u32 v{VA}, {L_V}, v15
v_xor_b32 v{VA+1}, 32, v{VA}
v_lshlrev_b32 v15, 14, v18
v_lshrrev_b32 v17, 2, v2
v_lshl_add_u32 v15, v17, 6, v15
v_add_u32 v{OS}, v15, v{G16}
v_and_b32 v{XG}, 31, v1
v_lshlrev_b32 v{XG}, 4, v{XG}
s_lshl_b32 s49, s29, 13
s_lshl_b32 s34, s28, 9
s_add_u32 s49, s49, s34
s_add_u32 s49, s49, {W_QP}
s_lshl_b32 s53, s29, 16
s_lshl_b32 s34, s30, 9
s_add_u32 s53, s53, s34
s_lshl_b32 s35, s28, 7
s_add_u32 s53, s53, s35
s_add_u32 s53, s53, {W_OP}
s_lshl_b32 s56, s33, 14
s_add_u32 s56, s56, s35
s_add_u32 s56, s56, {W_OP}
s_add_u32 s57, s56, 4096
s_add_u32 s4, s56, 8192
s_add_u32 s5, s56, 12288
s_lshl_b32 s59, s32, {13 + a.full}
s_lshl_b32 s34, s33, {6 + a.full}
s_add_u32 s59, s59, s34
s_lshl_b32 s34, s28, {11 + a.full}
s_add_u32 s59, s59, s34
v_lshl_add_u32 v157, v2, 6, v{G16}
s_add_u32 s59, s59, {W_SP}
s_mov_b32 s46, {LOG2E}
s_mov_b32 s10, {SCALE}
s_mov_b32 s11, {SCALE}
s_mov_b32 s16, 0x000f000f
s_mov_b32 s17, 0x000f000f
s_mov_b32 s18, 0x00f000f0
s_mov_b32 s19, 0x00f000f0
s_mov_b32 s14, 0x00ff00ff
s_mov_b32 s15, 0x00ff00ff""")
if not a.late: late_setup()
A("s_waitcnt vmcnt(0)")
stamp('C')
layernorm()
for s in range(4): A(f"ds_read2_b64 v[{24+4*s}:{27+4*s}], v{XR} offset0:{8*s} offset1:{8*s+4}")
gettag()
A("v_or_b32 v44, s60, v9\nv_mov_b32 v45, v9\nv_mov_b32 v46, v9\nv_mov_b32 v47, v9")
if not a.ackstamp: stamp('C')
waitprog(PROG['wq'], "L_wq", 0)
stamp('C')
for s in range(4):
    A(f"ds_read_b64_tr_b16 v[{56+4*s}:{57+4*s}], v{TA_} offset:{L_WQ + s*4096}")
    A(f"ds_read_b64_tr_b16 v[{58+4*s}:{59+4*s}], v{TA_} offset:{L_WQ + s*4096 + 2048}")
for s in range(4):
    A(f"s_waitcnt lgkmcnt({6-2*s})")
    c = "0" if s == 0 else "v[40:43]"
    A(f"v_mfma_f32_16x16x32_bf16 v[40:43], v[{56+4*s}:{59+4*s}], v[{24+4*s}:{27+4*s}], {c}")
A("s_mov_b64 exec, s[54:55]")
tag(range(40, 44), True)
A(f"""buffer_store_dwordx4 v[40:43], v{G16}, s[36:39], s48 offen sc1
s_mov_b64 exec, 1
s_cmp_lg_u32 s28, 0
s_cbranch_scc1 L_noxc
buffer_store_dwordx4 v[44:47], off, s[36:39], s51 sc1
L_noxc:""")
A(f"ds_write_b32 v5, v6 offset:{L_FQ - L_PROG}\ns_mov_b64 exec, -1")
stamp('C')
A("s_branch L_over3")
keepC = stamp_n.get('C')
second_program()
if keepC: stamp_n['C'] = keepC
A("L_over3:")
if a.late: late_setup()
for i in range(32): A(f"v_mov_b32 v{PF+i}, 0")
if a.xc1:
    for i in range(4): A(f"v_mov_b32 v{32+i}, v{44+i}")
A("s_waitcnt vmcnt(0)")
if 'S' in PROG: waitprog(PROG['S'], "L_S")
stamp('C')
def k_frags():
    if 'HG' in order: setflag(L_FG)
    waitprog(PROG['k'], "L_k")
    for t in range(2):
        for s in range(4):
            r = KF + 16*t + 4*s
            A(f"ds_read_b128 v[{r}:{r+3}], v{KA+s} offset:{t*4096}")
QL = [(f"buffer_load_dwordx4 v[24:27], v{QG}, s[36:39], s49 offen sc1", 24),
      (f"buffer_load_dwordx4 v[28:31], v{QG}, s[36:39], s49 offen offset:256 sc1", 28),
      (f"buffer_load_dwordx4 v[32:35], v{XG}, s[36:39], s50 offen sc1", 32)]
qfirst = None
if a.xc1:
    qfirst = QL[0][0] + "\n" + QL[1][0] + "\ns_cmp_lg_u32 s28, 0\ns_cbranch_scc1 L_noxg\n" + QL[2][0] + "\nL_noxg:"
gather("L_qg", *tagged(QL, 36, 37), between=k_frags, once=True, first=qfirst)
stamp('C'); cstamp('C')
untag(range(24, 32))
A("v_lshrrev_b32 v32, 16, v32")
for i in range(4): A(f"v_permlane16_swap_b32 v{24+i}, v{28+i}")
A("v_cmp_ne_u32 vcc, s61, v32")
A("v_pk_add_f32 v[24:25], v[24:25], v[28:29]\nv_pk_add_f32 v[26:27], v[26:27], v[30:31]")
A("v_permlane32_swap_b32 v24, v26\nv_permlane32_swap_b32 v25, v27")
A("v_pk_add_f32 v[24:25], v[24:25], v[26:27]\nv_cvt_pk_bf16_f32 v24, v24, v25")
A(f"ds_write_b32 v{QW}, v24")
if a.xc1:
    A(f"s_cmp_eq_u64 vcc, 0\ns_cselect_b32 s62, 3, 1\nv_mov_b32 v36, s62\ns_mov_b64 exec, 1\nds_write_b32 v5, v36 offset:{L_F1 - L_PROG}\ns_mov_b64 exec, -1")
else:
    setflag(L_F1)
    A("s_cmp_eq_u64 vcc, 0\ns_cselect_b32 s62, 1, 0")
sync(L_F1, "L_s1", "\n".join(f"ds_read_b128 v[{40+4*s}:{43+4*s}], v{QR} offset:{L_Q + 64*s}" for s in range(4)))
if a.xc1: A("s_lshr_b32 s62, s34, 1")
for s in range(4):
    A(f"s_waitcnt lgkmcnt({3-s})")
    for t in range(2):
        r = KF + 16*t + 4*s
        c = "0" if s == 0 else f"v[{32+4*t}:{35+4*t}]"
        A(f"v_mfma_f32_16x16x32_bf16 v[{32+4*t}:{35+4*t}], v[{r}:{r+3}], v[{40+4*s}:{43+4*s}], {c}")
for i in range(4): bfr2(32+2*i, 33+2*i)
for i in range(4): A(f"v_pk_mul_f32 v[{32+2*i}:{33+2*i}], v[{32+2*i}:{33+2*i}], s[10:11]")
for i in range(4): bfr2(32+2*i, 33+2*i)
A("""v_max3_f32 v40, v32, v33, v34
v_max3_f32 v41, v35, v36, v37
v_max3_f32 v40, v40, v38, v39
v_max_f32 v40, v40, v41""")
xrow("v_max_f32", 40, 41)
A("v_mul_f32 v40, s46, v40")
for i in range(8): A(f"v_fma_f32 v{32+i}, v{32+i}, s46, -v40")
for i in range(8): A(f"v_exp_f32 v{32+i}, v{32+i}")
A("""v_pk_add_f32 v[42:43], v[32:33], v[34:35]
v_pk_add_f32 v[44:45], v[36:37], v[38:39]""")
for i in range(4): A(f"v_cvt_pk_bf16_f32 v{32+i}, v{32+2*i}, v{33+2*i}")
A(f"ds_write_b128 v{PW}, v[32:35]")
setflag(L_F2)
A("v_pk_add_f32 v[42:43], v[42:43], v[44:45]\nv_add_f32 v41, v42, v43")
xrow("v_add_f32", 41, 42)
A(f"ds_write_b64 v{MW}, v[40:41]")
setflag(L_FM)
wo_early = PROG['wo'] < PROG['v3']
rd = "s_mov_b64 exec, s[16:17]\n" + "\n".join(f"ds_read_b128 v[{PF+8*w}:{PF+3+8*w}], v{PR} offset:{1024*w}" for w in range(4))
rd += "\ns_mov_b64 exec, s[18:19]\n" + "\n".join(f"ds_read_b128 v[{PF+4+8*w}:{PF+7+8*w}], v{PR} offset:{1024*w}" for w in range(4))
rd += "\ns_mov_b64 exec, -1"
sync(L_F2, "L_s2", rd, prog=bool(a.pvopt))
EARLY[0] = False
stamp('C')
def weights():
    sync(L_FM, "L_sm", "\n".join(f"ds_read_b64 v[{76+2*w}:{77+2*w}], v{MR} offset:{512*w}" for w in range(4)), prog=bool(a.pvopt))
    A("s_waitcnt lgkmcnt(0)\nv_max3_f32 v46, v76, v78, v80\nv_max_f32 v46, v46, v82")
    for w in range(4): A(f"v_sub_f32 v{76+2*w}, v{76+2*w}, v46")
    for w in range(4): A(f"v_exp_f32 v{76+2*w}, v{76+2*w}")
    A("s_and_b32 s34, s44, 0x1fffff\nv_mov_b32 v7, s34\nv_mul_f32 v41, v76, v77")
    for w in range(1, 4): A(f"v_fmac_f32 v41, v{76+2*w}, v{77+2*w}")
    A("v_log_f32 v54, v41\nv_rcp_f32 v52, v41\ns_mov_b32 s34, 0xffe00000\nv_add_f32 v54, v54, v46")
    for w in range(4): A(f"v_mul_f32 v{76+2*w}, v{76+2*w}, v52")
    A("v_add_u32 v54, 0x200, v54\nv_and_or_b32 v53, v54, s34, v7\nv_lshlrev_b32 v54, 11, v54\nv_and_or_b32 v55, v54, s34, v7")
def wo_frags():
    waitprog(PROG['wo'], "L_wo", 1 if wo_early else 0)
    for s in range(4):
        A(f"ds_read_b64_tr_b16 v[{WOF+4*s}:{WOF+1+4*s}], v{TA_} offset:{L_WO + s*4096}")
        A(f"ds_read_b64_tr_b16 v[{WOF+2+4*s}:{WOF+3+4*s}], v{TA_} offset:{L_WO + s*4096 + 2048}")
def v_reads(w):
    waitprog(PROG[f'v{w}'], f"L_v{w}", a.vsleep if w < 3 else 0)
    if w == 3: stamp('C')
    ar = 24 + 8*(w & 1)
    for t in range(2):
        A(f"ds_read_b64_tr_b16 v[{ar+4*t}:{ar+4*t+1}], v{VA+t} offset:{w*8192}")
        A(f"ds_read_b64_tr_b16 v[{ar+4*t+2}:{ar+4*t+3}], v{VA+t} offset:{w*8192+4096}")
def v_mfma(w, pend):
    ar = 24 + 8*(w & 1); D = 56 + 4*w
    for t in range(2):
        A(f"s_waitcnt lgkmcnt({pend + 2 - 2*t})")
        c = "0" if t == 0 else f"v[{D}:{D+3}]"
        A(f"v_mfma_f32_16x16x32_bf16 v[{D}:{D+3}], v[{ar+4*t}:{ar+4*t+3}], v[{PF+8*w+4*t}:{PF+3+8*w+4*t}], {c}")
def v_acc(w):
    D = 56 + 4*w
    for j in range(2):
        if w == 0: A(f"v_pk_mul_f32 v[{48+2*j}:{49+2*j}], v[{D+2*j}:{D+1+2*j}], v[76:77] op_sel_hi:[1,0]")
        else: A(f"v_pk_fma_f32 v[{48+2*j}:{49+2*j}], v[{D+2*j}:{D+1+2*j}], v[{76+2*w}:{77+2*w}], v[{48+2*j}:{49+2*j}] op_sel_hi:[1,0,1]")
if a.pvopt:
    wo_early = False
    v_reads(0); v_reads(1); v_mfma(0, 4); weights(); v_reads(2); v_mfma(1, 4); v_acc(0); v_reads(3); v_mfma(2, 4); v_acc(1); v_mfma(3, 0); v_acc(2)
else:
    weights()
    if wo_early: wo_frags()
    v_reads(0); v_reads(1); v_mfma(0, 4); v_reads(2); v_mfma(1, 4); v_acc(0); v_reads(3); v_mfma(2, 4); v_acc(1); v_mfma(3, 0); v_acc(2)
A("s_mov_b64 exec, s[14:15]")
v_acc(3)
A("v_cvt_pk_bf16_f32 v52, v48, v49\nv_cvt_pk_bf16_f32 v54, v50, v51")
pub(f"buffer_store_dwordx4 v[52:55], v{OS}, s[36:39], s53 offen")
if 'HO' in order: setflag(L_FO)
else: A("s_mov_b64 exec, -1")
stamp('C')
if a.ackstamp:
    A("s_waitcnt vmcnt(0)"); stamp('C')
OGL = [f"buffer_load_dwordx4 v[{24+4*i}:{27+4*i}], v{OG}, s[36:39], {so} offen sc1" + (" nt" if a.ognt else "") for i, so in enumerate(("s56", "s57", "s4", "s5"))]
def ochk(idx):
    o = [f"v_bitop3_b32 v{40+k}, v{25+4*i}, v{27+4*i}, v7 bitop3:0x7e" for k, i in enumerate(idx)]
    if len(o) == 4: o.append("v_or3_b32 v40, v40, v41, v42\nv_or_b32 v40, v40, v43")
    o.append("v_lshlrev_b32 v40, 11, v40\nv_cmp_ne_u32 vcc, 0, v40")
    return "\n".join(o)
A("s_mov_b32 s34, 0xffe00000")
gather("L_og", [(OGL[i], ochk([i])) for i in range(4)], ochk(range(4)), once=True, between=(None if wo_early or not a.wofirst else wo_frags))
stamp('C'); cstamp('C')
for i in range(4): A(f"v_lshrrev_b32 v{27+4*i}, 11, v{27+4*i}")
for i in range(4): A(f"v_bfi_b32 v{27+4*i}, s34, v{25+4*i}, v{27+4*i}")
for i in range(4): A(f"v_and_b32 v{25+4*i}, s47, v{27+4*i}")
A("v_max3_f32 v40, v25, v29, v33\nv_max_f32 v40, v40, v37")
def unp(i):
    return [f"v_lshlrev_b32 v{56+4*i}, 16, v{24+4*i}", f"v_and_b32 v{57+4*i}, 0xffff0000, v{24+4*i}",
            f"v_lshlrev_b32 v{58+4*i}, 16, v{26+4*i}", f"v_and_b32 v{59+4*i}, 0xffff0000, v{26+4*i}"]
U = sum((unp(i) for i in range(4)), [])
A("\n".join(U[0:2])); dpp("v_max_f32", 40, 40, "row_ror:8")
A("v_mov_b32 v41, v40"); A("\n".join(U[2:4])); A("v_permlane16_swap_b32 v41, v40\nv_max_f32 v40, v40, v41")
A("v_mov_b32 v41, v40"); A("\n".join(U[4:6])); A("v_permlane32_swap_b32 v41, v40\nv_max_f32 v40, v40, v41")
for i in range(4): A(f"v_sub_f32 v{72+2*i}, v{25+4*i}, v40")
for i in range(4): A(f"v_exp_f32 v{72+2*i}, v{72+2*i}")
A("\n".join(U[6:]))
A("v_add_f32 v40, v72, v74\nv_add_f32 v41, v76, v78")
for j in range(2): A(f"v_pk_mul_f32 v[{56+2*j}:{57+2*j}], v[{56+2*j}:{57+2*j}], v[72:73] op_sel_hi:[1,0]")
A("v_add_f32 v40, v40, v41")
for j in range(2): A(f"v_pk_fma_f32 v[{56+2*j}:{57+2*j}], v[{60+2*j}:{61+2*j}], v[74:75], v[{56+2*j}:{57+2*j}] op_sel_hi:[1,0,1]")
dpp("v_add_f32", 40, 40, "row_ror:8")
for j in range(2): A(f"v_pk_fma_f32 v[{56+2*j}:{57+2*j}], v[{64+2*j}:{65+2*j}], v[76:77], v[{56+2*j}:{57+2*j}] op_sel_hi:[1,0,1]")
A("v_mov_b32 v41, v40")
for j in range(2): A(f"v_pk_fma_f32 v[{56+2*j}:{57+2*j}], v[{68+2*j}:{69+2*j}], v[78:79], v[{56+2*j}:{57+2*j}] op_sel_hi:[1,0,1]")
A("v_permlane16_swap_b32 v41, v40\nv_add_f32 v40, v40, v41\nv_mov_b32 v41, v40")
for i in range(2): dpp("v_add_f32", 56+i, 56+i, "row_ror:8", "0x3")
A("v_permlane32_swap_b32 v41, v40")
for i in range(2): dpp("v_add_f32", 56+i, 58+i, "row_ror:8", "0xc")
A("v_add_f32 v40, v40, v41\nv_rcp_f32 v40, v40")
A("v_permlane16_swap_b32 v56, v57\nv_add_f32 v56, v56, v57\nv_mov_b32 v57, v56\nv_permlane32_swap_b32 v57, v56\nv_add_f32 v56, v56, v57")
A(f"v_mul_f32 v56, v56, v40\nv_cvt_pk_bf16_f32 v56, v56, v56\nds_write_b16 v{OW}, v56")
if not wo_early and not a.wofirst: wo_frags()
tstamp()
A("s_waitcnt lgkmcnt(0)\ns_barrier")
tstamp()
if DIAG and a.tail: cstamp('C', 's62')
for s in range(4): A(f"ds_read_b128 v[{24+4*s}:{27+4*s}], v{G16} offset:{L_OF + 64*s}")
A("s_mov_b64 exec, s[54:55]") if False else None
for s in range(4):
    A(f"s_waitcnt lgkmcnt({3-s})")
    c = "0" if s == 0 else "v[40:43]"
    A(f"v_mfma_f32_16x16x32_bf16 v[40:43], v[{WOF+4*s}:{WOF+3+4*s}], v[{24+4*s}:{27+4*s}], {c}")
A("s_mov_b32 exec_lo, 0x00030003\ns_mov_b32 exec_hi, 0x00030003" if a.full else "s_mov_b64 exec, s[54:55]")
tag(range(40, 44))
A(f"buffer_store_dwordx4 v[40:43], v{157 if a.full else G16}, s[36:39], s59 offen sc1")
if a.clean:
    A(f"s_mov_b64 exec, s[14:15]\nbuffer_store_dwordx4 v[52:55], v{OS}, s[36:39], s53 offen sc1")
stamp('C')
A("s_branch L_fin" if DIAG else "s_endpgm")

for b in reversed(OOL): A(b)
OOL.clear()
A("L_ffn:")
stamp_n['F'] = 2
A("s_mov_b32 s54, 0x000f000f\ns_mov_b32 s55, 0x000f000f")
ffn_ids(60, 61)
A(f"""s_cbranch_scc1 L_final
s_mov_b32 s48, 0x22222222
s_mov_b32 s49, 0x22222222
s_mov_b32 s50, 0x44444444
s_mov_b32 s51, 0x44444444
s_mov_b32 s52, 0x88888888
s_mov_b32 s53, 0x88888888
s_lshl_b32 s34, s61, 7
s_add_u32 s34, s34, s46
v_lshl_add_u32 v128, v3, 3, s34
v_lshl_add_u32 v133, v3, 3, s46
v_lshlrev_b32 v129, 6, v2
v_lshl_add_u32 v129, v3, 4, v129
v_lshlrev_b32 v132, 11, v2
v_lshl_add_u32 v132, v3, 4, v132
s_lshl_b32 s56, s60, 12
s_add_u32 s56, s56, {W_GU}
s_lshl_b32 s35, s61, 9
s_add_u32 s57, s56, s35
v_lshrrev_b32 v17, 1, v3
v_lshlrev_b32 v131, 2, v17
v_lshl_add_u32 v131, v2, 3, v131
v_add_u32 v131, s46, v131
s_lshl_b32 s58, s61, 13
s_lshl_b32 s35, s60, 6
s_add_u32 s58, s58, s35
s_add_u32 s58, s58, {W_GP}
s_waitcnt vmcnt(0)""")
gettag()
layernorm()
for s in range(2): A(f"ds_read2_b64 v[{24+4*s}:{27+4*s}], v128 offset0:{8*s} offset1:{8*s+4}")
waitprog(PROG['gu'], "L_gu")
stamp('F')
def gemv(base, nsteps, bfrag, acc, areg):
    k = 0
    for s in range(nsteps):
        for t in range(4):
            r = areg + 4*k
            A(f"ds_read_b64_tr_b16 v[{r}:{r+1}], v{10+t} offset:{base + s*4096}")
            A(f"ds_read_b64_tr_b16 v[{r+2}:{r+3}], v{10+t} offset:{base + s*4096 + 2048}")
            k += 1
    k = 0; n = nsteps*4
    for s in range(nsteps):
        for t in range(4):
            r = areg + 4*k
            A(f"s_waitcnt lgkmcnt({min(15, 2*(n-1-k))})")
            c = "0" if s == 0 else f"v[{acc+4*t}:{acc+4*t+3}]"
            A(f"v_mfma_f32_16x16x32_bf16 v[{acc+4*t}:{acc+4*t+3}], v[{r}:{r+3}], v[{bfrag+4*s}:{bfrag+4*s+3}], {c}")
            k += 1
gemv(L_G, 2, 24, 32, 64)
gemv(L_U, 2, 24, 48, 96)
select4(32, [32, 36, 40, 44]); select4(48, [48, 52, 56, 60])
tag(list(range(32, 36)) + list(range(48, 52)), True)
A("""s_mov_b64 exec, s[54:55]
buffer_store_dwordx4 v[32:35], v129, s[36:39], s57 offen sc1
buffer_store_dwordx4 v[48:51], v129, s[36:39], s57 offen offset:256 sc1
s_mov_b64 exec, -1""")
warm_lines()
stamp('F')
A("s_waitcnt vmcnt(0)")
if a.gtrig: waitprog(PROG[a.gtrig], "L_gt")
stamp('F')
gather("L_gug", *tagged([(f"buffer_load_dwordx4 v[{32+4*i}:{35+4*i}], v4, s[36:39], s56 offen" + (f" offset:{1024*i}" if i else "") + " sc1", 32+4*i) for i in range(4)], 56, 57), rsleep=2, once=True)
stamp('F'); cstamp('F')
untag(range(32, 48))
for j in range(2): A(f"v_pk_add_f32 v[{32+2*j}:{33+2*j}], v[{32+2*j}:{33+2*j}], v[{36+2*j}:{37+2*j}]")
for j in range(2): A(f"v_pk_add_f32 v[{40+2*j}:{41+2*j}], v[{40+2*j}:{41+2*j}], v[{44+2*j}:{45+2*j}]")
for j in range(2): A(f"v_pk_add_f32 v[{32+2*j}:{33+2*j}], v[{32+2*j}:{33+2*j}], v[{40+2*j}:{41+2*j}]")
A("v_permlane32_swap_b32 v32, v34\nv_permlane32_swap_b32 v33, v35\nv_pk_add_f32 v[34:35], v[32:33], v[34:35]")
bfr2(34, 35)
A("v_mov_b32 v32, v34\nv_mov_b32 v33, v35\nv_permlane16_swap_b32 v32, v34\nv_permlane16_swap_b32 v33, v35")
C1 = f32(-2*math.sqrt(2/math.pi)*math.log2(math.e)); C3 = f32(-2*math.sqrt(2/math.pi)*math.log2(math.e)*0.044715)
A(f"s_mov_b32 s60, {C3}\nv_mov_b32 v18, {C1}")
for i in range(2): A(f"v_mul_f32 v{48+i}, v{32+i}, v{32+i}")
for i in range(2): A(f"v_fma_f32 v{48+i}, v{48+i}, s60, v18")
for i in range(2): A(f"v_mul_f32 v{48+i}, v{48+i}, v{32+i}")
for i in range(2): A(f"v_exp_f32 v{48+i}, v{48+i}")
for i in range(2): A(f"v_add_f32 v{48+i}, 1.0, v{48+i}")
for i in range(2): A(f"v_rcp_f32 v{48+i}, v{48+i}")
for i in range(2): A(f"v_mul_f32 v{32+i}, v{32+i}, v{48+i}")
bfr2(32, 33)
A("v_pk_mul_f32 v[32:33], v[32:33], v[34:35]\nv_cvt_pk_bf16_f32 v32, v32, v33\nds_write_b32 v131, v32")
for s in range(2): A(f"ds_read2_b64 v[{24+4*s}:{27+4*s}], v133 offset0:{8*s} offset1:{8*s+4}")
waitprog(PROG['dn'], "L_dn")
stamp('F')
gemv(L_DN, 2, 24, 32, 64)
select4(32, [32, 36, 40, 44])
tag(range(32, 36))
A("""s_mov_b64 exec, s[54:55]
buffer_store_dwordx4 v[32:35], v132, s[36:39], s58 offen sc1
s_mov_b64 exec, -1""")
stamp('F')
A("s_barrier")
A("s_branch L_fin" if DIAG else "s_endpgm")

A("L_final:")
stamp_n['Z'] = 2
if a.ex3: A("s_mov_b32 s34, s33")
else: A("s_lshl_b32 s34, s32, 2\ns_add_u32 s34, s34, s33\ns_sub_u32 s34, s34, 28")
A(f"""s_lshl_b32 s56, s34, 11
s_add_u32 s58, s56, {W_GP}
s_lshl_b32 s56, s56, {a.full}
s_add_u32 s56, s56, {W_SP}
v_lshrrev_b32 v130, 2, v1
v_lshlrev_b32 v130, 7, v130
v_and_b32 v131, 3, v1
v_lshl_add_u32 v130, v131, 4, v130
s_lshl_b32 s60, s34, 5
s_mov_b32 s61, s34
v_and_b32 v129, 3, v1
v_lshlrev_b32 v129, 3, v129
v_lshl_add_u32 v129, v3, 1, v129
s_waitcnt vmcnt(0)
buffer_load_ushort v20, v129, s[40:43], s60 offen
s_mov_b32 s46, {LOG2E}""")
if a.warm:
    waitprog(PROG['gu'], "L_zw", 4)
    warm_lines()
    if a.warm == 1: A("""v_lshlrev_b32 v15, 5, v1
buffer_load_dword v26, v15, s[36:39], s58 offen sc1""")
gettag()
for i in range(4): A(f"v_mov_b32 v{44+i}, v9")
A("s_mov_b32 s18, -1\ns_mov_b32 s19, 0xffff\ns_waitcnt vmcnt(0)\nv_lshlrev_b32 v20, 16, v20")
srd(40, 22, 1024)
ZG = ["buffer_load_dwordx4 v[40:43], v4, s[36:39], s58 offen sc1", "buffer_load_dwordx4 v[44:47], v4, s[36:39], s58 offen offset:1024 sc1"]
ZG1 = ZG[0] + "\ns_mov_b64 exec, s[18:19]\n" + ZG[1] + "\ns_mov_b64 exec, -1"
if a.gearly:
    waitprog(PROG['v3'], "L_zv", 1)
    A(ZG1)
A("s_barrier")
stamp('Z')
def red2(r, clean=False):
    if not clean: untag(range(r, r+8))
    A(f"v_pk_add_f32 v[{r}:{r+1}], v[{r}:{r+1}], v[{r+4}:{r+5}]\nv_pk_add_f32 v[{r+2}:{r+3}], v[{r+2}:{r+3}], v[{r+6}:{r+7}]")
    A(f"v_permlane32_swap_b32 v{r}, v{r+2}\nv_permlane32_swap_b32 v{r+1}, v{r+3}\nv_pk_add_f32 v[{r}:{r+1}], v[{r}:{r+1}], v[{r+2}:{r+3}]")
    A(f"v_permlane16_swap_b32 v{r}, v{r+1}\nv_add_f32 v{r}, v{r}, v{r+1}")
    rowred("v_add_f32", [r], ("row_ror:8", "row_ror:4"))
ZG = ["buffer_load_dwordx4 v[40:43], v4, s[36:39], s58 offen sc1", "buffer_load_dwordx4 v[44:47], v4, s[36:39], s58 offen offset:1024 sc1"]
def silu():
    red2(40)
    bfr(40)
    A("v_mul_f32 v44, s46, v40\nv_exp_f32 v44, -v44\nv_add_f32 v44, 1.0, v44\nv_rcp_f32 v44, v44\nv_mul_f32 v40, v40, v44")
    bfr(40)
ZS = "buffer_load_dwordx4 v[24:27], v4, s[36:39], s56 offen sc1\nbuffer_load_dwordx4 v[28:31], v4, s[36:39], s56 offen offset:1024 sc1"
if a.full: ZS = "buffer_load_dwordx4 v[24:27], v130, s[36:39], s56 offen sc1\nbuffer_load_dwordx4 v[28:31], v130, s[36:39], s56 offen offset:2048 sc1"
def gpart():
    A("s_waitcnt vmcnt(2)")
    A(check_txt(list(range(40, 48)), 56, 57))
    A("s_cbranch_vccnz L_gg_retry\nL_gg_done:")
    OOL.append("L_gg_retry:\ns_add_u32 s35, s35, 1\ns_cmp_ge_u32 s35, %d\ns_cbranch_scc1 L_gg_done\ns_mov_b64 exec, vcc\n" % a.spin + ZG[0] +
               "\ns_and_b64 exec, exec, s[18:19]\n" + ZG[1] + "\ns_mov_b64 exec, -1\n" + ZS + "\ns_waitcnt vmcnt(0)\n" + check_txt(list(range(40, 48)), 56, 57) +
               "\ns_cbranch_vccnz L_gg_retry\ns_branch L_gg_done")
    stamp('Z'); cstamp('Z')
    silu()
if a.zpipe:
    ZB = ZS.replace("v[24:27]", "v[32:35]").replace("v[28:31]", "v[36:39]")
    A("s_mov_b32 s35, 0"); A(ZG1); A(ZS)
    gpart()
    A(ZB)
    A("L_za:\ns_waitcnt vmcnt(2)")
    A(check_txt(list(range(24, 32)), 56, 57))
    A("s_cbranch_vccnz L_zb\nL_sg_done:")
    OOL.append("L_zb:\n" + ZS + f"\ns_add_u32 s35, s35, 1\ns_cmp_ge_u32 s35, {a.spin}\ns_waitcnt vmcnt(2)\ns_cbranch_scc1 L_zc\n" + check_txt(list(range(32, 40)), 56, 57) +
               "\ns_cbranch_vccz L_zc\n" + ZB + "\ns_branch L_za\nL_zc:\n" +
               "\n".join(f"v_and_b32 v{64+i}, s47, v{32+i}" for i in range(8)) + "\ns_branch L_zd")
    for i in range(8): A(f"v_and_b32 v{64+i}, s47, v{24+i}")
    A("L_zd:")
else:
    gather("L_sg", [(ZS, check_txt(list(range(24, 32)), 56, 57))], check_txt(list(range(24, 32)), 56, 57), between=gpart, rsleep=a.zdelay,
           first=ZS if a.gearly else ZG1 + "\n" + ZS)
stamp('Z'); cstamp('Z')
ZR = 64 if a.zpipe else 24
red2(ZR, clean=bool(a.zpipe))
bfr(ZR)
A(f"v_mul_f32 v{ZR}, v{ZR}, v40")
bfr(ZR)
A(f"""v_add_f32 v{ZR}, v{ZR}, v20
v_cvt_pk_bf16_f32 v{ZR}, v{ZR}, v{ZR}
s_mov_b64 exec, s[54:55]
buffer_store_short v{ZR}, v129, s[40:43], s60 offen""" + (" " + a.outsc if a.outsc else ""))
stamp('Z')
if DIAG: A("s_waitcnt vmcnt(0)")
stamp('Z')
if a.pad:
    if a.padh >= 0: A(f"s_cmp_lg_u32 s29, {a.padh}\ns_cbranch_scc1 L_pad_done")
    A(f"L_pad:\ns_memrealtime s[66:67]\ns_waitcnt lgkmcnt(0)\ns_sub_u32 s66, s66, s64\ns_cmp_lt_u32 s66, {a.pad}\ns_cbranch_scc1 L_pad\nL_pad_done:")
A("""s_cmp_lg_u32 s61, 31
s_cbranch_scc1 L_fin
s_mov_b64 exec, 1
v_mov_b32 v16, s44
buffer_store_dword v16, off, s[36:39], 0""" + (" " + a.outsc if a.outsc else ""))
A("L_fin:")
if a.padev:
    role, k = a.padev.split(":"); k = int(k)
    A("v_lshrrev_b32 v4, 6, v0\nv_readfirstlane_b32 s28, v4\ns_waitcnt lgkmcnt(0)")
    if role == 'L': A("s_cmp_lg_u32 s28, 0\ns_cbranch_scc1 L_stop")
    if role == 'C': A("s_cmp_eq_u32 s28, 0\ns_cbranch_scc1 L_stop\ns_cmp_eq_u32 s28, 5\ns_cbranch_scc1 L_stop")
    if role in 'FZ': A("s_cmp_lg_u32 s28, 5\ns_cbranch_scc1 L_stop\ns_cmp_eq_u32 s32, 3\n" + ("s_cbranch_scc1" if role == 'F' else "s_cbranch_scc0") + " L_stop")
    A(f"L_padev:\ns_sleep 2\ns_memrealtime s[98:99]\ns_waitcnt lgkmcnt(0)\ns_sub_u32 s98, s98, s{64+2*k}\ns_cmp_lt_u32 s98, 2000\ns_cbranch_scc1 L_padev")
elif DIAG:
    A("s_mov_b64 exec, -1\ns_waitcnt vmcnt(0)\ns_memrealtime s[94:95]\ns_waitcnt lgkmcnt(0)\nv_mov_b32 v9, 0")
    for i in range(16): A(f"v_writelane_b32 v9, s{64+2*i}, {i}")
    A("v_lshrrev_b32 v4, 6, v0\nv_readfirstlane_b32 s28, v4")
    if DIAG >= 2:
        A(f"s_cmp_lg_u32 s28, {DIAG-2}\ns_cbranch_scc1 L_stop")
        A("s_not_b32 s34, s64\nv_writelane_b32 v9, s34, 0")
        srd(36, 24, 256)
        A("v_lshlrev_b32 v10, 2, v1\ns_mov_b64 exec, 0xffff\nbuffer_atomic_umax v9, v10, s[36:39], 0 offen\ns_endpgm")
    A("s_lshl_b32 s34, s28, 8\ns_add_u32 s34, s34, s2\ns_lshl_b32 s34, s34, 6\ns_add_u32 s34, s34, 0x10000000")
    srd(36, 26, 536870912)
    A("v_lshlrev_b32 v10, 2, v1\ns_mov_b64 exec, 0xffff\nbuffer_store_dword v9, v10, s[36:39], s34 offen")
A("L_stop:\ns_endpgm")
for b in OOL: A(b)
A("L_end:\ns_endpgm")
NV = 164
A('.section .rodata,"a"'); A(".p2align 6"); A(f".amdhsa_kernel {NAME}_kernel")
A(f".amdhsa_next_free_vgpr {NV}\n.amdhsa_next_free_sgpr 102\n.amdhsa_accum_offset {NV}")
A(".amdhsa_group_segment_fixed_size 0\n.amdhsa_kernarg_size 96\n.amdhsa_user_sgpr_count 2")
A(".amdhsa_user_sgpr_kernarg_segment_ptr 1\n.amdhsa_system_sgpr_workgroup_id_x 1\n.end_amdhsa_kernel")
sys.stdout.write("\n".join(hdr) + "\n" + A.text())
```

```python
import sys, argparse, struct, math
sys.path.insert(0, 'tools')
from asmlib import Asm
NAME = "recurrent_scan__sliding_block_cached__geglu_ffn__decode"
ap = argparse.ArgumentParser()
ap.add_argument("--diag", type=int, default=0)
ap.add_argument("--order", default="wq,P3,g,u,k:3,HQ,k:2,S,T5,k:3,dn,HG,T0,wo,v")
ap.add_argument("--win", type=int, default=32)
ap.add_argument("--nt", type=int, default=1)
ap.add_argument("--thr", type=int, default=0)
ap.add_argument("--fast", type=int, default=1)
ap.add_argument("--qdelay", type=int, default=0)
ap.add_argument("--pfcode", type=int, default=0)
ap.add_argument("--warm", type=int, default=0)
ap.add_argument("--tlb", type=int, default=0)
ap.add_argument("--ackstamp", type=int, default=0)
ap.add_argument("--ogflag", default="sc1")
ap.add_argument("--cbrot", type=int, default=0)
ap.add_argument("--ex3", type=int, default=1)
ap.add_argument("--tail", type=int, default=0)
ap.add_argument("--order3", default="wq,P3,k:5,HQ,k:1,S,T5,k:2,wo:3,HG,T0,wo:1,v")
ap.add_argument("--atom", type=int, default=1)
ap.add_argument("--wofirst", type=int, default=1)
ap.add_argument("--clean", type=int, default=0)
ap.add_argument("--outsc", default="")
ap.add_argument("--il", type=int, default=2)
ap.add_argument("--rot", type=int, default=1)
ap.add_argument("--wrot", type=int, default=0)
ap.add_argument("--pad", type=int, default=0)
ap.add_argument("--pvopt", type=int, default=1)
ap.add_argument("--al12", type=int, default=1)
ap.add_argument("--pf0", type=int, default=4)
ap.add_argument("--late", type=int, default=1)
ap.add_argument("--padh", type=int, default=-1)
ap.add_argument("--full", type=int, default=0)
ap.add_argument("--zdelay", type=int, default=0)
ap.add_argument("--gtrig", default="k")
ap.add_argument("--gearly", type=int, default=0)
ap.add_argument("--zpipe", type=int, default=1)
ap.add_argument("--vsleep", type=int, default=0)
ap.add_argument("--xc1", type=int, default=1)
ap.add_argument("--elate", type=int, default=0)
ap.add_argument("--ognt", type=int, default=1)
ap.add_argument("--padev", default="")
ap.add_argument("--zrot", type=int, default=0)
ap.add_argument("--spoff", type=lambda x: int(x, 0), default=0)
ap.add_argument("--cprio", type=int, default=2)
ap.add_argument("--spin", type=int, default=300000)
a = ap.parse_args()
DIAG = a.diag or (9 if a.padev else 0)
NT = " nt" if a.nt else ""
A = Asm()
def f32(x): return struct.unpack('<I', struct.pack('<f', x))[0]

L_WQ, L_G, L_U, L_WO, L_DN = 0, 16384, 24576, 32768, 49152
L_PROG = 57344
L_F1 = 57360
L_F2 = 57376
L_FO = 57392
L_FQ = 57408
L_FM = 57424
L_FG = 57440
L_OF = 57600
L_Q = 57856
L_XN = 59392
L_K = 65536; L_V = 98304
L_P = 131072
L_MX = 135168
L_SU = 136192
LDS_BYTES = 137216
W_XC = 0x2000; W_QP = 0x10000; W_GU = 0x20000
W_SP = (0x40000 if a.full else 0x50000) + a.spoff; W_GP = 0x60000; W_OP = 0x80000; W_SIZE = 0x100000
TAGM = 0x3ff
LOG2E = 0x3fb8aa3b
SCALE = 0x3db504f3
DPPM = "row_mask:0xf bank_mask:0xf"

NWAVES = 6
hdr = f"""; Fused decode step: out = x + (attn(LN(x)) @ wo) * silu(geglu_ffn(LN(x)))        (gfx950, one kernel)
;
; 256 workgroups (one per CU), workgroup b: kv head h = b & 7, slot c = b >> 3, q head r = 4h + (c >> 3), column block cb = c & 7.
;   wave 0     streams every tile the workgroup needs (wq, gate, up, K, down, wo, V; each byte of HBM is read once)
;              into LDS with LDS-DMA and reports progress through an LDS word
;   waves 1-4  layer norm, 128x64 tile of the q projection, scores / online softmax / P.V for 128 keys x 4 heads (MFMA),
;              then combine the 32 partial results of head r and apply a 128x64 tile of wo
;   wave 5     64x64 tiles of gate / up / down (224 workgroups) or the final sum for 16 output columns (32 workgroups)
; Partial results travel through d_ws as 16-byte granules that carry this launch's tag (d_ws word 0 holds the tag of the
; previous launch, the new one is that value + 1); readers poll until every granule they need shows the tag.
; Stores between workgroups are write-through, except the attention partials when the hardware ids show that the whole
; kv-head group sits on one XCD: then the shared L2 is the meeting point.
; @launch grid=(256,1,1) block=({NWAVES*64},1,1) lds={LDS_BYTES}""".split("\n")
A('.amdgcn_target "amdgcn-amd-amdhsa--gfx950"')
A(".text"); A(f".globl {NAME}_kernel")
if a.al12: A(".p2align 12")
A(".p2align 8"); A(f".type {NAME}_kernel,@function"); A(f"{NAME}_kernel:")

def ffn_ids(fb, j):
    if a.ex3:
        A(f"""s_mul_i32 s{fb}, s33, 7
s_add_u32 s{fb}, s{fb}, s32
s_cmp_gt_u32 s32, 3
s_subb_u32 s{fb}, s{fb}, 0
s_and_b32 s{j}, s{fb}, 7
s_lshr_b32 s{fb}, s{fb}, 3
s_cmp_eq_u32 s32, 3""")
    else:
        A(f"s_mov_b32 s{fb}, s33\ns_mov_b32 s{j}, s32\ns_cmp_ge_u32 s33, 28")
stamp_n = {}
EARLY = [True]
def tstamp():
    if DIAG and a.tail: stamp('C')
def stamp(role):
    if not DIAG: return
    if a.tail and role == 'C' and EARLY[0]: return
    k = stamp_n.get(role, 1); stamp_n[role] = k + 1
    assert k < 15
    A(f"s_memrealtime s[{64+2*k}:{65+2*k}]")
def cstamp(role, reg="s35"):
    if not DIAG: return
    if a.tail and role == 'C' and EARLY[0]: return
    k = stamp_n.get(role, 1); stamp_n[role] = k + 1
    assert k < 15
    A(f"s_waitcnt lgkmcnt(0)\ns_mul_i32 s{64+2*k}, {reg}, 100\ns_add_u32 s{64+2*k}, s{64+2*k}, s64")
def srd(d, p, n):
    A(f"s_mov_b32 s{d}, s{p}\ns_mov_b32 s{d+1}, s{p+1}\ns_mov_b32 s{d+2}, {n}\ns_mov_b32 s{d+3}, 0x20000")


if DIAG or a.pad: A("s_memrealtime s[64:65]")
A(f"""s_load_dwordx16 s[4:19], s[0:1], 0
s_load_dwordx8 s[20:27], s[0:1], 64
v_lshrrev_b32 v4, 6, v0
v_and_b32 v1, 63, v0
v_readfirstlane_b32 s28, v4
s_cmp_ge_u32 s2, 256
s_cbranch_scc1 L_end
s_and_b32 s29, s2, 7
s_lshr_b32 s30, s2, 3
s_lshr_b32 s31, s30, 3
s_add_u32 s32, s30, {a.cbrot}
s_and_b32 s32, s32, 7
v_lshrrev_b32 v3, 4, v1
s_cmp_lg_u32 s28, 0
s_cbranch_scc1 L_xload""")
A(f"""v_lshrrev_b32 v2, 3, v1
v_and_b32 v5, 7, v1
v_lshlrev_b32 v6, 1, v3
v_xor_b32 v5, v6, v5
v_lshlrev_b32 v5, 4, v5
v_lshl_add_u32 v20, v2, 13, v5
v_mov_b32 v21, v20
s_lshl_b32 s46, s31, 20
s_lshl_b32 s34, s29, 10
s_add_u32 s46, s46, s34
s_lshl_b32 s35, s32, 7
s_add_u32 s46, s46, s35
s_mov_b32 s50, 4194304
s_mov_b32 s51, 0x20000
s_mov_b32 s52, {8*8192-1024}
s_mov_b32 s53, {8*8192+3072}
s_movk_i32 s55, 0x1000
s_mov_b32 s43, -1
s_mov_b32 m0, {L_WQ}
s_mov_b32 s54, 3
s_getpc_b64 s[62:63]
L_pc0:
s_add_u32 s62, s62, L_ld_start - L_pc0
s_addc_u32 s63, s63, 0
s_waitcnt lgkmcnt(0)
s_mov_b32 s48, s10
s_mov_b32 s49, s11""")
stamp('L')
A(f"""L_quads:
buffer_load_dwordx4 v20, s[48:51], s46 offen{NT} lds
s_add_u32 s46, s46, s52
buffer_load_dwordx4 v21, s[48:51], s46 offen offset:1024{NT} lds
s_add_u32 s46, s46, s52
buffer_load_dwordx4 v20, s[48:51], s46 offen offset:2048{NT} lds
s_add_u32 s46, s46, s52
buffer_load_dwordx4 v21, s[48:51], s46 offen offset:3072{NT} lds
s_add_u32 s46, s46, s53
s_add_u32 m0, m0, s55""")
if a.rot or a.wrot:
    A("s_cmp_ge_u32 s46, s43\ns_cselect_b32 s34, s44, 0\ns_cselect_b32 s47, s45, 0\ns_sub_u32 s46, s46, s34\ns_sub_u32 m0, m0, s47")
A("""s_sub_u32 s54, s54, 1
s_cbranch_scc0 L_quads
s_setpc_b64 s[62:63]
L_xload:
v_lshlrev_b32 v4, 4, v1""")
if a.pf0:
    A("""s_and_b32 s33, s30, 3
s_getpc_b64 s[34:35]
L_pc1:
s_mul_i32 s33, s33, 5120
v_lshlrev_b32 v15, 4, v0
v_add_u32 v15, s33, v15
v_cmp_gt_u32 vcc, L_end - L_pc1 + 1024 - 12, v15
s_and_saveexec_b64 s[36:37], vcc
s_cbranch_execz L_nopf0
global_load_dwordx4 v[160:163], v15, s[34:35] offset:-1024
L_nopf0:
s_mov_b64 exec, -1""")
A(f"""s_setprio {a.cprio}
s_mov_b32 s42, 1024
s_mov_b32 s43, 0x20000
s_waitcnt lgkmcnt(0)
s_mov_b32 s40, s4
s_mov_b32 s41, s5
buffer_load_dwordx4 v[20:23], v4, s[40:43], 0 offen""")
if not a.elate: A("s_load_dword s44, s[26:27], 0")
A("""s_branch L_compute
L_ld3b:
s_barrier
s_branch L_ld3
L_ld_start:""")
QUADS = {'wq': 4, 'g': 2, 'u': 2, 'k': 8, 'v': 8, 'wo': 4, 'dn': 2}
HOLDS = ('HQ', 'HO', 'HG')
def parse(spec):
    out = []
    for o in spec.split(','):
        if ':' in o: n, q = o.split(':'); out.append((n, int(q)))
        else: out.append((o, QUADS.get(o, 0)))
    return out
order = parse(a.order)
assert order[0] == ('wq', 4)
names = [n for n, _ in order]
def completion(order):
    ev = []; done = {}; idx = 0
    for n, q in order:
        if n == 'S': ev.append((idx, 'S'))
        if n not in QUADS: continue
        for j in range(q):
            done[n] = done.get(n, 0) + 1; idx += 1
            if n == 'v' and done[n] % 2 == 0: ev.append((idx, f'v{done[n]//2-1}'))
            elif n != 'v' and done[n] == QUADS[n] and n != 'g': ev.append((idx, n))
    return ev, done
ev, done = completion(order)
assert done == QUADS, done
assert names.index('g') < names.index('u')
PROG = {n: i + 1 for i, (_, n) in enumerate(ev)}
PROG['gu'] = PROG['u']
def signal(p):
    A(f"v_mov_b32 v12, {p}\ns_mov_b64 exec, 1\nds_write_b32 v14, v12\ns_mov_b64 exec, -1")
def wait4(off, lbl, sleep=0):
    A(f"{lbl}:")
    if sleep: A(f"s_sleep {sleep}")
    A(f"""ds_read_b128 v[16:19], v14 offset:{off - L_PROG}
s_waitcnt lgkmcnt(0)
v_and_b32 v16, v16, v17
v_and_b32 v18, v18, v19
v_and_b32 v16, v16, v18
v_readfirstlane_b32 s34, v16
s_cmp_eq_u32 s34, 0
s_cbranch_scc1 {lbl}""")
SEG = {
    'g':  (16, 1835008, (7, 7), 57, 8*3584, L_G),
    'u':  (18, 1835008, (7, 7), 57, 8*3584, L_U),
    'k':  (6, 134217728, (9, 10), 58, 32768 if a.il == 2 else 1024, L_K),
    'v':  (8, 134217728, (9, 10), 58, 32768 if a.il == 2 else 1024, L_V),
    'wo': (12, 4194304, (8, 8), 59, 8*1024, L_WO),
    'dn': (20, 1835008, (8, 8), 60, 8*1024, L_DN),
}
def program(order, pre, bar=False):
    ev, _ = completion(order)
    pend = [(e, PROG[n]) for e, n in ev]
    assert [p for _, p in pend] == sorted(p for _, p in pend)
    st = dict(issued=4, bar=bar, win=a.win // 4, thr=False)
    def emit_sig():
        e, p = pend.pop(0)
        A(f"s_waitcnt vmcnt({4*(st['issued'] - e)})"); signal(p); stamp('L')
    def ensure_barrier():
        if not st['bar']: A("s_barrier"); st['bar'] = True
    cur = 'wq'; donec = {}; curv = None; curstep = 8*8192
    for n, q in order[1:]:
        if n == 'S': continue
        if n[0] == 'P':
            A(f"s_setprio {n[1:]}"); continue
        if n[0] == 'T':
            w = int(n[1:]); st['thr'] = w > 0; st['win'] = w if w else a.win // 4
            continue
        if n in HOLDS:
            ensure_barrier()
            if n == 'HG': wait4(L_FG, pre + "hg")
            elif n == 'HQ':
                while PROG['wq'] in [p for _, p in pend]: emit_sig()
                wait4(L_FQ, pre + "hq")
            else:
                while pend and pend[0][0] <= st['issued']: emit_sig()
                A("s_setprio 3")
                wait4(L_FO, pre + "ho")
            stamp('L')
            continue
        ptr, size, vo, base, step, lb = SEG[n]
        d0 = donec.get(n, 0)
        if n != cur:
            A(f"s_mov_b32 s48, s{ptr}\ns_mov_b32 s49, s{ptr+1}\ns_mov_b32 s50, {size}")
            qstep = 131072 if (a.il and n in 'kv') else 4*step
            rot = {'k': (29, a.rot), 'v': (29, a.rot), 'wo': (33, a.wrot), 'dn': (40, a.wrot)}.get(n, (0, 0))
            if rot[1]:
                nq = QUADS[n]
                A(f"s_mul_i32 s34, s{rot[0]}, {rot[1]}\ns_add_u32 s34, s34, {d0}\ns_and_b32 s34, s34, {nq-1}\ns_mul_i32 s46, s34, {qstep}\ns_add_u32 s46, s46, s{base}")
                A(f"s_add_u32 s43, s{base}, {nq*qstep}\ns_mov_b32 s44, {nq*qstep}")
                if n in 'kv': A(f"s_mov_b32 s45, 0\ns_mov_b32 m0, {lb + d0*4096}")
                else: A(f"s_mov_b32 s45, {nq*4096}\ns_lshl_b32 s34, s34, 12\ns_add_u32 m0, s34, {lb}")
            else:
                if d0: A(f"s_add_u32 s46, s{base}, {d0*qstep}")
                else: A(f"s_mov_b32 s46, s{base}")
                if a.rot or a.wrot: A("s_mov_b32 s43, -1")
                A(f"s_mov_b32 m0, {lb + d0*4096}")
            if vo != curv: A(f"v_mov_b32 v20, v{vo[0]}\nv_mov_b32 v21, v{vo[1]}"); curv = vo
            if step != curstep: A(f"s_mov_b32 s52, {step-1024}\ns_mov_b32 s53, {qstep - 3*(step-1024)}"); curstep = step
        cur = n
        left = q
        while left:
            take = left
            if st['thr']: take = 1
            elif not st['bar']: take = min(take, max(1, 8 - st['issued']))
            elif pend:
                due = pend[0][0] + st['win'] - st['issued']
                if 0 < due < take: take = due
            A(f"s_mov_b32 s54, {take-1}\ns_call_b64 s[62:63], L_quads")
            st['issued'] += take; left -= take
            if st['issued'] >= min(8, st['win']): ensure_barrier()
            sig = False
            while st['bar'] and pend and pend[0][0] + st['win'] <= st['issued']: emit_sig(); sig = True
            if st['thr'] and not sig and st['issued'] > st['win']: A(f"s_waitcnt vmcnt({4*st['win']})")
        donec[n] = d0 + q
    ensure_barrier()
    A("s_setprio 3\ns_mov_b64 exec, 1")
    while pend:
        e, p = pend.pop(0)
        A(f"v_mov_b32 v{24+p}, {p}\ns_waitcnt vmcnt({4*(st['issued'] - e)})\nds_write_b32 v14, v{24+p}"); stamp('L')
    A("s_branch L_fin" if DIAG else "s_endpgm")
A(f"""v_mov_b32 v14, {L_PROG}
s_lshl_b32 s33, s29, 2
s_add_u32 s33, s33, s31
v_mul_u32_u24 v7, 3584, v2
v_add_u32 v7, v7, v5
v_lshl_add_u32 v8, v2, 10, v5
v_and_b32 v2, 15, v1
v_xor_b32 v9, v6, v2
v_lshlrev_b32 v9, 4, v9
v_lshl_add_u32 v9, v3, 8, v9
v_xor_b32 v10, 0x80, v9
s_lshl_b32 s58, s29, 24
s_lshl_b32 s34, s30, {[15, 12, 10][a.il]}
s_add_u32 s58, s58, s34
s_add_u32 s58, s58, {(65536-4096)*256}
s_lshl_b32 s59, s33, 17
s_add_u32 s59, s59, s35""")
if DIAG:
    for i in range(68, 96): A(f"s_mov_b32 s{i}, 0")
ffn_ids(40, 41)
A(f"""s_cbranch_scc1 L_ld3b
s_mul_i32 s57, s41, {64*3584}
s_lshl_b32 s34, s40, 7
s_add_u32 s57, s57, s34
s_lshl_b32 s60, s40, 16
s_lshl_b32 s34, s41, 7
s_add_u32 s60, s60, s34""")
save = dict(stamp_n)
program(order, "L_a")
def second_program():
    A("L_ld3:")
    stamp_n.update(save)
    program(parse(a.order3), "L_b", bar=True)
order = names

OOL = []
def waitprog(p, lbl, sleep=1):
    A(f"s_cmp_ge_u32 s63, {p}\ns_cbranch_scc1 {lbl}_ok")
    A(f"""{lbl}:
ds_read_b32 v15, v14
s_waitcnt lgkmcnt(0)
v_readfirstlane_b32 s63, v15
s_cmp_ge_u32 s63, {p}""")
    if sleep: A(f"s_cbranch_scc1 {lbl}_ok\ns_sleep {sleep}\ns_branch {lbl}")
    else: A(f"s_cbranch_scc0 {lbl}")
    A(f"{lbl}_ok:")
def setflag(off):
    A(f"s_mov_b64 exec, 1\nds_write_b32 v5, v6 offset:{off - L_PROG}\ns_mov_b64 exec, -1")
def sync(off, lbl, reads, prog=False):
    A(f"{lbl}:")
    if prog: A("ds_read_b32 v15, v14")
    A(f"ds_read_b128 v[16:19], v14 offset:{off - L_PROG}")
    A(reads)
    n = sum(1 for l in reads.split("\n") if l.strip().startswith("ds_"))
    A(f"""s_waitcnt lgkmcnt({n})
v_and_b32 v16, v16, v17
v_and_b32 v18, v18, v19
v_and_b32 v16, v16, v18""")
    if prog: A("v_readfirstlane_b32 s63, v15")
    A(f"""v_readfirstlane_b32 s34, v16
s_cmp_eq_u32 s34, 0
s_cbranch_scc1 {lbl}""")
def tag(regs, rnd=False):
    if rnd:
        for r in regs: A(f"v_add_u32 v{r}, {(TAGM+1)//2}, v{r}")
    for r in regs: A(f"v_and_or_b32 v{r}, v{r}, s47, v9")
def check(regs, acc, tmp, dst="vcc"):
    ps = [(regs[i], regs[i+1]) for i in range(0, len(regs), 2)]
    A(f"v_bitop3_b32 v{acc}, v{ps[0][0]}, v{ps[0][1]}, v9 bitop3:0x7e")
    i = 1
    while i < len(ps):
        if i + 1 < len(ps):
            A(f"v_bitop3_b32 v{tmp}, v{ps[i][0]}, v{ps[i][1]}, v9 bitop3:0x7e")
            A(f"v_bitop3_b32 v{tmp+1}, v{ps[i+1][0]}, v{ps[i+1][1]}, v9 bitop3:0x7e")
            A(f"v_or3_b32 v{acc}, v{acc}, v{tmp}, v{tmp+1}"); i += 2
        else:
            A(f"v_bitop3_b32 v{tmp}, v{ps[i][0]}, v{ps[i][1]}, v9 bitop3:0x7e")
            A(f"v_or_b32 v{acc}, v{acc}, v{tmp}"); i += 1
    A(f"v_and_b32 v{acc}, {TAGM}, v{acc}")
    A(f"v_cmp_ne_u32 {dst}, 0, v{acc}")
def untag(regs):
    for r in regs: A(f"v_and_b32 v{r}, s47, v{r}")
def dpp(op, d, s, ctl, bank="0xf"):
    A(f"{op}_dpp v{d}, v{s}, v{s} {ctl} row_mask:0xf bank_mask:{bank}")
def rowred(op, regs, steps=("row_ror:8", "row_ror:4", "row_ror:2", "row_ror:1")):
    for s in steps:
        for r in regs: dpp(op, r, r, s)
def xrow(op, r, t):
    A(f"v_mov_b32 v{t}, v{r}\nv_permlane16_swap_b32 v{t}, v{r}\n{op} v{r}, v{r}, v{t}")
    A(f"v_mov_b32 v{t}, v{r}\nv_permlane32_swap_b32 v{t}, v{r}\n{op} v{r}, v{r}, v{t}")
def bfr(r):
    A(f"v_cvt_pk_bf16_f32 v{r}, v{r}, v{r}\nv_lshlrev_b32 v{r}, 16, v{r}")
def bfr2(r0, r1):
    A(f"v_cvt_pk_bf16_f32 v{r1}, v{r0}, v{r1}\nv_lshlrev_b32 v{r0}, 16, v{r1}\nv_and_b32 v{r1}, 0xffff0000, v{r1}")
def select4(dst, srcs, masks=("s[48:49]", "s[50:51]", "s[52:53]")):
    for t in range(1, len(srcs)):
        for i in range(4):
            s0 = srcs[0] + i if t == 1 else dst + i
            A(f"v_cndmask_b32 v{dst+i}, v{s0}, v{srcs[t]+i}, {masks[t-1]}")
def layernorm():
    for i in range(4):
        A(f"v_lshlrev_b32 v{24+2*i}, 16, v{20+i}\nv_and_b32 v{25+2*i}, 0xffff0000, v{20+i}")
    A("""v_pk_add_f32 v[32:33], v[24:25], v[26:27]
v_pk_add_f32 v[34:35], v[28:29], v[30:31]
v_pk_add_f32 v[32:33], v[32:33], v[34:35]
v_add_f32 v32, v32, v33""")
    rowred("v_add_f32", [32]); xrow("v_add_f32", 32, 33)
    A("v_mul_f32 v32, 0x3b000000, v32")
    for i in range(4): A(f"v_pk_add_f32 v[{36+2*i}:{37+2*i}], v[{24+2*i}:{25+2*i}], v[32:33] op_sel_hi:[1,0] neg_lo:[0,1] neg_hi:[0,1]")
    A("v_pk_mul_f32 v[34:35], v[36:37], v[36:37]")
    for i in range(1, 4): A(f"v_pk_fma_f32 v[34:35], v[{36+2*i}:{37+2*i}], v[{36+2*i}:{37+2*i}], v[34:35]")
    A("v_add_f32 v33, v34, v35")
    rowred("v_add_f32", [33]); xrow("v_add_f32", 33, 34)
    A("v_mul_f32 v33, 0x3b000000, v33")
    bfr2(32, 33)
    A("v_add_f32 v34, 0x3727c5ac, v33")
    for i in range(2): A(f"v_pk_add_f32 v[{24+2*i}:{25+2*i}], v[{24+2*i}:{25+2*i}], v[32:33] op_sel_hi:[1,0] neg_lo:[0,1] neg_hi:[0,1]")
    bfr(34)
    A("v_sqrt_f32 v34, v34")
    for i in range(2, 4): A(f"v_pk_add_f32 v[{24+2*i}:{25+2*i}], v[{24+2*i}:{25+2*i}], v[32:33] op_sel_hi:[1,0] neg_lo:[0,1] neg_hi:[0,1]")
    bfr(34)
    A("v_rcp_f32 v44, v34")
    for i in range(4): bfr2(24+2*i, 25+2*i)
    for i in range(4): A(f"v_pk_mul_f32 v[{36+2*i}:{37+2*i}], v[{24+2*i}:{25+2*i}], v[44:45] op_sel_hi:[1,0]")
    for i in range(4): A(f"v_pk_fma_f32 v[{24+2*i}:{25+2*i}], v[{36+2*i}:{37+2*i}], v[34:35], v[{24+2*i}:{25+2*i}] op_sel_hi:[1,0,1] neg_lo:[1,0,0] neg_hi:[1,0,0]")
    for i in range(4): A(f"v_pk_fma_f32 v[{36+2*i}:{37+2*i}], v[{24+2*i}:{25+2*i}], v[44:45], v[{36+2*i}:{37+2*i}] op_sel_hi:[1,0,1]")
    for i in range(4): A(f"v_cvt_pk_bf16_f32 v{24+i}, v{36+2*i}, v{37+2*i}")
    A("ds_write_b128 v7, v[24:27]")
class Txt:
    def __init__(self): self.l = []
    def __call__(self, t): self.l.append(t)
def check_txt(regs, acc, tmp):
    global A
    keep = A; A = Txt(); check(regs, acc, tmp); t = "\n".join(A.l); A = keep
    return t
def gather(name, groups, allchk, between=None, first=None, rsleep=0, once=False):
    A("s_mov_b32 s35, 0")
    if once: groups = [("\n".join(l for l, _ in groups), allchk)]
    if first: A(first)
    else:
        for l, _ in groups: A(l)
    if between: between()
    if name == "L_og" and DIAG and a.tail:
        A("s_waitcnt vmcnt(0)"); tstamp()
    A("s_waitcnt vmcnt(0)")
    A(allchk)
    A(f"s_cbranch_vccnz {name}_retry\n{name}_done:")
    assert len(groups) == 1
    load, chk = groups[0]
    blk = f"{name}_retry:\n"
    if rsleep: blk += f"s_sleep {rsleep}\n"
    blk += f"s_mov_b64 exec, vcc\n{load}\ns_mov_b64 exec, -1\ns_add_u32 s35, s35, 1\ns_cmp_ge_u32 s35, {a.spin}\ns_waitcnt vmcnt(0)\ns_cbranch_scc1 {name}_done\n"
    blk += f"{chk}\ns_cbranch_vccnz {name}_retry\ns_branch {name}_done"
    OOL.append(blk)
def tagged(loads, acc, tmp):
    return [(l, check_txt(list(range(r, r+4)), acc, tmp)) for l, r in loads], check_txt(sum((list(range(r, r+4)) for _, r in loads), []), acc, tmp)
def pub(line):
    if not a.fast:
        A(line + " sc1"); return
    pub.n += 1
    A(f"s_cmp_eq_u32 s62, 0\ns_cbranch_scc1 L_ps{pub.n}\n{line}\nL_pd{pub.n}:")
    OOL.append(f"L_ps{pub.n}:\n{line} sc1\ns_branch L_pd{pub.n}")
pub.n = 0
def gettag():
    A(f"""s_waitcnt lgkmcnt(0)
s_add_u32 s44, s44, 1
s_and_b32 s45, s44, {TAGM}
v_mov_b32 v9, s45""")

A("L_compute:")
A(f"""s_mov_b32 s38, {W_SIZE}
s_mov_b32 s39, 0x20000
v_and_b32 v2, 15, v1
v_mov_b32 v14, {L_PROG}
s_lshl_b32 s33, s29, 2
s_add_u32 s33, s33, s31
s_sub_u32 s28, s28, 1
s_mov_b32 s36, s26
s_mov_b32 s37, s27""")
if DIAG:
    for i in range(66, 96): A(f"s_mov_b32 s{i}, 0")
stamp('C')
if a.tlb:
    A(f"""s_cmp_lg_u32 s28, 4
s_cbranch_scc1 L_notlb
s_lshl_b32 s34, s29, 24
s_lshl_b32 s35, s30, {[15, 12, 10][a.il]}
s_add_u32 s34, s34, s35
s_add_u32 s34, s34, {(65536-4096)*256}
s_load_dword s96, s[6:7], s34
s_load_dword s96, s[8:9], s34
s_lshl_b32 s35, s33, 17
s_load_dword s96, s[12:13], s35
""")
    ffn_ids(48, 49)
    A(f"""s_cbranch_scc1 L_notlb
s_mul_i32 s34, s49, {64*3584}
s_load_dword s96, s[16:17], s34
s_load_dword s96, s[18:19], s34
s_lshl_b32 s35, s48, 16
s_load_dword s96, s[20:21], s35
L_notlb:""")
if a.pfcode:
    A(f"""s_cmp_lg_u32 s28, 4
s_cbranch_scc1 L_nopf
s_getpc_b64 s[16:17]
L_pc:
s_min_u32 s34, s30, (L_end - L_pc) / 1024
s_lshl_b32 s34, s34, 10
s_min_u32 s34, s34, L_end - L_pc - 1020
s_add_u32 s16, s16, s34
s_addc_u32 s17, s17, 0
global_load_dwordx4 v[160:163], v4, s[16:17]
L_nopf:""")
def warm_lines():
    if not a.warm: return
    if a.warm >= 2:
        A(f"""s_lshl_b32 s34, s33, 14
s_lshl_b32 s35, s32, 11
s_add_u32 s34, s34, s35
s_add_u32 s34, s34, {W_OP}
s_add_u32 s96, s26, s34
s_addc_u32 s97, s27, 0""")
        for i in range(0, 2048, 128 if a.warm == 2 else 64): A(f"s_load_dword s98, s[96:97], {i}")
        return
    A(f"""s_lshl_b32 s34, s33, 14
s_lshl_b32 s35, s32, 11
s_add_u32 s34, s34, s35
s_add_u32 s34, s34, {W_OP}
v_lshlrev_b32 v15, 7, v1
s_mov_b64 exec, 0xffff
buffer_load_dword v144, v15, s[36:39], s34 offen sc1 nt
s_mov_b64 exec, -1""")
A(f"""s_lshl_b32 s34, s28, 2
v_add_u32 v5, s34, v14
v_mov_b32 v6, 1
s_lshl_b32 s46, s28, 10
s_add_u32 s46, s46, {L_XN}
v_add_u32 v7, s46, v4
s_mov_b32 s63, 0""")
A("""v_lshrrev_b32 v8, 2, v2
v_lshl_add_u32 v8, v3, 2, v8
v_lshrrev_b32 v15, 1, v8
v_and_b32 v15, 3, v15
v_and_b32 v16, 3, v2
v_lshlrev_b32 v16, 3, v16
v_lshl_add_u32 v17, v8, 7, v16
v_lshl_add_u32 v10, v15, 5, v17""")
for t in range(1, 4): A(f"v_xor_b32 v{10+t}, {t*32}, v10")
A(f"""s_mov_b32 s47, {(~TAGM) & 0xffffffff}
s_mov_b32 s54, 0x00010001
s_mov_b32 s55, 0x00010001
s_cmp_lg_u32 s28, 1
s_cbranch_scc1 L_noinit
v_mov_b32 v15, 0
v_lshl_add_u32 v17, v1, 2, v14
ds_write_b32 v17, v15
s_waitcnt lgkmcnt(0)
L_noinit:""")
if a.elate: A("s_load_dword s44, s[26:27], 0")
A(f"""s_barrier
s_cmp_eq_u32 s28, 4
s_cbranch_scc1 L_ffn""")

QG, QW, KA, QR, PW, MW, MR, VA, OS, OG, MG, OW, G16, TA_, XG, PR, XR = 136, 137, 138, 142, 143, 144, 145, 146, 148, 149, 150, 151, 152, 153, 154, 155, 156
KF, WOF, PF = 56, 88, 104
A(f"""v_lshlrev_b32 v{G16}, 4, v3
s_lshl_b32 s34, s28, 5
v_xor_b32 v{TA_}, s34, v10
s_lshl_b32 s34, s31, 8
s_add_u32 s34, s34, s46
v_lshl_add_u32 v{XR}, v3, 3, s34
s_lshl_b32 s48, s33, 11
s_lshl_b32 s34, s32, 8
s_add_u32 s48, s48, s34
s_lshl_b32 s34, s28, 6
s_add_u32 s48, s48, s34
s_add_u32 s48, s48, {W_QP}
s_lshl_b32 s50, s29, 9
s_add_u32 s50, s50, {W_XC}
s_lshl_b32 s34, s30, 4
s_add_u32 s51, s50, s34
s_getreg_b32 s61, hwreg(HW_REG_XCC_ID, 0, 4)
s_lshl_b32 s60, s61, 16""")
def late_setup():
    A(f"""v_lshlrev_b32 v15, 4, v2
v_lshl_add_u32 v{QG}, v3, 11, v15
s_mul_i32 s34, s28, 320
s_add_u32 s34, s34, {L_Q}
v_and_b32 v15, 1, v3
v_lshlrev_b32 v17, 7, v15
v_lshl_add_u32 v17, v2, 3, v17
v_lshrrev_b32 v18, 1, v3
v_lshl_add_u32 v17, v18, 2, v17
v_add_u32 v{QW}, s34, v17
v_and_b32 v17, 3, v1
v_lshlrev_b32 v17, 4, v17
v_lshl_add_u32 v17, v15, 1, v17
v_bfe_u32 v15, v1, 2, 1
v_lshl_add_u32 v17, v15, 3, v17
v_bfe_u32 v15, v1, 3, 1
v_lshl_add_u32 v17, v15, 2, v17
s_lshl_b32 s34, s28, 6
s_add_u32 s34, s34, {L_OF}
v_add_u32 v{OW}, s34, v17
v_and_b32 v17, 7, v1
v_lshlrev_b32 v15, 1, v17
v_xor_b32 v15, v15, v3
v_lshlrev_b32 v15, 4, v15
v_lshl_add_u32 v15, v2, 8, v15
s_lshl_b32 s34, s28, 13
s_add_u32 s34, s34, {L_K}
v_add_u32 v{KA}, s34, v15
v_xor_b32 v{KA+1}, 64, v{KA}
v_xor_b32 v{KA+2}, 128, v{KA}
v_xor_b32 v{KA+3}, 192, v{KA}
v_lshrrev_b32 v15, 3, v1
v_lshlrev_b32 v17, 4, v17
v_lshl_add_u32 v{OG}, v15, 9, v17
v_and_b32 v18, 3, v2
v_mul_u32_u24 v{QR}, 320, v18
v_add_u32 v{QR}, v{QR}, v{G16}
s_lshl_b32 s34, s28, 10
s_add_u32 s34, s34, {L_P}
v_add_u32 v{PW}, s34, v4
v_add_u32 v{PR}, {L_P}, v4
v_lshlrev_b32 v15, 3, v1
v_add_u32 v{MR}, {L_MX}, v15
s_lshl_b32 s34, s28, 9
v_add_u32 v{MW}, s34, v{MR}
v_and_b32 v15, 7, v8
s_lshl_b32 s34, s28, 1
v_xor_b32 v15, s34, v15
v_lshlrev_b32 v15, 5, v15
v_lshl_add_u32 v15, v8, 8, v15
v_add_u32 v15, v15, v16
v_add_u32 v{VA}, {L_V}, v15
v_xor_b32 v{VA+1}, 32, v{VA}
v_lshlrev_b32 v15, 14, v18
v_lshrrev_b32 v17, 2, v2
v_lshl_add_u32 v15, v17, 6, v15
v_add_u32 v{OS}, v15, v{G16}
v_and_b32 v{XG}, 31, v1
v_lshlrev_b32 v{XG}, 4, v{XG}
s_lshl_b32 s49, s29, 13
s_lshl_b32 s34, s28, 9
s_add_u32 s49, s49, s34
s_add_u32 s49, s49, {W_QP}
s_lshl_b32 s53, s29, 16
s_lshl_b32 s34, s30, 9
s_add_u32 s53, s53, s34
s_lshl_b32 s35, s28, 7
s_add_u32 s53, s53, s35
s_add_u32 s53, s53, {W_OP}
s_lshl_b32 s56, s33, 14
s_add_u32 s56, s56, s35
s_add_u32 s56, s56, {W_OP}
s_add_u32 s57, s56, 4096
s_add_u32 s4, s56, 8192
s_add_u32 s5, s56, 12288
s_lshl_b32 s59, s32, {13 + a.full}
s_lshl_b32 s34, s33, {6 + a.full}
s_add_u32 s59, s59, s34
s_lshl_b32 s34, s28, {11 + a.full}
s_add_u32 s59, s59, s34
v_lshl_add_u32 v157, v2, 6, v{G16}
s_add_u32 s59, s59, {W_SP}
s_mov_b32 s46, {LOG2E}
s_mov_b32 s10, {SCALE}
s_mov_b32 s11, {SCALE}
s_mov_b32 s16, 0x000f000f
s_mov_b32 s17, 0x000f000f
s_mov_b32 s18, 0x00f000f0
s_mov_b32 s19, 0x00f000f0
s_mov_b32 s14, 0x00ff00ff
s_mov_b32 s15, 0x00ff00ff""")
if not a.late: late_setup()
A("s_waitcnt vmcnt(0)")
stamp('C')
layernorm()
for s in range(4): A(f"ds_read2_b64 v[{24+4*s}:{27+4*s}], v{XR} offset0:{8*s} offset1:{8*s+4}")
gettag()
A("v_or_b32 v44, s60, v9\nv_mov_b32 v45, v9\nv_mov_b32 v46, v9\nv_mov_b32 v47, v9")
if not a.ackstamp: stamp('C')
waitprog(PROG['wq'], "L_wq", 0)
stamp('C')
for s in range(4):
    A(f"ds_read_b64_tr_b16 v[{56+4*s}:{57+4*s}], v{TA_} offset:{L_WQ + s*4096}")
    A(f"ds_read_b64_tr_b16 v[{58+4*s}:{59+4*s}], v{TA_} offset:{L_WQ + s*4096 + 2048}")
for s in range(4):
    A(f"s_waitcnt lgkmcnt({6-2*s})")
    c = "0" if s == 0 else "v[40:43]"
    A(f"v_mfma_f32_16x16x32_bf16 v[40:43], v[{56+4*s}:{59+4*s}], v[{24+4*s}:{27+4*s}], {c}")
A("s_mov_b64 exec, s[54:55]")
tag(range(40, 44), True)
A(f"""buffer_store_dwordx4 v[40:43], v{G16}, s[36:39], s48 offen sc1
s_mov_b64 exec, 1
s_cmp_lg_u32 s28, 0
s_cbranch_scc1 L_noxc
buffer_store_dwordx4 v[44:47], off, s[36:39], s51 sc1
L_noxc:""")
A(f"ds_write_b32 v5, v6 offset:{L_FQ - L_PROG}\ns_mov_b64 exec, -1")
stamp('C')
A("s_branch L_over3")
keepC = stamp_n.get('C')
second_program()
if keepC: stamp_n['C'] = keepC
A("L_over3:")
if a.late: late_setup()
for i in range(32): A(f"v_mov_b32 v{PF+i}, 0")
if a.xc1:
    for i in range(4): A(f"v_mov_b32 v{32+i}, v{44+i}")
A("s_waitcnt vmcnt(0)")
if 'S' in PROG: waitprog(PROG['S'], "L_S")
stamp('C')
def k_frags():
    if 'HG' in order: setflag(L_FG)
    waitprog(PROG['k'], "L_k")
    for t in range(2):
        for s in range(4):
            r = KF + 16*t + 4*s
            A(f"ds_read_b128 v[{r}:{r+3}], v{KA+s} offset:{t*4096}")
QL = [(f"buffer_load_dwordx4 v[24:27], v{QG}, s[36:39], s49 offen sc1", 24),
      (f"buffer_load_dwordx4 v[28:31], v{QG}, s[36:39], s49 offen offset:256 sc1", 28),
      (f"buffer_load_dwordx4 v[32:35], v{XG}, s[36:39], s50 offen sc1", 32)]
qfirst = None
if a.xc1:
    qfirst = QL[0][0] + "\n" + QL[1][0] + "\ns_cmp_lg_u32 s28, 0\ns_cbranch_scc1 L_noxg\n" + QL[2][0] + "\nL_noxg:"
gather("L_qg", *tagged(QL, 36, 37), between=k_frags, once=True, first=qfirst)
stamp('C'); cstamp('C')
untag(range(24, 32))
A("v_lshrrev_b32 v32, 16, v32")
for i in range(4): A(f"v_permlane16_swap_b32 v{24+i}, v{28+i}")
A("v_cmp_ne_u32 vcc, s61, v32")
A("v_pk_add_f32 v[24:25], v[24:25], v[28:29]\nv_pk_add_f32 v[26:27], v[26:27], v[30:31]")
A("v_permlane32_swap_b32 v24, v26\nv_permlane32_swap_b32 v25, v27")
A("v_pk_add_f32 v[24:25], v[24:25], v[26:27]\nv_cvt_pk_bf16_f32 v24, v24, v25")
A(f"ds_write_b32 v{QW}, v24")
if a.xc1:
    A(f"s_cmp_eq_u64 vcc, 0\ns_cselect_b32 s62, 3, 1\nv_mov_b32 v36, s62\ns_mov_b64 exec, 1\nds_write_b32 v5, v36 offset:{L_F1 - L_PROG}\ns_mov_b64 exec, -1")
else:
    setflag(L_F1)
    A("s_cmp_eq_u64 vcc, 0\ns_cselect_b32 s62, 1, 0")
sync(L_F1, "L_s1", "\n".join(f"ds_read_b128 v[{40+4*s}:{43+4*s}], v{QR} offset:{L_Q + 64*s}" for s in range(4)))
if a.xc1: A("s_lshr_b32 s62, s34, 1")
for s in range(4):
    A(f"s_waitcnt lgkmcnt({3-s})")
    for t in range(2):
        r = KF + 16*t + 4*s
        c = "0" if s == 0 else f"v[{32+4*t}:{35+4*t}]"
        A(f"v_mfma_f32_16x16x32_bf16 v[{32+4*t}:{35+4*t}], v[{r}:{r+3}], v[{40+4*s}:{43+4*s}], {c}")
for i in range(4): bfr2(32+2*i, 33+2*i)
for i in range(4): A(f"v_pk_mul_f32 v[{32+2*i}:{33+2*i}], v[{32+2*i}:{33+2*i}], s[10:11]")
for i in range(4): bfr2(32+2*i, 33+2*i)
A("""v_max3_f32 v40, v32, v33, v34
v_max3_f32 v41, v35, v36, v37
v_max3_f32 v40, v40, v38, v39
v_max_f32 v40, v40, v41""")
xrow("v_max_f32", 40, 41)
A("v_mul_f32 v40, s46, v40")
for i in range(8): A(f"v_fma_f32 v{32+i}, v{32+i}, s46, -v40")
for i in range(8): A(f"v_exp_f32 v{32+i}, v{32+i}")
A("""v_pk_add_f32 v[42:43], v[32:33], v[34:35]
v_pk_add_f32 v[44:45], v[36:37], v[38:39]""")
for i in range(4): A(f"v_cvt_pk_bf16_f32 v{32+i}, v{32+2*i}, v{33+2*i}")
A(f"ds_write_b128 v{PW}, v[32:35]")
setflag(L_F2)
A("v_pk_add_f32 v[42:43], v[42:43], v[44:45]\nv_add_f32 v41, v42, v43")
xrow("v_add_f32", 41, 42)
A(f"ds_write_b64 v{MW}, v[40:41]")
setflag(L_FM)
wo_early = PROG['wo'] < PROG['v3']
rd = "s_mov_b64 exec, s[16:17]\n" + "\n".join(f"ds_read_b128 v[{PF+8*w}:{PF+3+8*w}], v{PR} offset:{1024*w}" for w in range(4))
rd += "\ns_mov_b64 exec, s[18:19]\n" + "\n".join(f"ds_read_b128 v[{PF+4+8*w}:{PF+7+8*w}], v{PR} offset:{1024*w}" for w in range(4))
rd += "\ns_mov_b64 exec, -1"
sync(L_F2, "L_s2", rd, prog=bool(a.pvopt))
EARLY[0] = False
stamp('C')
def weights():
    sync(L_FM, "L_sm", "\n".join(f"ds_read_b64 v[{76+2*w}:{77+2*w}], v{MR} offset:{512*w}" for w in range(4)), prog=bool(a.pvopt))
    A("s_waitcnt lgkmcnt(0)\nv_max3_f32 v46, v76, v78, v80\nv_max_f32 v46, v46, v82")
    for w in range(4): A(f"v_sub_f32 v{76+2*w}, v{76+2*w}, v46")
    for w in range(4): A(f"v_exp_f32 v{76+2*w}, v{76+2*w}")
    A("s_and_b32 s34, s44, 0x1fffff\nv_mov_b32 v7, s34\nv_mul_f32 v41, v76, v77")
    for w in range(1, 4): A(f"v_fmac_f32 v41, v{76+2*w}, v{77+2*w}")
    A("v_log_f32 v54, v41\nv_rcp_f32 v52, v41\ns_mov_b32 s34, 0xffe00000\nv_add_f32 v54, v54, v46")
    for w in range(4): A(f"v_mul_f32 v{76+2*w}, v{76+2*w}, v52")
    A("v_add_u32 v54, 0x200, v54\nv_and_or_b32 v53, v54, s34, v7\nv_lshlrev_b32 v54, 11, v54\nv_and_or_b32 v55, v54, s34, v7")
def wo_frags():
    waitprog(PROG['wo'], "L_wo", 1 if wo_early else 0)
    for s in range(4):
        A(f"ds_read_b64_tr_b16 v[{WOF+4*s}:{WOF+1+4*s}], v{TA_} offset:{L_WO + s*4096}")
        A(f"ds_read_b64_tr_b16 v[{WOF+2+4*s}:{WOF+3+4*s}], v{TA_} offset:{L_WO + s*4096 + 2048}")
def v_reads(w):
    waitprog(PROG[f'v{w}'], f"L_v{w}", a.vsleep if w < 3 else 0)
    if w == 3: stamp('C')
    ar = 24 + 8*(w & 1)
    for t in range(2):
        A(f"ds_read_b64_tr_b16 v[{ar+4*t}:{ar+4*t+1}], v{VA+t} offset:{w*8192}")
        A(f"ds_read_b64_tr_b16 v[{ar+4*t+2}:{ar+4*t+3}], v{VA+t} offset:{w*8192+4096}")
def v_mfma(w, pend):
    ar = 24 + 8*(w & 1); D = 56 + 4*w
    for t in range(2):
        A(f"s_waitcnt lgkmcnt({pend + 2 - 2*t})")
        c = "0" if t == 0 else f"v[{D}:{D+3}]"
        A(f"v_mfma_f32_16x16x32_bf16 v[{D}:{D+3}], v[{ar+4*t}:{ar+4*t+3}], v[{PF+8*w+4*t}:{PF+3+8*w+4*t}], {c}")
def v_acc(w):
    D = 56 + 4*w
    for j in range(2):
        if w == 0: A(f"v_pk_mul_f32 v[{48+2*j}:{49+2*j}], v[{D+2*j}:{D+1+2*j}], v[76:77] op_sel_hi:[1,0]")
        else: A(f"v_pk_fma_f32 v[{48+2*j}:{49+2*j}], v[{D+2*j}:{D+1+2*j}], v[{76+2*w}:{77+2*w}], v[{48+2*j}:{49+2*j}] op_sel_hi:[1,0,1]")
if a.pvopt:
    wo_early = False
    v_reads(0); v_reads(1); v_mfma(0, 4); weights(); v_reads(2); v_mfma(1, 4); v_acc(0); v_reads(3); v_mfma(2, 4); v_acc(1); v_mfma(3, 0); v_acc(2)
else:
    weights()
    if wo_early: wo_frags()
    v_reads(0); v_reads(1); v_mfma(0, 4); v_reads(2); v_mfma(1, 4); v_acc(0); v_reads(3); v_mfma(2, 4); v_acc(1); v_mfma(3, 0); v_acc(2)
A("s_mov_b64 exec, s[14:15]")
v_acc(3)
A("v_cvt_pk_bf16_f32 v52, v48, v49\nv_cvt_pk_bf16_f32 v54, v50, v51")
pub(f"buffer_store_dwordx4 v[52:55], v{OS}, s[36:39], s53 offen")
if 'HO' in order: setflag(L_FO)
else: A("s_mov_b64 exec, -1")
stamp('C')
if a.ackstamp:
    A("s_waitcnt vmcnt(0)"); stamp('C')
OGL = [f"buffer_load_dwordx4 v[{24+4*i}:{27+4*i}], v{OG}, s[36:39], {so} offen sc1" + (" nt" if a.ognt else "") for i, so in enumerate(("s56", "s57", "s4", "s5"))]
def ochk(idx):
    o = [f"v_bitop3_b32 v{40+k}, v{25+4*i}, v{27+4*i}, v7 bitop3:0x7e" for k, i in enumerate(idx)]
    if len(o) == 4: o.append("v_or3_b32 v40, v40, v41, v42\nv_or_b32 v40, v40, v43")
    o.append("v_lshlrev_b32 v40, 11, v40\nv_cmp_ne_u32 vcc, 0, v40")
    return "\n".join(o)
A("s_mov_b32 s34, 0xffe00000")
gather("L_og", [(OGL[i], ochk([i])) for i in range(4)], ochk(range(4)), once=True, between=(None if wo_early or not a.wofirst else wo_frags))
stamp('C'); cstamp('C')
for i in range(4): A(f"v_lshrrev_b32 v{27+4*i}, 11, v{27+4*i}")
for i in range(4): A(f"v_bfi_b32 v{27+4*i}, s34, v{25+4*i}, v{27+4*i}")
for i in range(4): A(f"v_and_b32 v{25+4*i}, s47, v{27+4*i}")
A("v_max3_f32 v40, v25, v29, v33\nv_max_f32 v40, v40, v37")
def unp(i):
    return [f"v_lshlrev_b32 v{56+4*i}, 16, v{24+4*i}", f"v_and_b32 v{57+4*i}, 0xffff0000, v{24+4*i}",
            f"v_lshlrev_b32 v{58+4*i}, 16, v{26+4*i}", f"v_and_b32 v{59+4*i}, 0xffff0000, v{26+4*i}"]
U = sum((unp(i) for i in range(4)), [])
A("\n".join(U[0:2])); dpp("v_max_f32", 40, 40, "row_ror:8")
A("v_mov_b32 v41, v40"); A("\n".join(U[2:4])); A("v_permlane16_swap_b32 v41, v40\nv_max_f32 v40, v40, v41")
A("v_mov_b32 v41, v40"); A("\n".join(U[4:6])); A("v_permlane32_swap_b32 v41, v40\nv_max_f32 v40, v40, v41")
for i in range(4): A(f"v_sub_f32 v{72+2*i}, v{25+4*i}, v40")
for i in range(4): A(f"v_exp_f32 v{72+2*i}, v{72+2*i}")
A("\n".join(U[6:]))
A("v_add_f32 v40, v72, v74\nv_add_f32 v41, v76, v78")
for j in range(2): A(f"v_pk_mul_f32 v[{56+2*j}:{57+2*j}], v[{56+2*j}:{57+2*j}], v[72:73] op_sel_hi:[1,0]")
A("v_add_f32 v40, v40, v41")
for j in range(2): A(f"v_pk_fma_f32 v[{56+2*j}:{57+2*j}], v[{60+2*j}:{61+2*j}], v[74:75], v[{56+2*j}:{57+2*j}] op_sel_hi:[1,0,1]")
dpp("v_add_f32", 40, 40, "row_ror:8")
for j in range(2): A(f"v_pk_fma_f32 v[{56+2*j}:{57+2*j}], v[{64+2*j}:{65+2*j}], v[76:77], v[{56+2*j}:{57+2*j}] op_sel_hi:[1,0,1]")
A("v_mov_b32 v41, v40")
for j in range(2): A(f"v_pk_fma_f32 v[{56+2*j}:{57+2*j}], v[{68+2*j}:{69+2*j}], v[78:79], v[{56+2*j}:{57+2*j}] op_sel_hi:[1,0,1]")
A("v_permlane16_swap_b32 v41, v40\nv_add_f32 v40, v40, v41\nv_mov_b32 v41, v40")
for i in range(2): dpp("v_add_f32", 56+i, 56+i, "row_ror:8", "0x3")
A("v_permlane32_swap_b32 v41, v40")
for i in range(2): dpp("v_add_f32", 56+i, 58+i, "row_ror:8", "0xc")
A("v_add_f32 v40, v40, v41\nv_rcp_f32 v40, v40")
A("v_permlane16_swap_b32 v56, v57\nv_add_f32 v56, v56, v57\nv_mov_b32 v57, v56\nv_permlane32_swap_b32 v57, v56\nv_add_f32 v56, v56, v57")
A(f"v_mul_f32 v56, v56, v40\nv_cvt_pk_bf16_f32 v56, v56, v56\nds_write_b16 v{OW}, v56")
if not wo_early and not a.wofirst: wo_frags()
tstamp()
A("s_waitcnt lgkmcnt(0)\ns_barrier")
tstamp()
if DIAG and a.tail: cstamp('C', 's62')
for s in range(4): A(f"ds_read_b128 v[{24+4*s}:{27+4*s}], v{G16} offset:{L_OF + 64*s}")
A("s_mov_b64 exec, s[54:55]") if False else None
for s in range(4):
    A(f"s_waitcnt lgkmcnt({3-s})")
    c = "0" if s == 0 else "v[40:43]"
    A(f"v_mfma_f32_16x16x32_bf16 v[40:43], v[{WOF+4*s}:{WOF+3+4*s}], v[{24+4*s}:{27+4*s}], {c}")
A("s_mov_b32 exec_lo, 0x00030003\ns_mov_b32 exec_hi, 0x00030003" if a.full else "s_mov_b64 exec, s[54:55]")
tag(range(40, 44))
A(f"buffer_store_dwordx4 v[40:43], v{157 if a.full else G16}, s[36:39], s59 offen sc1")
if a.clean:
    A(f"s_mov_b64 exec, s[14:15]\nbuffer_store_dwordx4 v[52:55], v{OS}, s[36:39], s53 offen sc1")
stamp('C')
A("s_branch L_fin" if DIAG else "s_endpgm")

for b in reversed(OOL): A(b)
OOL.clear()
A("L_ffn:")
stamp_n['F'] = 2
A("s_mov_b32 s54, 0x000f000f\ns_mov_b32 s55, 0x000f000f")
ffn_ids(60, 61)
A(f"""s_cbranch_scc1 L_final
s_mov_b32 s48, 0x22222222
s_mov_b32 s49, 0x22222222
s_mov_b32 s50, 0x44444444
s_mov_b32 s51, 0x44444444
s_mov_b32 s52, 0x88888888
s_mov_b32 s53, 0x88888888
s_lshl_b32 s34, s61, 7
s_add_u32 s34, s34, s46
v_lshl_add_u32 v128, v3, 3, s34
v_lshl_add_u32 v133, v3, 3, s46
v_lshlrev_b32 v129, 6, v2
v_lshl_add_u32 v129, v3, 4, v129
v_lshlrev_b32 v132, 11, v2
v_lshl_add_u32 v132, v3, 4, v132
s_lshl_b32 s56, s60, 12
s_add_u32 s56, s56, {W_GU}
s_lshl_b32 s35, s61, 9
s_add_u32 s57, s56, s35
v_lshrrev_b32 v17, 1, v3
v_lshlrev_b32 v131, 2, v17
v_lshl_add_u32 v131, v2, 3, v131
v_add_u32 v131, s46, v131
s_lshl_b32 s58, s61, 13
s_lshl_b32 s35, s60, 6
s_add_u32 s58, s58, s35
s_add_u32 s58, s58, {W_GP}
s_waitcnt vmcnt(0)""")
gettag()
layernorm()
for s in range(2): A(f"ds_read2_b64 v[{24+4*s}:{27+4*s}], v128 offset0:{8*s} offset1:{8*s+4}")
waitprog(PROG['gu'], "L_gu")
stamp('F')
def gemv(base, nsteps, bfrag, acc, areg):
    k = 0
    for s in range(nsteps):
        for t in range(4):
            r = areg + 4*k
            A(f"ds_read_b64_tr_b16 v[{r}:{r+1}], v{10+t} offset:{base + s*4096}")
            A(f"ds_read_b64_tr_b16 v[{r+2}:{r+3}], v{10+t} offset:{base + s*4096 + 2048}")
            k += 1
    k = 0; n = nsteps*4
    for s in range(nsteps):
        for t in range(4):
            r = areg + 4*k
            A(f"s_waitcnt lgkmcnt({min(15, 2*(n-1-k))})")
            c = "0" if s == 0 else f"v[{acc+4*t}:{acc+4*t+3}]"
            A(f"v_mfma_f32_16x16x32_bf16 v[{acc+4*t}:{acc+4*t+3}], v[{r}:{r+3}], v[{bfrag+4*s}:{bfrag+4*s+3}], {c}")
            k += 1
gemv(L_G, 2, 24, 32, 64)
gemv(L_U, 2, 24, 48, 96)
select4(32, [32, 36, 40, 44]); select4(48, [48, 52, 56, 60])
tag(list(range(32, 36)) + list(range(48, 52)), True)
A("""s_mov_b64 exec, s[54:55]
buffer_store_dwordx4 v[32:35], v129, s[36:39], s57 offen sc1
buffer_store_dwordx4 v[48:51], v129, s[36:39], s57 offen offset:256 sc1
s_mov_b64 exec, -1""")
warm_lines()
stamp('F')
A("s_waitcnt vmcnt(0)")
if a.gtrig: waitprog(PROG[a.gtrig], "L_gt")
stamp('F')
gather("L_gug", *tagged([(f"buffer_load_dwordx4 v[{32+4*i}:{35+4*i}], v4, s[36:39], s56 offen" + (f" offset:{1024*i}" if i else "") + " sc1", 32+4*i) for i in range(4)], 56, 57), rsleep=2, once=True)
stamp('F'); cstamp('F')
untag(range(32, 48))
for j in range(2): A(f"v_pk_add_f32 v[{32+2*j}:{33+2*j}], v[{32+2*j}:{33+2*j}], v[{36+2*j}:{37+2*j}]")
for j in range(2): A(f"v_pk_add_f32 v[{40+2*j}:{41+2*j}], v[{40+2*j}:{41+2*j}], v[{44+2*j}:{45+2*j}]")
for j in range(2): A(f"v_pk_add_f32 v[{32+2*j}:{33+2*j}], v[{32+2*j}:{33+2*j}], v[{40+2*j}:{41+2*j}]")
A("v_permlane32_swap_b32 v32, v34\nv_permlane32_swap_b32 v33, v35\nv_pk_add_f32 v[34:35], v[32:33], v[34:35]")
bfr2(34, 35)
A("v_mov_b32 v32, v34\nv_mov_b32 v33, v35\nv_permlane16_swap_b32 v32, v34\nv_permlane16_swap_b32 v33, v35")
C1 = f32(-2*math.sqrt(2/math.pi)*math.log2(math.e)); C3 = f32(-2*math.sqrt(2/math.pi)*math.log2(math.e)*0.044715)
A(f"s_mov_b32 s60, {C3}\nv_mov_b32 v18, {C1}")
for i in range(2): A(f"v_mul_f32 v{48+i}, v{32+i}, v{32+i}")
for i in range(2): A(f"v_fma_f32 v{48+i}, v{48+i}, s60, v18")
for i in range(2): A(f"v_mul_f32 v{48+i}, v{48+i}, v{32+i}")
for i in range(2): A(f"v_exp_f32 v{48+i}, v{48+i}")
for i in range(2): A(f"v_add_f32 v{48+i}, 1.0, v{48+i}")
for i in range(2): A(f"v_rcp_f32 v{48+i}, v{48+i}")
for i in range(2): A(f"v_mul_f32 v{32+i}, v{32+i}, v{48+i}")
bfr2(32, 33)
A("v_pk_mul_f32 v[32:33], v[32:33], v[34:35]\nv_cvt_pk_bf16_f32 v32, v32, v33\nds_write_b32 v131, v32")
for s in range(2): A(f"ds_read2_b64 v[{24+4*s}:{27+4*s}], v133 offset0:{8*s} offset1:{8*s+4}")
waitprog(PROG['dn'], "L_dn")
stamp('F')
gemv(L_DN, 2, 24, 32, 64)
select4(32, [32, 36, 40, 44])
tag(range(32, 36))
A("""s_mov_b64 exec, s[54:55]
buffer_store_dwordx4 v[32:35], v132, s[36:39], s58 offen sc1
s_mov_b64 exec, -1""")
stamp('F')
A("s_barrier")
A("s_branch L_fin" if DIAG else "s_endpgm")

A("L_final:")
stamp_n['Z'] = 2
if a.ex3: A(f"s_add_u32 s34, s33, {4*a.zrot}\ns_and_b32 s34, s34, 31")
else: A("s_lshl_b32 s34, s32, 2\ns_add_u32 s34, s34, s33\ns_sub_u32 s34, s34, 28")
A(f"""s_lshl_b32 s56, s34, 11
s_add_u32 s58, s56, {W_GP}
s_lshl_b32 s56, s56, {a.full}
s_add_u32 s56, s56, {W_SP}
v_lshrrev_b32 v130, 2, v1
v_lshlrev_b32 v130, 7, v130
v_and_b32 v131, 3, v1
v_lshl_add_u32 v130, v131, 4, v130
s_lshl_b32 s60, s34, 5
s_mov_b32 s61, s34
v_and_b32 v129, 3, v1
v_lshlrev_b32 v129, 3, v129
v_lshl_add_u32 v129, v3, 1, v129
s_waitcnt vmcnt(0)
buffer_load_ushort v20, v129, s[40:43], s60 offen
s_mov_b32 s46, {LOG2E}""")
if a.warm:
    waitprog(PROG['gu'], "L_zw", 4)
    warm_lines()
    if a.warm == 1: A("""v_lshlrev_b32 v15, 5, v1
buffer_load_dword v26, v15, s[36:39], s58 offen sc1""")
gettag()
for i in range(4): A(f"v_mov_b32 v{44+i}, v9")
A("s_mov_b32 s18, -1\ns_mov_b32 s19, 0xffff\ns_waitcnt vmcnt(0)\nv_lshlrev_b32 v20, 16, v20")
srd(40, 22, 1024)
ZG = ["buffer_load_dwordx4 v[40:43], v4, s[36:39], s58 offen sc1", "buffer_load_dwordx4 v[44:47], v4, s[36:39], s58 offen offset:1024 sc1"]
ZG1 = ZG[0] + "\ns_mov_b64 exec, s[18:19]\n" + ZG[1] + "\ns_mov_b64 exec, -1"
if a.gearly:
    waitprog(PROG['v3'], "L_zv", 1)
    A(ZG1)
A("s_barrier")
stamp('Z')
def red2(r, clean=False):
    if not clean: untag(range(r, r+8))
    A(f"v_pk_add_f32 v[{r}:{r+1}], v[{r}:{r+1}], v[{r+4}:{r+5}]\nv_pk_add_f32 v[{r+2}:{r+3}], v[{r+2}:{r+3}], v[{r+6}:{r+7}]")
    A(f"v_permlane32_swap_b32 v{r}, v{r+2}\nv_permlane32_swap_b32 v{r+1}, v{r+3}\nv_pk_add_f32 v[{r}:{r+1}], v[{r}:{r+1}], v[{r+2}:{r+3}]")
    A(f"v_permlane16_swap_b32 v{r}, v{r+1}\nv_add_f32 v{r}, v{r}, v{r+1}")
    rowred("v_add_f32", [r], ("row_ror:8", "row_ror:4"))
ZG = ["buffer_load_dwordx4 v[40:43], v4, s[36:39], s58 offen sc1", "buffer_load_dwordx4 v[44:47], v4, s[36:39], s58 offen offset:1024 sc1"]
def silu():
    red2(40)
    bfr(40)
    A("v_mul_f32 v44, s46, v40\nv_exp_f32 v44, -v44\nv_add_f32 v44, 1.0, v44\nv_rcp_f32 v44, v44\nv_mul_f32 v40, v40, v44")
    bfr(40)
ZS = "buffer_load_dwordx4 v[24:27], v4, s[36:39], s56 offen sc1\nbuffer_load_dwordx4 v[28:31], v4, s[36:39], s56 offen offset:1024 sc1"
if a.full: ZS = "buffer_load_dwordx4 v[24:27], v130, s[36:39], s56 offen sc1\nbuffer_load_dwordx4 v[28:31], v130, s[36:39], s56 offen offset:2048 sc1"
def gpart():
    A("s_waitcnt vmcnt(2)")
    A(check_txt(list(range(40, 48)), 56, 57))
    A("s_cbranch_vccnz L_gg_retry\nL_gg_done:")
    OOL.append("L_gg_retry:\ns_add_u32 s35, s35, 1\ns_cmp_ge_u32 s35, %d\ns_cbranch_scc1 L_gg_done\ns_mov_b64 exec, vcc\n" % a.spin + ZG[0] +
               "\ns_and_b64 exec, exec, s[18:19]\n" + ZG[1] + "\ns_mov_b64 exec, -1\n" + ZS + "\ns_waitcnt vmcnt(0)\n" + check_txt(list(range(40, 48)), 56, 57) +
               "\ns_cbranch_vccnz L_gg_retry\ns_branch L_gg_done")
    stamp('Z'); cstamp('Z')
    silu()
if a.zpipe:
    ZB = ZS.replace("v[24:27]", "v[32:35]").replace("v[28:31]", "v[36:39]")
    A("s_mov_b32 s35, 0"); A(ZG1); A(ZS)
    gpart()
    A(ZB)
    A("L_za:\ns_waitcnt vmcnt(2)")
    A(check_txt(list(range(24, 32)), 56, 57))
    A("s_cbranch_vccnz L_zb\nL_sg_done:")
    OOL.append("L_zb:\n" + ZS + f"\ns_add_u32 s35, s35, 1\ns_cmp_ge_u32 s35, {a.spin}\ns_waitcnt vmcnt(2)\ns_cbranch_scc1 L_zc\n" + check_txt(list(range(32, 40)), 56, 57) +
               "\ns_cbranch_vccz L_zc\n" + ZB + "\ns_branch L_za\nL_zc:\n" +
               "\n".join(f"v_and_b32 v{64+i}, s47, v{32+i}" for i in range(8)) + "\ns_branch L_zd")
    for i in range(8): A(f"v_and_b32 v{64+i}, s47, v{24+i}")
    A("L_zd:")
else:
    gather("L_sg", [(ZS, check_txt(list(range(24, 32)), 56, 57))], check_txt(list(range(24, 32)), 56, 57), between=gpart, rsleep=a.zdelay,
           first=ZS if a.gearly else ZG1 + "\n" + ZS)
stamp('Z'); cstamp('Z')
ZR = 64 if a.zpipe else 24
red2(ZR, clean=bool(a.zpipe))
bfr(ZR)
A(f"v_mul_f32 v{ZR}, v{ZR}, v40")
bfr(ZR)
A(f"""v_add_f32 v{ZR}, v{ZR}, v20
v_cvt_pk_bf16_f32 v{ZR}, v{ZR}, v{ZR}
s_mov_b64 exec, s[54:55]
buffer_store_short v{ZR}, v129, s[40:43], s60 offen""" + (" " + a.outsc if a.outsc else ""))
stamp('Z')
if DIAG: A("s_waitcnt vmcnt(0)")
stamp('Z')
if a.pad:
    if a.padh >= 0: A(f"s_cmp_lg_u32 s29, {a.padh}\ns_cbranch_scc1 L_pad_done")
    A(f"L_pad:\ns_memrealtime s[66:67]\ns_waitcnt lgkmcnt(0)\ns_sub_u32 s66, s66, s64\ns_cmp_lt_u32 s66, {a.pad}\ns_cbranch_scc1 L_pad\nL_pad_done:")
A("""s_cmp_lg_u32 s61, 31
s_cbranch_scc1 L_fin
s_mov_b64 exec, 1
v_mov_b32 v16, s44
buffer_store_dword v16, off, s[36:39], 0""" + (" " + a.outsc if a.outsc else ""))
A("L_fin:")
if a.padev:
    role, k = a.padev.split(":"); k = int(k)
    A("v_lshrrev_b32 v4, 6, v0\nv_readfirstlane_b32 s28, v4\ns_waitcnt lgkmcnt(0)")
    if role == 'L': A("s_cmp_lg_u32 s28, 0\ns_cbranch_scc1 L_stop")
    if role == 'C': A("s_cmp_eq_u32 s28, 0\ns_cbranch_scc1 L_stop\ns_cmp_eq_u32 s28, 5\ns_cbranch_scc1 L_stop")
    if role in 'FZ': A("s_cmp_lg_u32 s28, 5\ns_cbranch_scc1 L_stop\ns_cmp_eq_u32 s32, 3\n" + ("s_cbranch_scc1" if role == 'F' else "s_cbranch_scc0") + " L_stop")
    A(f"L_padev:\ns_sleep 2\ns_memrealtime s[98:99]\ns_waitcnt lgkmcnt(0)\ns_sub_u32 s98, s98, s{64+2*k}\ns_cmp_lt_u32 s98, 2000\ns_cbranch_scc1 L_padev")
elif DIAG:
    A("s_mov_b64 exec, -1\ns_waitcnt vmcnt(0)\ns_memrealtime s[94:95]\ns_waitcnt lgkmcnt(0)\nv_mov_b32 v9, 0")
    for i in range(16): A(f"v_writelane_b32 v9, s{64+2*i}, {i}")
    A("v_lshrrev_b32 v4, 6, v0\nv_readfirstlane_b32 s28, v4")
    if DIAG >= 2:
        A(f"s_cmp_lg_u32 s28, {DIAG-2}\ns_cbranch_scc1 L_stop")
        A("s_not_b32 s34, s64\nv_writelane_b32 v9, s34, 0")
        srd(36, 24, 256)
        A("v_lshlrev_b32 v10, 2, v1\ns_mov_b64 exec, 0xffff\nbuffer_atomic_umax v9, v10, s[36:39], 0 offen\ns_endpgm")
    A("s_lshl_b32 s34, s28, 8\ns_add_u32 s34, s34, s2\ns_lshl_b32 s34, s34, 6\ns_add_u32 s34, s34, 0x10000000")
    srd(36, 26, 536870912)
    A("v_lshlrev_b32 v10, 2, v1\ns_mov_b64 exec, 0xffff\nbuffer_store_dword v9, v10, s[36:39], s34 offen")
A("L_stop:\ns_endpgm")
for b in OOL: A(b)
A("L_end:\ns_endpgm")
NV = 164
A('.section .rodata,"a"'); A(".p2align 6"); A(f".amdhsa_kernel {NAME}_kernel")
A(f".amdhsa_next_free_vgpr {NV}\n.amdhsa_next_free_sgpr 102\n.amdhsa_accum_offset {NV}")
A(".amdhsa_group_segment_fixed_size 0\n.amdhsa_kernarg_size 96\n.amdhsa_user_sgpr_count 2")
A(".amdhsa_user_sgpr_kernarg_segment_ptr 1\n.amdhsa_system_sgpr_workgroup_id_x 1\n.end_amdhsa_kernel")
sys.stdout.write("\n".join(hdr) + "\n" + A.text())
```
